```python
import torch

def _softmax(x, axis=-1):
    return torch.softmax(x, dim=axis)
def _gelu(x):
    return torch.nn.functional.gelu(x, approximate="tanh")
def _silu(x):
    return torch.nn.functional.silu(x)
def _sigmoid(x):
    return torch.sigmoid(x)
def _layernorm(x, axis=-1, eps=1e-5):
    m = x.mean(dim=axis, keepdim=True)
    v = x.var(dim=axis, keepdim=True, unbiased=False)
    return (x - m) / torch.sqrt(v + eps)
def _scatter_add(tgt, idx, src, axis=0):
    return tgt.clone().index_add_(axis, idx, src)
def _segment_sum(src, seg, n):
    out = torch.zeros((n,) + src.shape[1:], dtype=src.dtype)
    return out.index_add_(0, seg, src)
def _pad(x, pw):
    flat = tuple(v for pair in reversed(pw) for v in pair)
    return torch.nn.functional.pad(x, flat)

kernel_name = 'gated_mix__linear_kernel_hedgehog__mixer_token_mlp__prompt'

def setup_inputs():

    _w = (lambda a: (lambda t: t.to(torch.bfloat16) if t.is_floating_point() else t)(torch.as_tensor(a)))
    def _A_setup():
        B, S, D, H = 1, 2048, 512, 32
        Dh = D // H
        return {
            "x": _w((lambda *s: torch.randn(*s, dtype=torch.bfloat16) * 0.05)(B, S, D)),
            "wqkv": _w((lambda *s: torch.randn(*s, dtype=torch.bfloat16) * 0.8)(D, 3 * D)),
            "w_phi": _w((lambda *s: torch.randn(*s, dtype=torch.bfloat16) * 0.8)(H, Dh, Dh) * (Dh ** -0.5)),
            "wo": _w((lambda *s: torch.randn(*s, dtype=torch.bfloat16) * 0.05)(D, D)),
        }
    _A_in = _A_setup()

    def _B_setup():
        B, S, D, F = 1, 2048, 512, 1792
        return {
            "x": _w((lambda *s: torch.randn(*s, dtype=torch.bfloat16) * 0.05)(B, S, D)),
            "w1": _w((lambda *s: torch.randn(*s, dtype=torch.bfloat16) * 0.4)(S, F) * (S ** -0.5)),
            "b1": _w((lambda *s: torch.randn(*s, dtype=torch.bfloat16) * 3.2)(F) * 0.02),
            "w2": _w((lambda *s: torch.randn(*s, dtype=torch.bfloat16) * 0.1)(F, S) * (F ** -0.5)),
            "b2": _w((lambda *s: torch.randn(*s, dtype=torch.bfloat16) * 0.4)(S) * 0.02),
        }
    _B_in = _B_setup()

    return {
        "A_x": _A_in["x"],
        "A_wqkv": _A_in["wqkv"],
        "A_w_phi": _A_in["w_phi"],
        "A_wo": _A_in["wo"],
        "B_x": _B_in["x"],
        "B_w1": _B_in["w1"],
        "B_b1": _B_in["b1"],
        "B_w2": _B_in["w2"],
        "B_b2": _B_in["b2"],
        "gate_w": _w((lambda *s: torch.randn(*s, dtype=torch.bfloat16) * 0.05)(512) * 16.0),
    }

def reference(A_x, A_wqkv, A_w_phi, A_wo, B_x, B_w1, B_b1, B_w2, B_b2, gate_w):
    def _A_ref(x, wqkv, w_phi, wo):
        B, S, D = x.shape
        H = 32; Dh = D // H
        qkv = (lambda x, *d: x.permute(*d))((x @ wqkv).reshape(B, S, 3, H, Dh), 2, 0, 3, 1, 4)
        q, k, v = qkv[0], qkv[1], qkv[2]
        pq = torch.einsum("bhsd,hdf->bhsf", q, w_phi)
        pk = torch.einsum("bhsd,hdf->bhsf", k, w_phi)
        phi_q = torch.concatenate([_softmax(pq, axis=-1), _softmax(-pq, axis=-1)], axis=-1)
        phi_k = torch.concatenate([_softmax(pk, axis=-1), _softmax(-pk, axis=-1)], axis=-1)
        kv = torch.einsum("bhsf,bhsd->bhfd", phi_k, v)
        z  = torch.einsum("bhsf->bhf", phi_k)
        num = torch.einsum("bhqf,bhfd->bhqd", phi_q, kv)
        den = torch.einsum("bhqf,bhf->bhq", phi_q, z)[..., None] + 1e-6
        o = num / den
        return (lambda x, *d: x.permute(*d))(o, 0, 2, 1, 3).reshape(B, S, D) @ wo

    def _B_ref(x, w1, b1, w2, b2):
        B, S, D = x.shape
        h = _layernorm(x, axis=-1)
        u = torch.einsum("bsd,sf->bdf", h, w1) + b1
        u = _gelu(u)
        y = torch.einsum("bdf,fs->bds", u, w2) + b2
        return (lambda x, *d: x.permute(*d))(y, 0, 2, 1)

    x = A_x
    g = _sigmoid((x * gate_w).sum(-1, keepdims=True))
    a = _A_ref(x, A_wqkv, A_w_phi, A_wo)
    b = _B_ref(x, B_w1, B_b1, B_w2, B_b2)
    return g * a + (1 - g) * b
```

```python
import re

REG_RE = re.compile(r'^(-|\|)?(abs\()?([vas])(\d+)\)?\|?$')
RNG_RE = re.compile(r'^(-|\|)?([vas])\[(\d+):(\d+)\]\|?$')

def regs_of(tok):
    tok = tok.strip()
    m = REG_RE.match(tok)
    if m:
        return [(m.group(3), int(m.group(4)))]
    m = RNG_RE.match(tok)
    if m:
        return [(m.group(2), i) for i in range(int(m.group(3)), int(m.group(4)) + 1)]
    if tok == 'vcc':
        return [('vcc', 0)]
    if tok == 'exec':
        return [('exec', 0)]
    if tok == 'm0':
        return [('m0', 0)]
    return []

TRANS = ('v_exp_f32', 'v_log_f32', 'v_rcp_f32', 'v_rsq_f32', 'v_sqrt_f32', 'v_sin_f32', 'v_cos_f32')

class Ins:
    __slots__ = ('text', 'op', 'cls', 'dst', 'src', 'srcC', 'srcAB', 'passes', 'trans', 'dpp', 'perm', 'wide_store', 'ws', 'ldsdma', 'lanerd')

def parse(text):
    ins = Ins()
    ins.text = text
    t = text.split(';')[0].strip()
    parts = t.split(None, 1)
    op = parts[0]
    rest = parts[1] if len(parts) > 1 else ''
    ops = [o.strip() for o in rest.split(',')] if rest else []
    mods = ''
    if ops:
        last = ops[-1].split(None, 1)
        ops[-1] = last[0]
        mods = last[1] if len(last) > 1 else ''
    ins.op = op
    ins.dst = []; ins.src = []; ins.srcC = []; ins.srcAB = []
    ins.passes = 0; ins.trans = False; ins.dpp = False; ins.perm = False; ins.wide_store = False
    ins.ldsdma = False; ins.lanerd = False
    ins.ws = 1
    R = [regs_of(o) for o in ops]
    flat = lambda L: [r for x in L for r in x]
    if op.startswith('v_mfma'):
        ins.cls = 'mfma'
        ins.dst = R[0]; ins.srcAB = R[1] + R[2]; ins.srcC = R[3]; ins.src = ins.srcAB + ins.srcC
        ins.passes = 8 if '32x32x16' in op else 4
        assert '32x32x16' in op or '16x16x32' in op or '16x16x16' in op, op
    elif op.startswith('v_'):
        ins.cls = 'valu'
        base = op.replace('_e32', '').replace('_e64', '').replace('_dpp', '')
        ins.trans = base in TRANS
        ins.dpp = ('row_' in mods) or ('quad_perm' in mods) or op.endswith('_dpp')
        if base.startswith('v_permlane'):
            ins.perm = True
            ins.dst = R[0] + R[1]; ins.src = R[0] + R[1]
        elif base.startswith('v_cmp'):
            ins.dst = R[0]; ins.src = flat(R[1:])
        elif base in ('v_readfirstlane_b32', 'v_readlane_b32'):
            ins.lanerd = True
            ins.dst = R[0]; ins.src = flat(R[1:])
        elif base in ('v_fmac_f32', 'v_pk_fmac_f32'):
            ins.dst = R[0]; ins.src = flat(R)
        elif base == 'v_cndmask_b32':
            ins.dst = R[0]; ins.src = flat(R[1:])
            if len(R) == 3: ins.src += [('vcc', 0)]
        elif base == 'v_nop':
            pass
        else:
            assert '_co_' not in base, op
            ins.dst = R[0]; ins.src = flat(R[1:])
            if ins.dpp: ins.src += R[0]
    elif op.startswith('buffer_') or op.startswith('global_'):
        ins.cls = 'vmem'
        words = mods.split()
        if 'lds' in words:
            ins.ldsdma = True
            ins.src = flat(R) + [('m0', 0)]
        elif '_load' in op:
            ins.dst = R[0]; ins.src = flat(R[1:])
            if 'd16' in op: ins.src += R[0]
        else:
            ins.src = flat(R)
            if op.endswith('x4') or op.endswith('x3'):
                ins.wide_store = True
                ins.srcAB = R[0] if op.startswith('buffer_') else R[1]
    elif op.startswith('ds_'):
        ins.cls = 'ds'
        if 'read' in op:
            ins.dst = R[0]; ins.src = flat(R[1:])
        else:
            ins.src = flat(R)
    elif op.startswith('s_load') or op.startswith('s_memtime') or op.startswith('s_memrealtime'):
        ins.cls = 'smem'
        ins.dst = R[0]; ins.src = flat(R[1:])
    elif op == 's_nop':
        ins.cls = 'nop'; ins.ws = int(ops[0], 0) + 1
    elif op.startswith('s_'):
        ins.cls = 'salu'
        if not (op.startswith('s_cmp') or op.startswith('s_cbranch') or op in ('s_branch', 's_barrier', 's_waitcnt', 's_endpgm', 's_sleep', 's_setprio', 's_bitcmp1_b32', 's_bitcmp0_b32')):
            ins.dst = R[0]; ins.src = flat(R[1:])
            if 'saveexec' in op: ins.dst = ins.dst + [('exec', 0)]
        else:
            ins.src = flat(R)
    else:
        raise ValueError(text)
    return ins

def need(p, c):
    n = 0
    pd = set(p.dst)
    if p.cls == 'valu':
        vd = {r for r in pd if r[0] in 'va'}
        sd = {r for r in pd if r[0] in ('s', 'vcc')}
        if c.cls == 'mfma' and vd & set(c.src): n = max(n, 2)
        if c.cls == 'valu':
            if p.trans and not c.trans and vd & set(c.src): n = max(n, 1)
            if (c.perm or c.dpp) and vd & set(c.src): n = max(n, 2)
            if c.lanerd and vd & set(c.src): n = max(n, 1)
            if sd & set(c.src): n = max(n, 4 if c.lanerd else 2)
        if c.cls == 'vmem' and sd & set(c.src): n = max(n, 5)
        if c.cls == 'salu' and sd & set(c.src): n = max(n, 1)
    if p.cls == 'mfma':
        big = {8: 12, 4: 8}[p.passes]
        ovl = {8: 10, 4: 6}[p.passes]
        war = {8: 7, 4: 3}[p.passes]
        if c.cls == 'mfma':
            if pd & set(c.srcAB): n = max(n, big)
            if pd & set(c.srcC):
                if not (c.srcC == p.dst and c.passes == p.passes): n = max(n, ovl)
            elif pd & set(c.dst): n = max(n, big)
        elif c.cls in ('valu', 'vmem', 'ds'):
            if pd & (set(c.src) | set(c.dst)): n = max(n, big)
            if c.cls == 'valu' and set(p.srcC) & set(c.dst): n = max(n, war)
    if p.cls == 'salu':
        if ('m0', 0) in pd and c.ldsdma: n = max(n, 1)
    if p.cls == 'vmem' and p.wide_store:
        if set(p.srcAB) & set(c.dst): n = max(n, 2 if c.cls == 'valu' else 1)
    return n

class Stream:
    def __init__(self):
        self.out = []
        self.hist = []
        self.vm = []
        self.lg = []
        self.nnop = 0
        self.bg = []
        self.bg_every = 0
        self.bg_cnt = 0
        self.in_bg = False
        self.lab = 0

    def raw(self, text):
        self.out.append(text)

    def comment(self, t):
        self.out.append('    ; ' + t)

    def label(self, name):
        self.out.append(name + ':')

    def newlabel(self, p='L'):
        self.lab += 1
        return f'{p}_{self.lab}'

    def _push(self, ins):
        self.out.append('    ' + ins.text)
        self.hist.append(ins)
        if len(self.hist) > 24:
            self.hist.pop(0)

    def I(self, text, tag=None):
        for t in text.split('\n'):
            t = t.strip()
            if not t: continue
            ins = parse(t)
            dist = 0
            req = 0
            for p in reversed(self.hist):
                n = need(p, ins)
                if n - dist > req: req = n - dist
                dist += p.ws
                if dist >= 20: break
            while req > 0:
                k = min(req, 16)
                self._push(parse(f's_nop {k-1}'))
                self.nnop += 1
                req -= k
            self._push(ins)
            if ins.cls == 'vmem': self.vm.append(tag)
            if ins.cls == 'ds': self.lg.append(tag)
            if ins.cls in ('valu', 'mfma') and not self.in_bg and self.bg and self.bg_every:
                self.bg_cnt += (8 if ins.cls == 'mfma' and ins.passes == 8 else 2 if ins.trans else 1)
                if self.bg_cnt >= self.bg_every:
                    self.bg_cnt = 0
                    self.run_bg(1)

    def run_bg(self, n=None):
        self.in_bg = True
        while self.bg and (n is None or n > 0):
            f = self.bg.pop(0)
            f()
            if n is not None: n -= 1
        self.in_bg = False

    def _cnt(self, lst, tags):
        if not isinstance(tags, (list, tuple, set)): tags = [tags]
        idx = -1
        for i, t in enumerate(lst):
            if t in tags: idx = i
        return idx

    def wait(self, vm=None, lg=None):
        parts = []
        if vm is not None:
            idx = len(self.vm) - 1 if vm == 'all' else self._cnt(self.vm, vm)
            if idx >= 0:
                n = len(self.vm) - 1 - idx
                parts.append(f'vmcnt({min(n, 63)})')
                if n <= 63: self.vm = self.vm[idx + 1:]
                else: self.vm = self.vm[len(self.vm) - 63:]
        if lg is not None:
            idx = len(self.lg) - 1 if lg == 'all' else self._cnt(self.lg, lg)
            if idx >= 0:
                n = len(self.lg) - 1 - idx
                parts.append(f'lgkmcnt({min(n, 15)})')
                if n <= 15: self.lg = self.lg[idx + 1:]
                else: self.lg = self.lg[len(self.lg) - 15:]
        if parts:
            self.I('s_waitcnt ' + ' '.join(parts))

    def text(self):
        return '\n'.join(self.out) + '\n'
```

```python
import sys
from asmlib import Stream

NAME = 'gated_mix__linear_kernel_hedgehog__mixer_token_mlp__prompt'
MB = 1 << 20
WS_E = 0
FH = 4096
FKV = 12288
FR = 20480
FU = 24576
FO = 32768
G_ = 40960
KVF = 65536
HF = 1 * MB
KVP = 3 * MB
OF = 6 * MB
UF = 8 * MB
WS_SIZE = 10 * MB
KVB = 4608
LOG2E = 0x3fb8aa3b
SPIN_MAX = 50000

def f2u(x):
    import struct
    return struct.unpack('<I', struct.pack('<f', x))[0]

def v(a, n=1): return f'v{a}' if n == 1 else f'v[{a}:{a+n-1}]'
def a_(a, n=1): return f'a{a}' if n == 1 else f'a[{a}:{a+n-1}]'
MF = 'v_mfma_f32_32x32x16_bf16'

def srd(S, d, lo, nbytes):
    S.I(f's_mov_b32 s{d}, s{lo}\ns_mov_b32 s{d+1}, s{lo+1}\ns_mov_b32 s{d+2}, {nbytes}\ns_mov_b32 s{d+3}, 0x00020000')

def poll(S, vdata, vaddr, srdws, tag, first_tag=None):
    ok = S.newlabel('L_ok'); lp = S.newlabel('L_spin')
    S.wait(vm=first_tag)
    S.I(f'v_cmp_ne_u64 vcc, s[{tag}:{tag+1}], {v(vdata,2)}')
    S.I('s_nop 4')
    S.I(f's_cbranch_vccz {ok}')
    S.I(f's_mov_b32 s3, {SPIN_MAX}')
    S.label(lp)
    S.I('s_sleep 1')
    S.raw(f'    buffer_load_dwordx2 {v(vdata,2)}, {v(vaddr)}, s[{srdws}:{srdws+3}], 0 offen sc1')
    S.raw('    s_waitcnt vmcnt(0)')
    S.I(f'v_cmp_ne_u64 vcc, s[{tag}:{tag+1}], {v(vdata,2)}')
    S.I('s_sub_u32 s3, s3, 1')
    S.I('s_cmp_eq_u32 s3, 0')
    S.I(f's_cbranch_scc1 {ok}')
    S.I('s_nop 2')
    S.I(f's_cbranch_vccnz {lp}')
    S.label(ok)

def set_flag(S, srdws, soff, tag, vt):
    S.I(f'v_mov_b32 {v(vt)}, s{tag}\nv_mov_b32 {v(vt+1)}, s{tag+1}\nv_mov_b32 {v(vt+2)}, 0')
    S.I('s_mov_b64 exec, 1')
    S.I(f'buffer_store_dwordx2 {v(vt,2)}, {v(vt+2)}, s[{srdws}:{srdws+3}], s{soff} offen sc1', tag='flag')
    S.I('s_mov_b64 exec, -1')

def allreduce64(S, regs, tmp):
    for sh in (8, 4, 2, 1):
        for r in regs:
            S.I(f'v_add_f32_dpp {v(r)}, {v(r)}, {v(r)} row_ror:{sh} row_mask:0xf bank_mask:0xf')
    for op in ('v_permlane16_swap_b32', 'v_permlane32_swap_b32'):
        for r, t in zip(regs, tmp): S.I(f'v_mov_b32 {v(t)}, {v(r)}')
        for r, t in zip(regs, tmp): S.I(f'{op} {v(r)}, {v(t)}')
        for r, t in zip(regs, tmp): S.I(f'v_add_f32 {v(r)}, {v(r)}, {v(t)}')

def pair_allreduce(S, ra, rb, op, t, post=None):
    S.I(f'v_permlane32_swap_b32 {v(ra)}, {v(rb)}')
    S.I(f'{op} {v(ra)}, {v(ra)}, {v(rb)}')
    if post: post(ra)
    S.I(f'v_mov_b32 {v(rb)}, {v(ra)}')
    S.I(f'v_permlane32_swap_b32 {v(ra)}, {v(rb)}')

def softmax_pm(S, P, E, T, OUT, sC):
    mxA, mxB, mnA, mnB = T, T+1, T+2, T+3
    for (m, base, op3, op2) in ((mxA, P, 'v_max3_f32', 'v_max_f32'), (mxB, P+8, 'v_max3_f32', 'v_max_f32'),
                                (mnA, P, 'v_min3_f32', 'v_min_f32'), (mnB, P+8, 'v_min3_f32', 'v_min_f32')):
        S.I(f'{op3} {v(m)}, {v(base)}, {v(base+1)}, {v(base+2)}')
    for k in (3, 5):
        for (m, base, op3) in ((mxA, P, 'v_max3_f32'), (mxB, P+8, 'v_max3_f32'), (mnA, P, 'v_min3_f32'), (mnB, P+8, 'v_min3_f32')):
            S.I(f'{op3} {v(m)}, {v(m)}, {v(base+k)}, {v(base+k+1)}')
    for (m, base, op2) in ((mxA, P, 'v_max_f32'), (mxB, P+8, 'v_max_f32'), (mnA, P, 'v_min_f32'), (mnB, P+8, 'v_min_f32')):
        S.I(f'{op2} {v(m)}, {v(m)}, {v(base+7)}')
    sc = lambda r: S.I(f'v_mul_f32 {v(r)}, s{sC}, {v(r)}')
    pair_allreduce(S, mxA, mxB, 'v_max_f32', None, post=sc)
    pair_allreduce(S, mnA, mnB, 'v_min_f32', None, post=sc)
    for hb, (mx, mn) in enumerate(((mxA, mnA), (mxB, mnB))):
        for i in range(8):
            S.I(f'v_fma_f32 {v(E+16*hb+i)}, {v(P+8*hb+i)}, s{sC}, -{v(mx)}')
            S.I(f'v_fma_f32 {v(E+16*hb+8+i)}, -{v(P+8*hb+i)}, s{sC}, {v(mn)}')
        for i in range(16):
            S.I(f'v_exp_f32 {v(E+16*hb+i)}, {v(E+16*hb+i)}')
    sm = [T+4, T+5, T+6, T+7]
    for gidx in range(4):
        S.I(f'v_add_f32 {v(sm[gidx])}, {v(E+8*gidx)}, {v(E+8*gidx+1)}')
    for i in range(2, 8):
        for gidx in range(4):
            S.I(f'v_add_f32 {v(sm[gidx])}, {v(sm[gidx])}, {v(E+8*gidx+i)}')
    rc = lambda r: S.I(f'v_rcp_f32 {v(r)}, {v(r)}')
    pair_allreduce(S, sm[0], sm[1], 'v_add_f32', None, post=rc)
    pair_allreduce(S, sm[2], sm[3], 'v_add_f32', None, post=rc)
    for gidx in range(4):
        for i in range(8):
            S.I(f'v_mul_f32 {v(E+8*gidx+i)}, {v(sm[gidx])}, {v(E+8*gidx+i)}')
        for i in range(4):
            S.I(f'v_cvt_pk_bf16_f32 {v(OUT+4*gidx+i)}, {v(E+8*gidx+2*i)}, {v(E+8*gidx+2*i+1)}')

def cvt8(S, dst, src, n=8):
    for i in range(n):
        S.I(f'v_cvt_pk_bf16_f32 {v(dst+i)}, {v(src+2*i)}, {v(src+2*i+1)}')

def load_kernargs(S):
    S.I('s_load_dwordx16 s[36:51], s[0:1], 0')
    S.I('s_load_dwordx8 s[52:59], s[0:1], 64')
    S.I('s_load_dwordx2 s[60:61], s[0:1], 96')
PX, PWQKV, PWPHI, PWO, PW1, PB1, PW2, PB2, PGW, POUT, PWS = 36, 38, 40, 42, 46, 48, 50, 52, 54, 56, 60
RX, RW, RWS, RW1 = 8, 12, 16, 20
sWAVE, sSBLK, sQUAD, sDT, sFT, sIDX = 24, 25, 26, 27, 28, 29
sX, sW, sMX, sMW, sW1, sH = 30, 31, 32, 33, 34, 35
TAG = 62
sC = 64
sMASK = 70
sMB = 74
sXCD = 75
LDS_SCR = 131072
LDS_KVX = LDS_SCR + 9216
LDS_TOTAL = LDS_KVX + 8192

def lane_parts(S):
    S.I('v_and_b32 v1, 63, v0')
    S.I('v_lshrrev_b32 v2, 6, v0')
    S.I(f'v_readfirstlane_b32 s{sWAVE}, v2')
    S.I('v_lshrrev_b32 v2, 3, v1\nv_and_b32 v3, 7, v1\nv_lshrrev_b32 v4, 4, v1')

def code_prefetch(S, label, nbytes, vtmp, vdst):
    pass

def gen_k1(S, opt):
    vXa, vXb, vW, vW2 = 10, 11, 12, 13
    vXr = 14; vWr = 22
    vW1a, vW1b, vH0, vH1, vBr = 24, 25, 26, 27, 28
    XF = 32; WF = 40
    AQ, AK, AV = 64, 80, 96
    WA, WB, IP, IM = 112, 116, 120, 124
    PHIQ = 240
    S.I('s_cmp_ge_u32 s2, 256\ns_cbranch_scc1 L_end1')
    load_kernargs(S)
    lane_parts(S)
    S.I(f's_and_b32 s{sXCD}, s2, 7\ns_lshr_b32 s{sIDX}, s2, 3')
    S.I(f's_lshr_b32 s3, s{sXCD}, 1\ns_lshl_b32 s3, s3, 3\ns_and_b32 s4, s{sIDX}, 7\ns_add_u32 s{sSBLK}, s3, s4')
    S.I(f's_and_b32 s3, s{sXCD}, 1\ns_lshl_b32 s3, s3, 2\ns_lshr_b32 s4, s{sIDX}, 3\ns_add_u32 s{sQUAD}, s3, s4')
    S.I(f's_lshl_b32 s5, s{sSBLK}, 16\ns_lshl_b32 s6, s{sQUAD}, 13\ns_add_u32 s6, s6, s5\ns_lshl_b32 s7, s{sWAVE}, 11\ns_add_u32 s6, s6, s7')
    S.I('v_lshlrev_b32 v5, 4, v1')
    S.I(f'v_xor_b32 v6, v3, v4\nv_lshlrev_b32 v6, 4, v6\nv_lshl_add_u32 {v(vXa)}, v2, 10, v6')
    S.I(f'v_xor_b32 {v(vXb)}, 64, {v(vXa)}\nv_add_u32 {v(vXb)}, 7168, {v(vXb)}')
    S.I('v_and_b32 v6, 1, v4\nv_lshlrev_b32 v6, 2, v6\nv_xor_b32 v6, v3, v6\nv_lshlrev_b32 v6, 4, v6')
    S.I(f'v_mul_u32_u24 v7, 3072, v2\nv_add_u32 {v(vW)}, v7, v6\nv_add_u32 {v(vW2)}, 24576, {v(vW)}')
    S.I(f'v_mul_u32_u24 v7, 3584, v2\nv_add_u32 {v(vW1a)}, v7, v6\nv_add_u32 {v(vW1b)}, {8*3584-1024}, {v(vW1a)}')
    S.I(f's_lshl_b32 s7, s{sWAVE}, 14\ns_add_u32 s{sX}, s5, s7')
    S.I(f's_mul_i32 s{sW}, s{sWAVE}, {16*3072}\ns_lshl_b32 s7, s{sQUAD}, 7\ns_add_u32 s{sW}, s{sW}, s7')
    S.I(f's_lshl_b32 s{sMX}, s{sWAVE}, 11')
    S.I(f's_mul_i32 s{sMW}, s{sWAVE}, 6144\ns_add_u32 s{sMW}, s{sMW}, 8192')
    S.I('v_mov_b32 v8, 0')
    S.I('s_waitcnt lgkmcnt(0)')
    srd(S, RX, PX, 2048*1024)
    S.I(f'buffer_load_dwordx4 v[128:131], v5, s[{RX}:{RX+3}], s6 offen', tag='lnx')
    S.I(f'buffer_load_dwordx4 v[132:135], v5, s[{RX}:{RX+3}], s6 offen offset:1024', tag='lnx')
    S.I(f'global_load_dwordx4 v[136:139], v5, s[{PGW}:{PGW+1}]', tag='lnx')
    srd(S, RWS, PWS, WS_SIZE)
    S.I(f'buffer_load_dwordx2 v[164:165], v8, s[{RWS}:{RWS+3}], 0 offen sc1', tag='lnx')
    srd(S, RW, PWQKV, 512*3072)

    def stage_loads(st):
        slot = (st & 3) * 32768
        tg = f'S{st}'
        S.I(f's_add_u32 m0, s{sMX}, {slot}')
        S.I(f'buffer_load_dwordx4 {v(vXa)}, s[{RX}:{RX+3}], s{sX} offen lds', tag=tg)
        S.I(f'buffer_load_dwordx4 {v(vXb)}, s[{RX}:{RX+3}], s{sX} offen offset:1024 lds', tag=tg)
        S.I(f's_add_u32 m0, s{sMW}, {slot}')
        S.I(f's_add_u32 s{sX}, s{sX}, 128')
        for seg in range(3):
            S.I(f'buffer_load_dwordx4 {v(vW)}, s[{RW}:{RW+3}], s{sW} offen offset:{seg*1024} lds', tag=tg)
        S.I(f's_add_u32 m0, s{sMW}, {slot+3072}')
        S.I('s_nop 0')
        for seg in range(3):
            S.I(f'buffer_load_dwordx4 {v(vW2)}, s[{RW}:{RW+3}], s{sW} offen offset:{seg*1024} lds', tag=tg)
        S.I(f's_add_u32 s{sW}, s{sW}, {64*3072}')
    for st in range(4): stage_loads(st)
    if opt.get('codepf', True):
        S.I('s_getpc_b64 s[66:67]')
        S.I(f's_and_b32 s3, s{sIDX}, 7\ns_lshl_b32 s3, s3, 12')
        S.I('v_lshlrev_b32 v6, 4, v0\nv_add_u32 v6, s3, v6')
        S.I('global_load_dwordx4 v[232:235], v6, s[66:67]', tag='cpf')
    S.I(f's_and_b32 s3, s{sWAVE}, 1\ns_lshl_b32 s3, s3, 1\ns_lshl_b32 s4, s{sQUAD}, 2\ns_add_u32 s3, s3, s4\ns_lshl_b32 s3, s3, 9')
    S.I('v_bfe_u32 v6, v1, 4, 1\nv_lshlrev_b32 v6, 9, v6\nv_and_b32 v7, 15, v1\nv_lshl_add_u32 v6, v7, 1, v6\nv_lshrrev_b32 v7, 5, v1\nv_lshl_add_u32 v6, v7, 7, v6\nv_add_u32 v6, s3, v6')
    for j in range(8):
        d = (j & 3) + 8 * (j >> 2)
        S.I(f'global_load_ushort {v(180 + j)}, v6, s[{PWPHI}:{PWPHI+1}] offset:{d*32}', tag='wphi')
    S.I(f's_mov_b32 s{sC}, {LOG2E}')
    S.I(f's_mov_b32 s{sMASK}, 0x0000ffff\ns_mov_b32 s{sMASK+1}, 0x0000ffff')
    srd(S, RW1, PW1, 2048*3584)
    S.I(f's_and_b32 s3, s{sXCD}, 1\ns_lshl_b32 s3, s3, 2\ns_and_b32 s4, s{sIDX}, 3\ns_add_u32 s{sDT}, s3, s4')
    S.I(f's_lshr_b32 s3, s{sXCD}, 1\ns_mul_i32 s3, s3, 7\ns_lshr_b32 s4, s{sIDX}, 2\ns_add_u32 s{sFT}, s3, s4')
    S.I(f's_mul_i32 s{sW1}, s{sWAVE}, {512*3584}\ns_lshl_b32 s3, s{sFT}, 7\ns_add_u32 s{sW1}, s{sW1}, s3')
    S.I(f's_lshl_b32 s{sH}, s{sWAVE}, 19\ns_lshl_b32 s3, s{sDT}, 11\ns_add_u32 s{sH}, s{sH}, s3\ns_add_u32 s{sH}, s{sH}, {HF}')
    S.I(f's_lshl_b32 s{sMB}, s{sWAVE}, 13')
    S.I(f's_lshr_b32 s3, s{sWAVE}, 1\ns_lshl_b32 s3, s3, 12')
    S.I('v_and_b32 v6, 31, v1\nv_lshlrev_b32 v6, 7, v6\nv_bfe_u32 v7, v1, 1, 3\nv_lshrrev_b32 v9, 5, v1\nv_xor_b32 v7, v7, v9\nv_lshl_add_u32 v6, v7, 4, v6')
    S.I(f'v_add_u32 {v(vXr)}, s3, v6')
    for ks in range(1, 4): S.I(f'v_xor_b32 {v(vXr+ks)}, {32*ks}, {v(vXr)}')
    for ks in range(4): S.I(f'v_add_u32 {v(vXr+4+ks)}, 0x10000, {v(vXr+ks)}')
    S.I('v_bfe_u32 v6, v1, 2, 2\nv_lshlrev_b32 v6, 7, v6')
    S.I('v_bfe_u32 v7, v1, 4, 1\nv_lshl_add_u32 v6, v7, 5, v6')
    S.I('v_and_b32 v7, 3, v1\nv_lshl_add_u32 v6, v7, 3, v6')
    S.I('v_bfe_u32 v7, v1, 3, 1\nv_lshl_add_u32 v6, v7, 6, v6')
    S.I(f's_and_b32 s3, s{sWAVE}, 1\ns_lshl_b32 s3, s3, 6')
    S.I(f'v_xor_b32 v7, s3, v6')
    S.I(f'v_mul_u32_u24 {v(vWr)}, 3072, v9\nv_add_u32 {v(vWr)}, {v(vWr)}, v7\nv_add_u32 {v(vWr)}, 8192, {v(vWr)}')
    S.I(f'v_add_u32 {v(vWr+1)}, 0x10000, {v(vWr)}')
    S.I(f's_lshr_b32 s3, s{sWAVE}, 1\ns_lshl_b32 s3, s3, 6')
    S.I(f'v_xor_b32 v7, s3, v6\nv_lshl_add_u32 v7, v9, 10, v7\nv_add_u32 {v(vBr)}, s{sMB}, v7')
    S.I(f'v_xor_b32 {v(vBr+1)}, 64, {v(vBr)}\nv_add_u32 {v(vBr+2)}, 0x10000, {v(vBr)}\nv_add_u32 {v(vBr+3)}, 0x10000, {v(vBr+1)}')
    S.I(f's_and_b32 s3, s{sWAVE}, 1\ns_lshl_b32 s3, s3, 10')
    S.I(f'v_add_u32 {v(vH0)}, s3, v5\nv_xor_b32 {v(vH1)}, 0x400, {v(vH0)}')
    S.I('v_and_b32 v6, 31, v1\nv_lshlrev_b32 v7, 2, v9\nv_sub_u32 v6, v6, v7')
    S.I('v_mov_b32 v7, 0x3f80\nv_mov_b32 v2, 0x3f800000\nv_mov_b32 v3, 0')
    for base, off in ((IP, 0), (IM, 16)):
        for jj in range(4):
            f0 = ((2*jj) & 3) + 8*(jj >> 1) + off
            S.I(f'v_cmp_eq_u32 vcc, {f0}, v6\nv_cndmask_b32 {v(base+jj)}, v3, v7, vcc')
            S.I(f'v_cmp_eq_u32 vcc, {f0+1}, v6\nv_cndmask_b32 {v(base+jj)}, {v(base+jj)}, v2, vcc')
    for r in range(48): S.I(f'v_mov_b32 {v(AQ+r)}, 0')

    S.wait(vm='lnx')
    fa, fb, fg = 140, 148, 156
    for dst, src in ((fa, 128), (fb, 132), (fg, 136)):
        for i in range(4):
            S.I(f'v_lshlrev_b32 {v(dst+2*i)}, 16, {v(src+i)}\nv_and_b32 {v(dst+2*i+1)}, 0xffff0000, {v(src+i)}')
    S.I(f'v_readfirstlane_b32 s{TAG}, v164\nv_readfirstlane_b32 s{TAG+1}, v165')
    sA, sB_, gA, gB = 172, 173, 174, 175
    S.I(f'v_add_f32 {v(sA)}, {v(fa)}, {v(fa+1)}\nv_add_f32 {v(sB_)}, {v(fb)}, {v(fb+1)}')
    S.I(f'v_mul_f32 {v(gA)}, {v(fa)}, {v(fg)}\nv_mul_f32 {v(gB)}, {v(fb)}, {v(fg)}')
    S.I(f's_mul_i32 s{TAG}, s{TAG}, 1664525\ns_add_u32 s{TAG}, s{TAG}, 1013904223')
    S.I(f's_mul_i32 s{TAG+1}, s{TAG+1}, 22695477\ns_add_u32 s{TAG+1}, s{TAG+1}, 1')
    for i in range(1, 8):
        if i >= 2: S.I(f'v_add_f32 {v(sA)}, {v(sA)}, {v(fa+i)}\nv_add_f32 {v(sB_)}, {v(sB_)}, {v(fb+i)}')
        S.I(f'v_fmac_f32 {v(gA)}, {v(fa+i)}, {v(fg+i)}\nv_fmac_f32 {v(gB)}, {v(fb+i)}, {v(fg+i)}')
    allreduce64(S, [sA, sB_, gA, gB], [176, 177, 178, 179])
    S.I(f'v_mul_f32 {v(sA)}, {f2u(1/512):#x}, {v(sA)}\nv_mul_f32 {v(sB_)}, {f2u(1/512):#x}, {v(sB_)}')
    for i in range(8):
        S.I(f'v_sub_f32 {v(fa+i)}, {v(fa+i)}, {v(sA)}\nv_sub_f32 {v(fb+i)}, {v(fb+i)}, {v(sB_)}')
    S.I(f'v_mul_f32 {v(sA)}, {v(fa)}, {v(fa)}\nv_mul_f32 {v(sB_)}, {v(fb)}, {v(fb)}')
    for i in range(1, 8):
        S.I(f'v_fmac_f32 {v(sA)}, {v(fa+i)}, {v(fa+i)}\nv_fmac_f32 {v(sB_)}, {v(fb+i)}, {v(fb+i)}')
    S.I(f'v_cmp_eq_u32 vcc, 0, v1\nv_cndmask_b32 {v(gA)}, {v(gB)}, {v(gA)}, vcc')
    S.I(f'v_mul_f32 {v(gA)}, s{sC}, {v(gA)}\nv_exp_f32 {v(gA)}, -{v(gA)}\nv_add_f32 {v(gA)}, 1.0, {v(gA)}\nv_rcp_f32 {v(gA)}, {v(gA)}')
    allreduce64(S, [sA, sB_], [176, 177])
    S.I(f'v_mov_b32 v176, {f2u(1e-5):#x}')
    S.I(f'v_fmamk_f32 {v(sA)}, {v(sA)}, {f2u(1/512):#x}, v176\nv_fmamk_f32 {v(sB_)}, {v(sB_)}, {f2u(1/512):#x}, v176')
    S.I(f'v_rsq_f32 {v(sA)}, {v(sA)}\nv_rsq_f32 {v(sB_)}, {v(sB_)}')
    for i in range(8):
        S.I(f'v_mul_f32 {v(fa+i)}, {v(sA)}, {v(fa+i)}\nv_mul_f32 {v(fb+i)}, {v(sB_)}, {v(fb+i)}')
    cvt8(S, 128, fa, 4); cvt8(S, 132, fb, 4)
    S.I(f's_mul_i32 s3, s{sWAVE}, 2176\ns_add_u32 s3, s3, {LDS_SCR}\nv_add_u32 v6, s3, v5')
    S.I('ds_write_b128 v6, v[128:131]', tag='lnw')
    S.I('ds_write_b128 v6, v[132:135] offset:1088', tag='lnw')
    S.I(f's_lshr_b32 s3, s6, 8\ns_add_u32 s3, s3, {G_}\nv_lshlrev_b32 v7, 2, v1')
    S.I('s_mov_b64 exec, 3')
    S.I(f'buffer_store_dword {v(gA)}, v7, s[{RWS}:{RWS+3}], s3 offen sc1', tag='hst')
    S.I('s_mov_b64 exec, -1')
    S.I('v_bfe_u32 v6, v1, 2, 2\nv_mul_u32_u24 v6, 1088, v6\nv_lshrrev_b32 v7, 4, v1\nv_lshl_add_u32 v6, v7, 5, v6\nv_and_b32 v7, 3, v1\nv_lshl_add_u32 v6, v7, 3, v6')
    S.I(f's_lshl_b32 s3, s{sWAVE}, 8\ns_add_u32 s3, s3, {LDS_SCR}\nv_add_u32 v6, s3, v6')
    S.I(f's_lshl_b32 s3, s{sSBLK}, 2\ns_lshr_b32 s4, s{sQUAD}, 1\ns_add_u32 s3, s3, s4\ns_lshl_b32 s3, s3, 14\ns_lshl_b32 s4, s{sWAVE}, 12\ns_add_u32 s3, s3, s4')
    S.I(f's_and_b32 s4, s{sQUAD}, 1\ns_lshl_b32 s4, s4, 9\ns_add_u32 s3, s3, s4\ns_add_u32 s68, s3, {HF}')
    S.I('v_and_b32 v7, 31, v1\nv_lshlrev_b32 v7, 4, v7\nv_lshl_add_u32 v7, v9, 10, v7')
    S.I(f's_lshl_b32 s3, s{sSBLK}, 3\ns_add_u32 s3, s3, s{sQUAD}\ns_lshl_b32 s3, s3, 3\ns_lshl_b32 s4, s{sWAVE}, 11\ns_add_u32 s3, s3, s4\ns_add_u32 s69, s3, {FH}')
    S.wait(lg='lnw')
    S.I('s_barrier')
    S.I('ds_read_b64_tr_b16 v[128:129], v6', tag='lnr')
    S.I(f'ds_read_b64_tr_b16 v[130:131], v6 offset:{4*1088}', tag='lnr')
    S.I('ds_read_b64_tr_b16 v[132:133], v6 offset:128', tag='lnr')
    S.I(f'ds_read_b64_tr_b16 v[134:135], v6 offset:{4*1088+128}', tag='lnr')
    S.wait(lg='lnr')
    S.I(f'buffer_store_dwordx4 v[128:131], v7, s[{RWS}:{RWS+3}], s68 offen sc1', tag='hst')
    S.I(f'buffer_store_dwordx4 v[132:135], v7, s[{RWS}:{RWS+3}], s68 offen offset:2048 sc1', tag='hst')

    def b_dma(step):
        p = step & 15
        S.I(f's_add_u32 m0, s{sMB}, {(p>>2)*32768 + (p&3)*2048}')
        S.I(f'buffer_load_dwordx4 {v(vW1a)}, s[{RW1}:{RW1+3}], s{sW1} offen lds', tag=f'B{step}')
        S.I(f'buffer_load_dwordx4 {v(vW1b)}, s[{RW1}:{RW1+3}], s{sW1} offen offset:1024 lds', tag=f'B{step}')
        S.I(f's_add_u32 s{sW1}, s{sW1}, {16*3584}')
    def h_load(step):
        p = step & 15
        S.I(f'buffer_load_dwordx4 {a_(8*p,4)}, {v(vH0)}, s[{RWS}:{RWS+3}], s{sH} offen sc1', tag=f'H{step}')
        S.I(f'buffer_load_dwordx4 {a_(8*p+4,4)}, {v(vH1)}, s[{RWS}:{RWS+3}], s{sH} offen sc1', tag=f'H{step}')
        S.I(f's_add_u32 s{sH}, s{sH}, 16384')

    def a_reads(kk):
        st, ks = kk >> 2, kk & 3
        slot = st & 3
        hi = slot >> 1
        so = (slot & 1) * 32768
        b = kk & 1
        S.I(f'ds_read_b128 {v(XF+4*b,4)}, {v(vXr+4*hi+ks)} offset:{so}', tag=f'R{kk}')
        for seg in range(3):
            for t in range(2):
                S.I(f'ds_read_b64_tr_b16 {v(WF+12*b+4*seg+2*t,2)}, {v(vWr+hi)} offset:{so + ks*6144 + seg*1024 + t*512}', tag=f'R{kk}')
    def a_mfma(kk):
        b = kk & 1
        S.wait(lg=f'R{kk}')
        S.I(f'{MF} {v(AQ,16)}, {v(WF+12*b,4)}, {v(XF+4*b,4)}, {v(AQ,16)}')
        S.I(f'{MF} {v(AK,16)}, {v(WF+12*b+4,4)}, {v(XF+4*b,4)}, {v(AK,16)}')
        S.I(f'{MF} {v(AV,16)}, {v(XF+4*b,4)}, {v(WF+12*b+8,4)}, {v(AV,16)}')
    vFL, vFLa = 236, 238
    for kk in range(32):
        st = kk >> 2
        if kk & 3 == 0:
            S.comment(f'stage {st}')
            tags = [f'S{st}'] + (['hst'] if st == 3 else [])
            S.wait(vm=tags, lg='all')
            S.I('s_barrier')
            if st == 3:
                set_flag(S, RWS, 69, TAG, 2)
            a_reads(kk)
            if 1 <= st <= 4: stage_loads(st + 3)
            if st >= 5:
                for step in range(4*(st-5), 4*(st-5)+4): b_dma(step)
            if st == 7:
                S.I(f's_lshr_b32 s3, s{sDT}, 1\ns_lshl_b32 s3, s3, 11\ns_add_u32 s3, s3, {FH}')
                S.I(f'v_lshlrev_b32 {v(vFLa)}, 3, v0\nv_add_u32 {v(vFLa)}, s3, {v(vFLa)}')
                S.I(f'buffer_load_dwordx2 {v(vFL,2)}, {v(vFLa)}, s[{RWS}:{RWS+3}], 0 offen sc1', tag='pollH')
        else:
            a_reads(kk)
        if kk > 0: a_mfma(kk - 1)
    a_mfma(31)
    S.I('s_barrier')
    for step in range(12, 16): b_dma(step)
    S.wait(vm='wphi')
    for i in range(4):
        S.I(f'v_lshl_or_b32 {v(168+i)}, {v(181+2*i)}, 16, {v(180+2*i)}')
    for i in range(4):
        S.I(f'v_cndmask_b32 {v(WA+i)}, 0, {v(168+i)}, s[{sMASK}:{sMASK+1}]')
        S.I(f'v_cndmask_b32 {v(WB+i)}, {v(168+i)}, 0, s[{sMASK}:{sMASK+1}]')
    poll(S, vFL, vFLa, RWS, TAG, 'pollH')
    S.bg = [(lambda s=s: h_load(s)) for s in range(16)]
    S.bg_every = opt.get('bg_every', 24)
    KB = 128; P = 136; E = 152; T = 184; PHI = 192; DT_ = 208
    cvt8(S, KB, AK)
    S.I(f'{MF} {v(P,16)}, {v(WA,4)}, {v(KB,4)}, 0')
    S.I(f'{MF} {v(P,16)}, {v(WB,4)}, {v(KB+4,4)}, {v(P,16)}')
    VBF = 32; VA = 40; VB = 48
    cvt8(S, VBF, AV)
    for i in range(8):
        S.I(f'v_cndmask_b32 {v(VA+i)}, 0, {v(VBF+i)}, s[{sMASK}:{sMASK+1}]')
        S.I(f'v_cndmask_b32 {v(VB+i)}, {v(VBF+i)}, 0, s[{sMASK}:{sMASK+1}]')
    softmax_pm(S, P, E, T, PHI, sC)
    DA, DB = E, E + 16
    S.I(f'{MF} {v(DA,16)}, {v(PHI,4)}, {v(IP,4)}, 0')
    S.I(f'{MF} {v(DB,16)}, {v(PHI+8,4)}, {v(IP,4)}, 0')
    S.I(f'{MF} {v(DA,16)}, {v(PHI+4,4)}, {v(IM,4)}, {v(DA,16)}')
    S.I(f'{MF} {v(DB,16)}, {v(PHI+12,4)}, {v(IM,4)}, {v(DB,16)}')
    cvt8(S, KB, AQ)
    S.I(f'{MF} {v(P,16)}, {v(WA,4)}, {v(KB,4)}, 0')
    S.I(f'{MF} {v(P,16)}, {v(WB,4)}, {v(KB+4,4)}, {v(P,16)}')
    PT = 208
    cvt8(S, PT, DA); cvt8(S, PT+8, DB)
    E1 = AK
    S.I(f'{MF} {v(E1,16)}, {v(PT,4)}, {v(VA,4)}, 0')
    S.I(f'{MF} {v(E1,16)}, {v(PT+4,4)}, {v(VA+4,4)}, {v(E1,16)}')
    S.I(f'{MF} {v(E1,16)}, {v(PT+8,4)}, {v(VB,4)}, {v(E1,16)}')
    S.I(f'{MF} {v(E1,16)}, {v(PT+12,4)}, {v(VB+4,4)}, {v(E1,16)}')
    zA, zB = T, T+1
    S.I(f'v_add_f32 {v(zA)}, {v(DA)}, {v(DA+1)}\nv_add_f32 {v(zB)}, {v(DB)}, {v(DB+1)}')
    for i in range(2, 16):
        S.I(f'v_add_f32 {v(zA)}, {v(zA)}, {v(DA+i)}\nv_add_f32 {v(zB)}, {v(zB)}, {v(DB+i)}')
    S.I(f'v_permlane32_swap_b32 {v(zA)}, {v(zB)}')
    S.I(f'v_add_f32 {v(zA)}, {v(zA)}, {v(zB)}')
    S.I(f's_and_b32 s3, s{sWAVE}, 1\ns_lshl_b32 s4, s{sQUAD}, 1\ns_add_u32 s3, s3, s4\ns_lshl_b32 s3, s3, 5\ns_add_u32 s3, s3, s{sSBLK}')
    S.I(f's_lshr_b32 s5, s{sWAVE}, 1')
    S.I(f's_lshl_b32 s4, s3, 1\ns_add_u32 s4, s4, s5\ns_lshl_b32 s4, s4, 3\ns_add_u32 s69, s4, {FKV}')
    S.I(f's_mul_i32 s3, s3, {KVB}\ns_add_u32 s68, s3, {KVP}')
    S.I('v_bfe_u32 v6, v1, 3, 2\nv_mul_u32_u24 v6, 1152, v6\nv_and_b32 v7, 7, v1\nv_lshl_add_u32 v6, v7, 2, v6\nv_lshl_add_u32 v6, v9, 5, v6')
    S.I('s_lshl_b32 s4, s5, 6\ns_add_u32 s4, s4, 1024\nv_add_u32 v6, s4, v6')
    S.I(f'buffer_store_dword {v(zA)}, v6, s[{RWS}:{RWS+3}], s68 offen sc1', tag='kvst')
    KP, SD = 224, 96
    S.I('s_cmp_eq_u32 s5, 0\ns_cselect_b64 s[72:73], -1, 0')
    for i in range(8):
        S.I(f'v_cndmask_b32 {v(KP+i)}, {v(E1+8+i)}, {v(E1+i)}, s[72:73]')
        S.I(f'v_cndmask_b32 {v(SD+i)}, {v(E1+i)}, {v(E1+8+i)}, s[72:73]')
    S.I(f's_xor_b32 s3, s{sWAVE}, 2\ns_lshl_b32 s3, s3, 11\ns_add_u32 s3, s3, {LDS_KVX}\nv_add_u32 v6, s3, v5')
    S.I(f'ds_write_b128 v6, {v(SD,4)}', tag='kvx')
    S.I(f'ds_write_b128 v6, {v(SD+4,4)} offset:1024', tag='kvx')
    S.I(f's_lshl_b32 s3, s{sWAVE}, 11\ns_add_u32 s3, s3, {LDS_KVX}\nv_add_u32 v6, s3, v5')
    S.wait(lg='kvx')
    S.I('s_barrier')
    S.I(f'ds_read_b128 {v(SD,4)}, v6', tag='kvr')
    S.I(f'ds_read_b128 {v(SD+4,4)}, v6 offset:1024', tag='kvr')
    S.I(f's_mul_i32 s3, s5, {2*1152}\ns_add_u32 s68, s68, s3')
    S.wait(lg='kvr')
    for i in range(8): S.I(f'v_add_f32 {v(KP+i)}, {v(KP+i)}, {v(SD+i)}')
    S.I(f'buffer_store_dwordx4 {v(KP,4)}, v5, s[{RWS}:{RWS+3}], s68 offen sc1', tag='kvst')
    S.I(f'buffer_store_dwordx4 {v(KP+4,4)}, v5, s[{RWS}:{RWS+3}], s68 offen offset:1152 sc1', tag='kvst')
    softmax_pm(S, P, E, T, PHIQ, sC)
    S.run_bg()
    S.bg_every = 0
    S.wait(vm='kvst')
    set_flag(S, RWS, 69, TAG, 2)
    S.I(f's_lshl_b32 s3, s{sFT}, 7\ns_lshr_b32 s4, s{sWAVE}, 1\ns_lshl_b32 s4, s4, 6\ns_add_u32 s3, s3, s4')
    S.I(f's_cmp_ge_u32 s{sIDX}, 28\ns_cbranch_scc1 L_reducer')
    vm_at_branch = list(S.vm)
    S.I('v_lshlrev_b32 v6, 3, v9\nv_add_u32 v6, s3, v6')
    B1R = 48
    for q in range(4):
        S.I(f'global_load_dwordx2 {v(B1R+2*q,2)}, v6, s[{PB1}:{PB1+1}] offset:{16*q}', tag='b1')

    ACC = 64; AF = 32
    def b_reads(i):
        p = i & 15
        hi = p >> 3
        so = ((p >> 2) & 1) * 32768 + (p & 3) * 2048
        b = i & 1
        S.wait(vm=f'B{i}')
        for fr in range(2):
            for t in range(2):
                S.I(f'ds_read_b64_tr_b16 {v(AF+8*b+4*fr+2*t,2)}, {v(vBr+2*hi+fr)} offset:{so+t*512}', tag=f'R{i}')
    def b_mfma(i):
        p = i & 15; b = i & 1
        S.wait(vm=f'H{i}', lg=f'R{i}')
        for i1 in range(2):
            for i0 in range(2):
                c = v(ACC+16*(2*i1+i0), 16)
                S.I(f'{MF} {c}, {v(AF+8*b+4*i1,4)}, {a_(8*p+4*i0,4)}, {c if i else 0}')
        if i + 16 < 32:
            b_dma(i + 16); h_load(i + 16)
    for i in range(32):
        b_reads(i)
        if i > 0: b_mfma(i - 1)
        if i == 24:
            o_poll_issue(S)
    b_mfma(31)
    S.I('s_barrier')
    lab = S.newlabel('L_noE')
    S.I(f's_lshl_b32 s3, s2, 2\ns_add_u32 s3, s3, s{sWAVE}\ns_cmp_lg_u32 s3, 0\ns_cbranch_scc1 {lab}')
    S.I('s_mov_b32 s3, 0')
    sv = list(S.vm)
    set_flag(S, RWS, 3, TAG, 2)
    S.vm = sv
    S.label(lab)
    exchange(S, ACC)
    S.wait(vm='b1')
    Bf = 128
    for q in range(4):
        for h2 in range(2):
            S.I(f'v_lshlrev_b32 {v(Bf+4*q+2*h2)}, 16, {v(B1R+2*q+h2)}\nv_and_b32 {v(Bf+4*q+2*h2+1)}, 0xffff0000, {v(B1R+2*q+h2)}')
    exchange_sum(S, ACC)
    import math
    k0 = 2 * math.sqrt(2 / math.pi) * math.log2(math.e); k1 = k0 * 0.044715
    S.I(f's_mov_b32 s4, {f2u(-k1):#x}\nv_mov_b32 v2, {f2u(-k0):#x}')
    Tm = 144
    for r in range(16): S.I(f'v_add_f32 {v(ACC+r)}, {v(ACC+r)}, {v(Bf+r)}')
    for r in range(16): S.I(f'v_mul_f32 {v(Tm+r)}, {v(ACC+r)}, {v(ACC+r)}')
    for r in range(16): S.I(f'v_fma_f32 {v(Tm+r)}, {v(Tm+r)}, s4, v2')
    for r in range(16): S.I(f'v_mul_f32 {v(Tm+r)}, {v(Tm+r)}, {v(ACC+r)}')
    for r in range(16): S.I(f'v_exp_f32 {v(Tm+r)}, {v(Tm+r)}')
    for r in range(16): S.I(f'v_add_f32 {v(Tm+r)}, 1.0, {v(Tm+r)}')
    for r in range(16): S.I(f'v_rcp_f32 {v(Tm+r)}, {v(Tm+r)}')
    for r in range(16): S.I(f'v_mul_f32 {v(ACC+r)}, {v(ACC+r)}, {v(Tm+r)}')
    cvt8(S, Bf, ACC)
    S.I(f's_lshl_b32 s3, s{sFT}, 16\ns_lshr_b32 s4, s{sWAVE}, 1\ns_lshl_b32 s4, s4, 15\ns_add_u32 s3, s3, s4\ns_lshl_b32 s4, s{sDT}, 11\ns_add_u32 s3, s3, s4')
    S.I(f's_and_b32 s4, s{sWAVE}, 1\ns_lshl_b32 s4, s4, 10\ns_add_u32 s3, s3, s4\ns_add_u32 s3, s3, {UF}\ns_add_u32 s4, s3, 16384')
    S.I(f'buffer_store_dwordx4 {v(Bf,4)}, v5, s[{RWS}:{RWS+3}], s3 offen', tag='ust')
    S.I(f'buffer_store_dwordx4 {v(Bf+4,4)}, v5, s[{RWS}:{RWS+3}], s4 offen', tag='ust')
    S.I('s_branch L_ostep')

    S.label('L_reducer')
    S.hist = []
    S.vm = vm_at_branch
    sHD = 76
    S.I(f's_lshl_b32 s{sHD}, s{sXCD}, 2\ns_add_u32 s{sHD}, s{sHD}, s{sIDX}\ns_sub_u32 s{sHD}, s{sHD}, 28')
    S.I(f's_lshr_b32 s3, s{sHD}, 1\ns_lshl_b32 s4, s3, 9\ns_add_u32 s4, s4, {FKV}')
    S.I(f'v_lshlrev_b32 {v(vFLa)}, 3, v1\nv_add_u32 {v(vFLa)}, s4, {v(vFLa)}')
    S.I(f'buffer_load_dwordx2 {v(vFL,2)}, {v(vFLa)}, s[{RWS}:{RWS+3}], 0 offen sc1', tag='pollKV')
    S.I(f's_and_b32 s5, s{sHD}, 1')
    S.I('v_and_b32 v6, 15, v1\nv_lshl_add_u32 v6, v9, 5, v6\nv_lshlrev_b32 v6, 4, v6\ns_lshl_b32 s4, s5, 8\nv_add_u32 v6, s4, v6')
    S.I('v_bfe_u32 v7, v1, 3, 1\nv_lshlrev_b32 v7, 6, v7\nv_lshl_add_u32 v7, v9, 4, v7\ns_lshl_b32 s4, s5, 5\ns_add_u32 s4, s4, 1024\nv_add_u32 v7, s4, v7')
    S.I(f'v_cndmask_b32 v6, v7, v6, s[{sMASK}:{sMASK+1}]')
    S.I(f's_lshl_b32 s3, s3, 5\ns_lshl_b32 s4, s{sWAVE}, 3\ns_add_u32 s3, s3, s4\ns_mul_i32 s3, s3, {KVB}\ns_add_u32 s68, s3, {KVP}')
    poll(S, vFL, vFLa, RWS, TAG, 'pollKV')
    RB = 64
    for sb in range(8):
        for q in range(4):
            S.I(f'buffer_load_dwordx4 {v(RB+16*sb+4*q,4)}, v6, s[{RWS}:{RWS+3}], s68 offen offset:{q*1152} sc1', tag=f'P{sb}')
        S.I(f's_add_u32 s68, s68, {KVB}')
    for sb in range(1, 8):
        S.wait(vm=f'P{sb}')
        for r in range(16): S.I(f'v_add_f32 {v(RB+r)}, {v(RB+r)}, {v(RB+16*sb+r)}')
    S.wait(vm='all')
    S.I('s_barrier')
    S.I(f's_lshl_b32 s3, s{sWAVE}, 12\nv_add_u32 v6, s3, v5')
    for q in range(4): S.I(f'ds_write_b128 v6, {v(RB+4*q,4)} offset:{q*1024}', tag='rw')
    S.wait(lg='rw')
    S.I('s_barrier')
    S.I(f's_cmp_ge_u32 s{sWAVE}, 2\ns_cbranch_scc1 L_red_done')
    S.I(f's_lshl_b32 s3, s{sWAVE}, 11\nv_add_u32 v6, s3, v5')
    for src in range(4):
        for q2 in range(2):
            S.I(f'ds_read_b128 {v(RB+8*src+4*q2,4)}, v6 offset:{src*4096+q2*1024}', tag='rr')
    S.wait(lg='rr')
    for src in range(1, 4):
        for r in range(8): S.I(f'v_add_f32 {v(RB+r)}, {v(RB+r)}, {v(RB+8*src+r)}')
    for r in range(8):
        S.I(f'v_add_f32_dpp {v(RB+r)}, {v(RB+r)}, {v(RB+r)} row_ror:8 row_mask:0xa bank_mask:0xf')
    cvt8(S, RB+8, RB, 4)
    S.I(f's_lshl_b32 s3, s{sHD}, 1\ns_add_u32 s3, s3, s{sWAVE}\ns_lshl_b32 s4, s3, 10\ns_add_u32 s4, s4, {KVF}\ns_lshl_b32 s3, s3, 3\ns_add_u32 s69, s3, {FR}')
    S.I(f'buffer_store_dwordx4 {v(RB+8,4)}, v5, s[{RWS}:{RWS+3}], s4 offen sc1', tag='kvf')
    S.wait(vm='kvf')
    set_flag(S, RWS, 69, TAG, 2)
    S.label('L_red_done')
    S.hist = []
    S.vm = []
    S.raw('    s_waitcnt vmcnt(0)')
    o_poll_issue(S)

    S.label('L_ostep')
    S.hist = []
    S.vm = ['pollO']
    S.raw('    s_waitcnt vmcnt(0)')
    S.vm = []
    poll(S, 236, 238, RWS, TAG, None)
    S.I(f's_and_b32 s3, s{sWAVE}, 1\ns_lshl_b32 s3, s3, 1\ns_lshl_b32 s4, s{sQUAD}, 2\ns_add_u32 s5, s3, s4\ns_lshl_b32 s3, s5, 11\ns_add_u32 s3, s3, {KVF}')
    for i in range(4):
        S.I(f'buffer_load_dwordx4 {v(32+4*i,4)}, v5, s[{RWS}:{RWS+3}], s3 offen offset:{i*1024} sc1', tag='kvf')
    S.I(f's_lshl_b32 s3, s{sSBLK}, 1\ns_lshr_b32 s4, s{sWAVE}, 1\ns_add_u32 s6, s3, s4\ns_lshl_b32 s3, s6, 7\ns_add_u32 s3, s3, {G_}')
    S.I('v_and_b32 v6, 31, v1\nv_lshlrev_b32 v6, 2, v6')
    S.I(f'buffer_load_dword v7, v6, s[{RWS}:{RWS+3}], s3 offen sc1', tag='kvf')
    S.I(f's_lshl_b32 s3, s5, 16\ns_lshl_b32 s4, s6, 10\ns_add_u32 s3, s3, s4\ns_add_u32 s3, s3, {OF}\ns_add_u32 s4, s3, 65536')
    S.wait(vm='kvf')
    for hb in range(2):
        O = 64 + 16*hb
        S.I(f'{MF} {v(O,16)}, {v(32+8*hb,4)}, {v(PHIQ+8*hb,4)}, 0')
        S.I(f'{MF} {v(O,16)}, {v(36+8*hb,4)}, {v(PHIQ+8*hb+4,4)}, {v(O,16)}')
    for hb in range(2):
        O = 64 + 16*hb
        S.I(f'v_add_f32 {v(O+8)}, {f2u(1e-6):#x}, {v(O+8)}\nv_rcp_f32 {v(O+8)}, {v(O+8)}\nv_mul_f32 {v(O+8)}, v7, {v(O+8)}')
        for r in range(8): S.I(f'v_mul_f32 {v(O+r)}, {v(O+8)}, {v(O+r)}')
        cvt8(S, O+12, O, 4)
        S.I(f'buffer_store_dwordx4 {v(O+12,4)}, v5, s[{RWS}:{RWS+3}], s{3+hb} offen', tag='ost')
    S.label('L_end1')
    S.I('s_endpgm')

def o_poll_issue(S):
    S.I(f's_lshl_b32 s3, s{sSBLK}, 6\ns_add_u32 s3, s3, {FH}')
    S.I('v_bfe_u32 v6, v1, 3, 2\nv_lshlrev_b32 v6, 11, v6\nv_and_b32 v7, 7, v1\nv_lshl_add_u32 v6, v7, 3, v6\nv_add_u32 v6, s3, v6')
    S.I(f's_and_b32 s3, s{sWAVE}, 1\ns_lshl_b32 s3, s3, 5\ns_lshl_b32 s4, s{sQUAD}, 6\ns_add_u32 s3, s3, s4\ns_add_u32 s3, s3, {FR}')
    S.I('v_and_b32 v7, 3, v1\nv_lshlrev_b32 v7, 3, v7\nv_add_u32 v7, s3, v7')
    S.I('v_cmp_gt_u32 vcc, 32, v1\nv_cndmask_b32 v238, v7, v6, vcc')
    S.I(f'buffer_load_dwordx2 v[236:237], v238, s[{RWS}:{RWS+3}], 0 offen sc1', tag='pollO')

def exchange(S, ACC):
    for i in range(1, 4):
        S.I(f's_xor_b32 s3, s{sWAVE}, {i}\ns_mul_i32 s3, s3, 12288\ns_add_u32 s3, s3, {(i-1)*4096}\nv_add_u32 v6, s3, v5')
        for q in range(4):
            S.I(f'ds_write_b128 v6, {v(ACC+16*i+4*q,4)} offset:{q*1024}', tag='xw')
    S.I(f's_mul_i32 s3, s{sWAVE}, 12288\nv_add_u32 v7, s3, v5')
    S.wait(lg='xw')
    S.I('s_barrier')
    for i in range(1, 4):
        for q in range(4):
            S.I(f'ds_read_b128 {v(ACC+16*i+4*q,4)}, v7 offset:{(i-1)*4096+q*1024}', tag=f'xr{i}')

def exchange_sum(S, ACC):
    for i in range(1, 4):
        S.wait(lg=f'xr{i}')
        for r in range(16): S.I(f'v_add_f32 {v(ACC+r)}, {v(ACC+r)}, {v(ACC+16*i+r)}')

def gen_k2(S, opt):
    RWO, RW2, ROUT = 8, 12, 20
    sST = 25
    sY, sU, sO_, sWo = 30, 31, 32, 33
    vW2a, vW2b, vWoa, vWob = 10, 11, 12, 13
    vTy, vTa = 14, 18
    vDy0, vDy1, vDa0, vDa1 = 22, 23, 24, 25
    S.I('s_cmp_ge_u32 s2, 256\ns_cbranch_scc1 L_end2')
    load_kernargs(S)
    lane_parts(S)
    S.I(f's_and_b32 s{sXCD}, s2, 7\ns_lshr_b32 s{sIDX}, s2, 3')
    S.I(f's_and_b32 s3, s{sXCD}, 1\ns_lshl_b32 s3, s3, 2\ns_and_b32 s4, s{sIDX}, 3\ns_add_u32 s{sDT}, s3, s4')
    S.I(f's_lshr_b32 s3, s{sXCD}, 1\ns_lshl_b32 s3, s3, 3\ns_lshr_b32 s4, s{sIDX}, 2\ns_add_u32 s{sST}, s3, s4')
    S.I('v_lshlrev_b32 v5, 4, v1')
    S.I('v_and_b32 v6, 1, v4\nv_lshlrev_b32 v6, 2, v6\nv_xor_b32 v6, v3, v6\nv_lshlrev_b32 v6, 4, v6')
    S.I(f'v_lshl_add_u32 {v(vW2a)}, v2, 12, v6\nv_add_u32 {v(vW2b)}, {8*4096-1024}, {v(vW2a)}')
    S.I(f'v_lshl_add_u32 {v(vWoa)}, v2, 10, v6\nv_add_u32 {v(vWob)}, {8*1024-1024}, {v(vWoa)}')
    S.I(f's_mul_i32 s{sY}, s{sWAVE}, {28*16*4096}\ns_lshl_b32 s3, s{sST}, 7\ns_add_u32 s{sY}, s{sY}, s3')
    S.I(f's_mul_i32 s{sU}, s{sWAVE}, {28*16384}\ns_lshl_b32 s3, s{sDT}, 11\ns_add_u32 s{sU}, s{sU}, s3\ns_add_u32 s{sU}, s{sU}, {UF}')
    S.I(f's_lshl_b32 s{sWo}, s{sWAVE}, 17\ns_lshl_b32 s3, s{sDT}, 7\ns_add_u32 s{sWo}, s{sWo}, s3')
    S.I(f's_lshl_b32 s{sO_}, s{sWAVE}, 19\ns_lshl_b32 s3, s{sST}, 11\ns_add_u32 s{sO_}, s{sO_}, s3\ns_add_u32 s{sO_}, s{sO_}, {OF}')
    S.I(f's_lshl_b32 s{sMB}, s{sWAVE}, 13')
    S.I(f's_lshr_b32 s3, s{sWAVE}, 1\ns_lshl_b32 s3, s3, 10\nv_add_u32 {v(vDy0)}, s3, v5\nv_xor_b32 {v(vDy1)}, 0x400, {v(vDy0)}')
    S.I('s_waitcnt lgkmcnt(0)')
    srd(S, RW2, PW2, 1792*4096)
    srd(S, RWS, PWS, WS_SIZE)
    NS = 36
    def dma(i):
        p = i & 15
        S.I(f's_add_u32 m0, s{sMB}, {(p>>2)*32768 + (p&3)*2048}')
        if i < 28:
            S.I(f'buffer_load_dwordx4 {v(vW2a)}, s[{RW2}:{RW2+3}], s{sY} offen lds', tag=f'B{i}')
            S.I(f'buffer_load_dwordx4 {v(vW2b)}, s[{RW2}:{RW2+3}], s{sY} offen offset:1024 lds', tag=f'B{i}')
            S.I(f's_add_u32 s{sY}, s{sY}, {16*4096}')
        else:
            S.I(f'buffer_load_dwordx4 {v(vWoa)}, s[{RWO}:{RWO+3}], s{sWo} offen lds', tag=f'B{i}')
            S.I(f'buffer_load_dwordx4 {v(vWob)}, s[{RWO}:{RWO+3}], s{sWo} offen offset:1024 lds', tag=f'B{i}')
            S.I(f's_add_u32 s{sWo}, s{sWo}, {16*1024}')
    def direct(i):
        p = i & 15
        if i < 28:
            S.I(f'buffer_load_dwordx4 {a_(8*p,4)}, {v(vDy0)}, s[{RWS}:{RWS+3}], s{sU} offen', tag=f'H{i}')
            S.I(f'buffer_load_dwordx4 {a_(8*p+4,4)}, {v(vDy1)}, s[{RWS}:{RWS+3}], s{sU} offen', tag=f'H{i}')
            S.I(f's_add_u32 s{sU}, s{sU}, 16384')
        else:
            S.I(f'buffer_load_dwordx4 {a_(8*p,4)}, {v(vDa0)}, s[{RWS}:{RWS+3}], s{sO_} offen', tag=f'H{i}')
            S.I(f'buffer_load_dwordx4 {a_(8*p+4,4)}, {v(vDa1)}, s[{RWS}:{RWS+3}], s{sO_} offen', tag=f'H{i}')
            S.I(f's_add_u32 s{sO_}, s{sO_}, 65536')
    PD = opt.get('c_depth', 12)
    for i in range(PD):
        dma(i); direct(i)
    if opt.get('codepf', True):
        S.I('s_getpc_b64 s[66:67]')
        S.I(f's_and_b32 s3, s{sIDX}, 1\ns_lshl_b32 s3, s3, 12')
        S.I('v_lshlrev_b32 v6, 4, v0\nv_add_u32 v6, s3, v6')
        S.I('global_load_dwordx4 v[232:235], v6, s[66:67]', tag='cpf')
    srd(S, RWO, PWO, 512*1024)
    srd(S, ROUT, POUT, 2048*1024)
    S.I(f's_and_b32 s3, s{sWAVE}, 1\ns_lshl_b32 s3, s3, 10\nv_add_u32 {v(vDa0)}, s3, v5\nv_xor_b32 {v(vDa1)}, 0x400, {v(vDa0)}')
    S.I('v_lshrrev_b32 v9, 5, v1')
    S.I('v_bfe_u32 v6, v1, 2, 2\nv_lshlrev_b32 v6, 7, v6')
    S.I('v_bfe_u32 v7, v1, 4, 1\nv_lshl_add_u32 v6, v7, 5, v6')
    S.I('v_and_b32 v7, 3, v1\nv_lshl_add_u32 v6, v7, 3, v6')
    S.I('v_bfe_u32 v7, v1, 3, 1\nv_lshl_add_u32 v6, v7, 6, v6')
    S.I(f'v_lshl_add_u32 v6, v9, 9, v6\nv_add_u32 v6, s{sMB}, v6')
    S.I(f's_and_b32 s3, s{sWAVE}, 1\ns_lshl_b32 s3, s3, 6\nv_xor_b32 {v(vTy)}, s3, v6')
    S.I(f's_lshr_b32 s3, s{sWAVE}, 1\ns_lshl_b32 s3, s3, 6\nv_xor_b32 {v(vTa)}, s3, v6')
    for b in (vTy, vTa):
        S.I(f'v_xor_b32 {v(b+1)}, 64, {v(b)}\nv_add_u32 {v(b+2)}, 0x10000, {v(b)}\nv_add_u32 {v(b+3)}, 0x10000, {v(b+1)}')
    S.I(f's_lshl_b32 s3, s{sST}, 8\ns_add_u32 s3, s3, {G_}')
    S.I(f's_and_b32 s4, s{sWAVE}, 1\ns_lshl_b32 s4, s4, 7\nv_and_b32 v6, 31, v1\nv_lshlrev_b32 v6, 2, v6\nv_add_u32 v6, s4, v6\nv_xor_b32 v7, 0x80, v6')
    S.I(f'buffer_load_dword v26, v6, s[{RWS}:{RWS+3}], s3 offen', tag='g')
    S.I(f'buffer_load_dword v27, v7, s[{RWS}:{RWS+3}], s3 offen', tag='g')
    S.I(f's_lshl_b32 s3, s{sST}, 7\nv_lshrrev_b32 v6, 1, v6\nv_add_u32 v6, s3, v6')
    S.I(f'global_load_ushort v28, v6, s[{PB2}:{PB2+1}]', tag='g')
    ACC = 64; AF = 32
    def reads(i):
        p = i & 15
        hi = p >> 3
        so = ((p >> 2) & 1) * 32768 + (p & 3) * 2048
        b = i & 1
        base = vTy if i < 28 else vTa
        S.wait(vm=f'B{i}')
        for fr in range(2):
            for t in range(2):
                S.I(f'ds_read_b64_tr_b16 {v(AF+8*b+4*fr+2*t,2)}, {v(base+2*hi+fr)} offset:{so+t*1024}', tag=f'R{i}')
    def mfma(i):
        p = i & 15; b = i & 1
        S.wait(vm=f'H{i}', lg=f'R{i}')
        for i1 in range(2):
            for i0 in range(2):
                c = v(ACC+16*(2*i1+i0), 16)
                if i < 28:
                    S.I(f'{MF} {c}, {a_(8*p+4*i1,4)}, {v(AF+8*b+4*i0,4)}, {c if i else 0}')
                else:
                    S.I(f'{MF} {c}, {v(AF+8*b+4*i1,4)}, {a_(8*p+4*i0,4)}, {c}')
        if i + PD < NS:
            dma(i + PD); direct(i + PD)
        if i == 27:
            S.wait(vm='g')
            S.I('v_sub_f32 v26, 1.0, v26\nv_sub_f32 v27, 1.0, v27\nv_lshlrev_b32 v28, 16, v28\nv_mul_f32 v28, v26, v28')
            for t in range(4):
                for r in range(16):
                    S.I(f'v_mul_f32 {v(ACC+16*t+r)}, {v(26+(t&1))}, {v(ACC+16*t+r)}')
    for i in range(NS):
        reads(i)
        if i > 0: mfma(i - 1)
    mfma(NS - 1)
    S.I('s_barrier')
    exchange(S, ACC)
    S.I(f's_lshl_b32 s3, s{sST}, 16\ns_and_b32 s4, s{sWAVE}, 1\ns_lshl_b32 s4, s4, 15\ns_add_u32 s3, s3, s4\ns_lshl_b32 s4, s{sDT}, 7\ns_add_u32 s3, s3, s4\ns_lshr_b32 s4, s{sWAVE}, 1\ns_lshl_b32 s4, s4, 6\ns_add_u32 s3, s3, s4')
    S.I('v_and_b32 v6, 31, v1\nv_lshlrev_b32 v6, 10, v6\nv_lshl_add_u32 v6, v9, 4, v6')
    for r in range(16): S.I(f'v_add_f32 {v(ACC+r)}, {v(ACC+r)}, v28')
    exchange_sum(S, ACC)
    cvt8(S, 32, ACC)
    for qp in range(2):
        b = 32 + 4*qp
        S.I(f'v_permlane32_swap_b32 {v(b)}, {v(b+2)}')
        S.I(f'v_permlane32_swap_b32 {v(b+1)}, {v(b+3)}')
        S.I(f'buffer_store_dwordx4 {v(b,4)}, v6, s[{ROUT}:{ROUT+3}], s3 offen offset:{32*qp}', tag='out')
    S.label('L_end2')
    S.I('s_endpgm')

def kd(name, nv, acc):
    return f'''.p2align 6
.amdhsa_kernel {name}
  .amdhsa_next_free_vgpr {nv}
  .amdhsa_next_free_sgpr 102
  .amdhsa_accum_offset {acc}
  .amdhsa_group_segment_fixed_size 0
  .amdhsa_kernarg_size 104
  .amdhsa_user_sgpr_count 2
  .amdhsa_user_sgpr_kernarg_segment_ptr 1
  .amdhsa_system_sgpr_workgroup_id_x 1
.end_amdhsa_kernel
'''

def build(opt):
    hdr = open(f'cdna_kernels/{NAME}.s.ref').read().split('\n')
    top = [l for l in hdr if l.startswith(';') and '@launch' not in l and 'Override launch' not in l and 'grid=ceil' not in l]
    out = '\n'.join(top) + '\n'
    out += f'; @launch kernel=gm_k1_kernel grid=(256,1,1) block=(256,1,1) lds={LDS_TOTAL}\n'
    out += f'; @launch kernel=gm_k2_kernel grid=(256,1,1) block=(256,1,1) lds=131072\n'
    out += '.amdgcn_target "amdgcn-amd-amdhsa--gfx950"\n.text\n'
    for name, g in (('gm_k1_kernel', gen_k1), ('gm_k2_kernel', gen_k2)):
        S = Stream()
        S.lab = 0 if name.endswith('k1_kernel') else 1000
        g(S, opt)
        out += f'.globl {name}\n.p2align 8\n.type {name},@function\n{name}:\n' + S.text()
        print(name, 'lines', len(S.out), 'nops', S.nnop, file=sys.stderr)
    out += '.p2align 8\n.fill 8192, 4, 0xbf800000\n'
    out += '.section .rodata,"a"\n'
    out += kd('gm_k1_kernel', 384, 256) + kd('gm_k2_kernel', 384, 256)
    return out

if __name__ == '__main__':
    opt = {}
    for a in sys.argv[2:]:
        k, x = a.split('=')
        opt[k] = int(x)
    open(sys.argv[1], 'w').write(build(opt))
```

```python
import re

REG_RE = re.compile(r'^(-|\|)?(abs\()?([vas])(\d+)\)?\|?$')
RNG_RE = re.compile(r'^(-|\|)?([vas])\[(\d+):(\d+)\]\|?$')

def regs_of(tok):
    tok = tok.strip()
    m = REG_RE.match(tok)
    if m:
        return [(m.group(3), int(m.group(4)))]
    m = RNG_RE.match(tok)
    if m:
        return [(m.group(2), i) for i in range(int(m.group(3)), int(m.group(4)) + 1)]
    if tok == 'vcc':
        return [('vcc', 0)]
    if tok == 'exec':
        return [('exec', 0)]
    if tok == 'm0':
        return [('m0', 0)]
    return []

TRANS = ('v_exp_f32', 'v_log_f32', 'v_rcp_f32', 'v_rsq_f32', 'v_sqrt_f32', 'v_sin_f32', 'v_cos_f32')

class Ins:
    __slots__ = ('text', 'op', 'cls', 'dst', 'src', 'srcC', 'srcAB', 'passes', 'trans', 'dpp', 'perm', 'wide_store', 'ws', 'ldsdma', 'lanerd')

PKMOD = re.compile(r'\s(op_sel|op_sel_hi|neg_lo|neg_hi):\[[^\]]*\]')
def parse(text):
    ins = Ins()
    ins.text = text
    t = PKMOD.sub('', text.split(';')[0].strip())
    parts = t.split(None, 1)
    op = parts[0]
    rest = parts[1] if len(parts) > 1 else ''
    ops = [o.strip() for o in rest.split(',')] if rest else []
    mods = ''
    if ops:
        last = ops[-1].split(None, 1)
        ops[-1] = last[0]
        mods = last[1] if len(last) > 1 else ''
    ins.op = op
    ins.dst = []; ins.src = []; ins.srcC = []; ins.srcAB = []
    ins.passes = 0; ins.trans = False; ins.dpp = False; ins.perm = False; ins.wide_store = False
    ins.ldsdma = False; ins.lanerd = False
    ins.ws = 1
    R = [regs_of(o) for o in ops]
    flat = lambda L: [r for x in L for r in x]
    if op.startswith('v_mfma'):
        ins.cls = 'mfma'
        ins.dst = R[0]; ins.srcAB = R[1] + R[2]; ins.srcC = R[3]; ins.src = ins.srcAB + ins.srcC
        ins.passes = 8 if '32x32x16' in op else 4
        assert '32x32x16' in op or '16x16x32' in op or '16x16x16' in op, op
    elif op.startswith('v_'):
        ins.cls = 'valu'
        base = op.replace('_e32', '').replace('_e64', '').replace('_dpp', '')
        ins.trans = base in TRANS
        ins.dpp = ('row_' in mods) or ('quad_perm' in mods) or op.endswith('_dpp')
        if base.startswith('v_permlane'):
            ins.perm = True
            ins.dst = R[0] + R[1]; ins.src = R[0] + R[1]
        elif base.startswith('v_cmp'):
            ins.dst = R[0]; ins.src = flat(R[1:])
        elif base in ('v_readfirstlane_b32', 'v_readlane_b32'):
            ins.lanerd = True
            ins.dst = R[0]; ins.src = flat(R[1:])
        elif base in ('v_fmac_f32', 'v_pk_fmac_f32'):
            ins.dst = R[0]; ins.src = flat(R)
        elif base == 'v_cndmask_b32':
            ins.dst = R[0]; ins.src = flat(R[1:])
            if len(R) == 3: ins.src += [('vcc', 0)]
        elif base == 'v_writelane_b32':
            ins.dst = R[0]; ins.src = flat(R)
        elif base == 'v_nop':
            pass
        else:
            assert '_co_' not in base, op
            ins.dst = R[0]; ins.src = flat(R[1:])
            if ins.dpp: ins.src += R[0]
    elif op.startswith('buffer_') or op.startswith('global_'):
        ins.cls = 'vmem'
        words = mods.split()
        if 'lds' in words:
            ins.ldsdma = True
            ins.src = flat(R) + [('m0', 0)]
        elif '_load' in op:
            ins.dst = R[0]; ins.src = flat(R[1:])
            if 'd16' in op: ins.src += R[0]
        else:
            ins.src = flat(R)
            if op.endswith('x4') or op.endswith('x3'):
                ins.wide_store = True
                ins.srcAB = R[0] if op.startswith('buffer_') else R[1]
    elif op.startswith('ds_'):
        ins.cls = 'ds'
        if 'read' in op:
            ins.dst = R[0]; ins.src = flat(R[1:])
        else:
            ins.src = flat(R)
    elif op.startswith('s_load') or op.startswith('s_memtime') or op.startswith('s_memrealtime'):
        ins.cls = 'smem'
        ins.dst = R[0]; ins.src = flat(R[1:])
    elif op == 's_nop':
        ins.cls = 'nop'; ins.ws = int(ops[0], 0) + 1
    elif op.startswith('s_'):
        ins.cls = 'salu'
        if not (op.startswith('s_cmp') or op.startswith('s_cbranch') or op in ('s_branch', 's_barrier', 's_waitcnt', 's_endpgm', 's_sleep', 's_setprio', 's_bitcmp1_b32', 's_bitcmp0_b32')):
            ins.dst = R[0]; ins.src = flat(R[1:])
            if 'saveexec' in op: ins.dst = ins.dst + [('exec', 0)]
        else:
            ins.src = flat(R)
    else:
        raise ValueError(text)
    return ins

def need(p, c):
    n = 0
    pd = set(p.dst)
    if p.cls == 'valu':
        vd = {r for r in pd if r[0] in 'va'}
        sd = {r for r in pd if r[0] in ('s', 'vcc')}
        if c.cls == 'mfma' and vd & set(c.src): n = max(n, 2)
        if c.cls == 'valu':
            if p.trans and not c.trans and vd & set(c.src): n = max(n, 1)
            if (c.perm or c.dpp) and vd & set(c.src): n = max(n, 2)
            if c.lanerd and vd & set(c.src): n = max(n, 1)
            if sd & set(c.src): n = max(n, 4 if c.lanerd else 2)
        if c.cls == 'vmem' and sd & set(c.src): n = max(n, 5)
        if c.cls == 'salu' and sd & set(c.src): n = max(n, 1)
    if p.cls == 'mfma':
        big = {8: 12, 4: 8}[p.passes]
        ovl = {8: 10, 4: 6}[p.passes]
        war = {8: 7, 4: 3}[p.passes]
        if c.cls == 'mfma':
            if pd & set(c.srcAB): n = max(n, big)
            if pd & set(c.srcC):
                if not (c.srcC == p.dst and c.passes == p.passes): n = max(n, ovl)
            elif pd & set(c.dst): n = max(n, big)
        elif c.cls in ('valu', 'vmem', 'ds'):
            if pd & (set(c.src) | set(c.dst)): n = max(n, big)
            if c.cls == 'valu' and set(p.srcC) & set(c.dst): n = max(n, war)
    if p.cls == 'salu':
        if ('m0', 0) in pd and c.ldsdma: n = max(n, 1)
    if p.cls == 'vmem' and p.wide_store:
        if set(p.srcAB) & set(c.dst): n = max(n, 2 if c.cls == 'valu' else 1)
    return n

class Stream:
    def __init__(self):
        self.out = []
        self.hist = []
        self.vm = []
        self.lg = []
        self.nnop = 0
        self.bg = []
        self.bg_every = 0
        self.bg_cnt = 0
        self.in_bg = False
        self.lab = 0

    def raw(self, text):
        self.out.append(text)

    def comment(self, t):
        self.out.append('    ; ' + t)

    def label(self, name):
        self.out.append(name + ':')

    def newlabel(self, p='L'):
        self.lab += 1
        return f'{p}_{self.lab}'

    def _push(self, ins):
        self.out.append('    ' + ins.text)
        self.hist.append(ins)
        if len(self.hist) > 24:
            self.hist.pop(0)

    def I(self, text, tag=None):
        for t in text.split('\n'):
            t = t.strip()
            if not t: continue
            ins = parse(t)
            dist = 0
            req = 0
            for p in reversed(self.hist):
                n = need(p, ins)
                if n - dist > req: req = n - dist
                dist += p.ws
                if dist >= 20: break
            while req > 0:
                k = min(req, 16)
                self._push(parse(f's_nop {k-1}'))
                self.nnop += 1
                req -= k
            self._push(ins)
            if ins.cls == 'vmem': self.vm.append(tag)
            if ins.cls == 'ds': self.lg.append(tag)
            if ins.cls in ('valu', 'mfma') and not self.in_bg and self.bg and self.bg_every:
                self.bg_cnt += (8 if ins.cls == 'mfma' and ins.passes == 8 else 2 if ins.trans else 1)
                if self.bg_cnt >= self.bg_every:
                    self.bg_cnt = 0
                    self.run_bg(1)

    def run_bg(self, n=None):
        prev = self.in_bg
        self.in_bg = True
        while self.bg and (n is None or n > 0):
            f = self.bg.pop(0)
            if isinstance(f, tuple): f = f[1]
            f()
            if n is not None: n -= 1
        self.in_bg = prev

    def push(self, ops):
        self.bg.extend(ops)

    def flush_tag(self, tags):
        if not isinstance(tags, (list, tuple, set)): tags = [tags]
        last = -1
        for i, f in enumerate(self.bg):
            if isinstance(f, tuple) and (f[0] in tags or 'all' in tags): last = i
        if last >= 0: self.run_bg(last + 1)

    def _cnt(self, lst, tags):
        if not isinstance(tags, (list, tuple, set)): tags = [tags]
        idx = -1
        for i, t in enumerate(lst):
            if t in tags: idx = i
        return idx

    def wait(self, vm=None, lg=None):
        parts = []
        if vm is not None and not self.in_bg: self.flush_tag(vm)
        if vm is not None:
            idx = len(self.vm) - 1 if vm == 'all' else self._cnt(self.vm, vm)
            if idx >= 0:
                n = len(self.vm) - 1 - idx
                parts.append(f'vmcnt({min(n, 63)})')
                if n <= 63: self.vm = self.vm[idx + 1:]
                else: self.vm = self.vm[len(self.vm) - 63:]
        if lg is not None:
            idx = len(self.lg) - 1 if lg == 'all' else self._cnt(self.lg, lg)
            if idx >= 0:
                n = len(self.lg) - 1 - idx
                parts.append(f'lgkmcnt({min(n, 15)})')
                if n <= 15: self.lg = self.lg[idx + 1:]
                else: self.lg = self.lg[len(self.lg) - 15:]
        if parts:
            self.I('s_waitcnt ' + ' '.join(parts))

    def text(self):
        return '\n'.join(self.out) + '\n'
```

```python
import sys, math, struct
from asmlib import Stream

NAME = 'gated_mix__linear_kernel_hedgehog__mixer_token_mlp__prompt'
MB = 1 << 20
WS_E = 0
FH = 4096
FKV = 12288
FR = 20480
FU = 24576
FO = 32768
G_ = 40960
KVF = 65536
HF = 1 * MB
KVP = 3 * MB
OF = 6 * MB
UF = 8 * MB
STAMP_BASE = 12 * MB
WS_SIZE = 16 * MB
KVB = 4608
LOG2E = 0x3fb8aa3b
SPIN_MAX = 50000
LDS_TOTAL = 163840

def f2u(x): return struct.unpack('<I', struct.pack('<f', x))[0]
def v(a, n=1): return f'v{a}' if n == 1 else f'v[{a}:{a+n-1}]'
def a_(a, n=1): return f'a{a}' if n == 1 else f'a[{a}:{a+n-1}]'
MF = 'v_mfma_f32_32x32x16_bf16'

PX, PWQKV, PWPHI, PWO, PW1, PB1, PW2, PB2, PGW, POUT, PWS = 36, 38, 40, 42, 46, 48, 50, 52, 54, 56, 60
RX, RW, RWS, RW1 = 8, 12, 16, 20
RH = 64
sWAVE, sSBLK, sQUAD, sDT, sFT, sIDX, sXCD, sST = 24, 25, 26, 27, 28, 29, 30, 31
sB0, sB1, sK0, sK1 = 32, 33, 34, 35
TAG = 62
sC = 68
sMASK = 70
sEX = 72
sMB = 74
sCLS = 75
sA68, sA69 = 76, 77
sB2, sK2, sB3, sK3 = 44, 45, 58, 59
sMS = 69
sMX, sMW = 78, 79
AREA = [2, 0, 1, 3, 4]
def slot_addr(t): return AREA[t >> 2] * 32768 + (t & 3) * 2048

def srd(S, d, lo, nbytes):
    S.I(f's_mov_b32 s{d}, s{lo}\ns_mov_b32 s{d+1}, s{lo+1}\ns_mov_b32 s{d+2}, {nbytes}\ns_mov_b32 s{d+3}, 0x00020000')

def poll(S, vdata, vaddr, first_tag=None):
    ok = S.newlabel('L_ok'); lp = S.newlabel('L_spin')
    S.wait(vm=first_tag)
    S.I(f'v_cmp_ne_u64 vcc, s[{TAG}:{TAG+1}], {v(vdata,2)}')
    S.I('s_nop 4')
    S.I(f's_cbranch_vccz {ok}')
    S.I(f's_mov_b32 s3, {SPIN_MAX}')
    S.label(lp)
    S.raw(f'    buffer_load_dwordx2 {v(vdata,2)}, {v(vaddr)}, s[{RWS}:{RWS+3}], 0 offen sc1')
    S.raw('    s_waitcnt vmcnt(0)')
    S.I(f'v_cmp_ne_u64 vcc, s[{TAG}:{TAG+1}], {v(vdata,2)}')
    S.I('s_sub_u32 s3, s3, 1')
    S.I('s_cmp_eq_u32 s3, 0')
    S.I(f's_cbranch_scc1 {ok}')
    S.I('s_nop 2')
    S.I(f's_cbranch_vccnz {lp}')
    S.label(ok)

def set_flag(S, soff, vt=2):
    S.I(f'v_mov_b32 {v(vt)}, s{TAG}\nv_mov_b32 {v(vt+1)}, s{TAG+1}\nv_mov_b32 {v(vt+2)}, 0')
    S.I('s_mov_b64 exec, 1')
    S.I(f'buffer_store_dwordx2 {v(vt,2)}, {v(vt+2)}, s[{RWS}:{RWS+3}], s{soff} offen sc1', tag='flag')
    S.I('s_mov_b64 exec, -1')

def allreduce64(S, regs, tmp):
    for sh in (8, 4, 2, 1):
        for r in regs:
            S.I(f'v_add_f32_dpp {v(r)}, {v(r)}, {v(r)} row_ror:{sh} row_mask:0xf bank_mask:0xf')
    for op in ('v_permlane16_swap_b32', 'v_permlane32_swap_b32'):
        for r, t in zip(regs, tmp): S.I(f'v_mov_b32 {v(t)}, {v(r)}')
        for r, t in zip(regs, tmp): S.I(f'{op} {v(r)}, {v(t)}')
        for r, t in zip(regs, tmp): S.I(f'v_add_f32 {v(r)}, {v(r)}, {v(t)}')

def pair_allreduce2(S, pairs, post):
    for ra, rb, op in pairs: S.I(f'v_permlane32_swap_b32 {v(ra)}, {v(rb)}')
    for ra, rb, op in pairs: S.I(f'{op} {v(ra)}, {v(ra)}, {v(rb)}')
    for ra, rb, op in pairs: post(ra)
    for ra, rb, op in pairs: S.I(f'v_mov_b32 {v(rb)}, {v(ra)}')
    for ra, rb, op in pairs: S.I(f'v_permlane32_swap_b32 {v(ra)}, {v(rb)}')

def softmax_pm(S, P, E, T, OUT):
    mxA, mxB, mnA, mnB = T, T+1, T+2, T+3
    q4 = ((mxA, P, 'max'), (mxB, P+8, 'max'), (mnA, P, 'min'), (mnB, P+8, 'min'))
    for m, base, o in q4: S.I(f'v_{o}3_f32 {v(m)}, {v(base)}, {v(base+1)}, {v(base+2)}')
    for k in (3, 5):
        for m, base, o in q4: S.I(f'v_{o}3_f32 {v(m)}, {v(m)}, {v(base+k)}, {v(base+k+1)}')
    for m, base, o in q4: S.I(f'v_{o}_f32 {v(m)}, {v(m)}, {v(base+7)}')
    pair_allreduce2(S, [(mxA, mxB, 'v_max_f32'), (mnA, mnB, 'v_min_f32')], lambda r: S.I(f'v_mul_f32 {v(r)}, s{sC}, {v(r)}'))
    for hb, (mx, mn) in enumerate(((mxA, mnA), (mxB, mnB))):
        for i in range(8):
            S.I(f'v_fma_f32 {v(E+16*hb+i)}, {v(P+8*hb+i)}, s{sC}, -{v(mx)}')
            S.I(f'v_fma_f32 {v(E+16*hb+8+i)}, -{v(P+8*hb+i)}, s{sC}, {v(mn)}')
        for i in range(16):
            S.I(f'v_exp_f32 {v(E+16*hb+i)}, {v(E+16*hb+i)}')
    sm = [T+4, T+5, T+6, T+7]
    for g in range(4): S.I(f'v_add_f32 {v(sm[g])}, {v(E+8*g)}, {v(E+8*g+1)}')
    for i in range(2, 8):
        for g in range(4): S.I(f'v_add_f32 {v(sm[g])}, {v(sm[g])}, {v(E+8*g+i)}')
    pair_allreduce2(S, [(sm[0], sm[1], 'v_add_f32'), (sm[2], sm[3], 'v_add_f32')], lambda r: S.I(f'v_rcp_f32 {v(r)}, {v(r)}'))
    for g in range(4):
        for i in range(8): S.I(f'v_mul_f32 {v(E+8*g+i)}, {v(sm[g])}, {v(E+8*g+i)}')
        for i in range(4): S.I(f'v_cvt_pk_bf16_f32 {v(OUT+4*g+i)}, {v(E+8*g+2*i)}, {v(E+8*g+2*i+1)}')

def cvt8(S, dst, src, n=8):
    for i in range(n): S.I(f'v_cvt_pk_bf16_f32 {v(dst+i)}, {v(src+2*i)}, {v(src+2*i+1)}')

NSTAMP = 11
def stamp(S, opt, k):
    if opt.get('stamps'):
        S.I(f's_memrealtime s[{80+2*k}:{81+2*k}]')
def stamp_out(S, opt):
    if opt.get('stamps'):
        n = NSTAMP - 1
        S.I('s_waitcnt vmcnt(0) lgkmcnt(0)')
        S.I(f's_memrealtime s[{80+2*n}:{81+2*n}]')
        S.I('s_waitcnt lgkmcnt(0)')
        S.I('v_mov_b32 v2, 0')
        for k in range(n + 1): S.I(f'v_writelane_b32 v2, s{80+2*k}, {k}')
        S.I(f's_lshl_b32 s3, s2, 2\ns_add_u32 s3, s3, s{sWAVE}\ns_lshl_b32 s3, s3, 6\ns_add_u32 s3, s3, {STAMP_BASE}')
        S.I('v_lshlrev_b32 v3, 2, v1')
        S.I('s_mov_b64 exec, 0xffff')
        S.I(f'buffer_store_dword v2, v3, s[{RWS}:{RWS+3}], s3 offen')

INBOX = [slot_addr(4), slot_addr(6), slot_addr(8)]
def exchange(S, ACC):
    for i in range(1, 4):
        S.I(f's_xor_b32 s3, s{sWAVE}, {i}\ns_lshl_b32 s3, s3, 13\nv_add_u32 v6, s3, v5')
        for q in range(4):
            S.I(f'ds_write_b128 v6, {v(ACC+16*i+4*q,4)} offset:{INBOX[i-1]+q*1024}', tag='xw')
    S.I(f'v_add_u32 v7, s{sMB}, v5')
    S.wait(lg='xw')
    S.I('s_barrier')
    for i in range(1, 4):
        for q in range(4):
            S.I(f'ds_read_b128 {v(ACC+16*i+4*q,4)}, v7 offset:{INBOX[i-1]+q*1024}', tag=f'xr{i}')
def exchange_sum(S, ACC):
    for i in range(1, 4):
        S.wait(lg=f'xr{i}')
        for r in range(16): S.I(f'v_add_f32 {v(ACC+r)}, {v(ACC+r)}, {v(ACC+16*i+r)}')

def gen(S, opt):
    ntA = 'nt ' if opt.get('ntA', 0) else ''
    ntW = 'nt ' if opt.get('ntW', 1) else ''
    ntH = 'nt ' if opt.get('ntH', 0) else ''
    vXa, vXb, vW, vW2 = 10, 11, 12, 13
    vW1a, vW1b, vYa, vYb, vOa, vOb = 14, 15, 16, 17, 18, 19
    vH0, vH1, vD0, vD1 = 20, 21, 22, 23
    vXr = 24
    vWr = 224
    vBr = 226
    vTy, vTa = 24, 226
    vLP = 8
    XF, WF = 32, 40
    AQ, AK, AV = 64, 80, 96
    WA, WB, IP, IM = 112, 116, 120, 124
    vFL, vFLa = 236, 238
    PHIQ = 240
    ACC = 64; AF = 32

    S.I('s_cmp_ge_u32 s2, 256\ns_cbranch_scc1 L_end')
    stamp(S, opt, 0)
    S.I('s_load_dwordx16 s[36:51], s[0:1], 0')
    S.I('s_load_dwordx8 s[52:59], s[0:1], 64')
    S.I('s_load_dwordx2 s[60:61], s[0:1], 96')
    S.I('v_and_b32 v1, 63, v0\nv_lshrrev_b32 v2, 6, v0')
    S.I(f'v_readfirstlane_b32 s{sWAVE}, v2')
    S.I('v_lshrrev_b32 v2, 3, v1\nv_and_b32 v3, 7, v1\nv_lshrrev_b32 v4, 4, v1')
    if opt.get('scramble'): S.I(f's_lshr_b32 s{sXCD}, s2, 5\ns_and_b32 s{sIDX}, s2, 31')
    else: S.I(f's_and_b32 s{sXCD}, s2, 7\ns_lshr_b32 s{sIDX}, s2, 3')
    S.I(f's_lshr_b32 s3, s{sXCD}, 1\ns_lshl_b32 s3, s3, 3\ns_and_b32 s4, s{sIDX}, 7\ns_add_u32 s{sSBLK}, s3, s4')
    S.I(f's_and_b32 s3, s{sXCD}, 1\ns_lshl_b32 s3, s3, 2\ns_lshr_b32 s7, s{sIDX}, 3\ns_add_u32 s{sQUAD}, s3, s7')
    S.I(f's_lshl_b32 s7, s7, 1\ns_add_u32 s{sK0}, s7, s4\ns_and_b32 s{sK0}, s{sK0}, {7 if opt.get("rot",1) else 0}')
    S.I(f's_lshl_b32 s5, s{sSBLK}, 16\ns_lshl_b32 s6, s{sQUAD}, 13\ns_add_u32 s6, s6, s5\ns_lshl_b32 s7, s{sWAVE}, 11\ns_add_u32 s6, s6, s7')
    S.I('v_lshlrev_b32 v5, 4, v1')
    S.I(f'v_xor_b32 v6, v3, v4\nv_lshlrev_b32 v6, 4, v6\nv_lshl_add_u32 {v(vXa)}, v2, 10, v6')
    S.I(f'v_xor_b32 {v(vXb)}, 64, {v(vXa)}\nv_add_u32 {v(vXb)}, 7168, {v(vXb)}')
    S.I('v_and_b32 v6, 1, v4\nv_lshlrev_b32 v6, 2, v6\nv_xor_b32 v6, v3, v6\nv_lshlrev_b32 v6, 4, v6')
    S.I(f'v_mul_u32_u24 v7, 3072, v2\nv_add_u32 {v(vW)}, v7, v6\nv_add_u32 {v(vW2)}, 24576, {v(vW)}')
    S.I(f's_lshl_b32 s7, s{sWAVE}, 14\ns_add_u32 s{sB0}, s5, s7')
    S.I(f's_mul_i32 s{sB1}, s{sWAVE}, {16*3072}\ns_lshl_b32 s7, s{sQUAD}, 7\ns_add_u32 s{sB1}, s{sB1}, s7')
    S.I(f's_lshl_b32 s{sMX}, s{sWAVE}, 11')
    S.I(f's_mul_i32 s{sMW}, s{sWAVE}, 6144\ns_add_u32 s{sMW}, s{sMW}, 8192')
    S.I(f's_mov_b32 s{sK1}, s{sK0}')
    S.I('v_mov_b32 v9, 0')
    S.I('s_waitcnt lgkmcnt(0)')
    srd(S, RX, PX, 2048*1024)
    S.I(f'buffer_load_dwordx4 v[128:131], v5, s[{RX}:{RX+3}], s6 offen', tag='lnx')
    S.I(f'buffer_load_dwordx4 v[132:135], v5, s[{RX}:{RX+3}], s6 offen offset:1024', tag='lnx')
    S.I(f'global_load_dwordx4 v[136:139], v5, s[{PGW}:{PGW+1}]', tag='lnx')
    srd(S, RWS, PWS, WS_SIZE)
    S.I(f'buffer_load_dwordx2 v[164:165], v9, s[{RWS}:{RWS+3}], 0 offen sc1', tag='lnx')
    srd(S, RW, PWQKV, 512*3072)

    def x_ops(st):
        slot = (st % 3) * 32768
        def f0():
            S.I(f's_lshl_b32 s4, s{sK0}, 7\ns_add_u32 s4, s4, s{sB0}\ns_add_u32 m0, s{sMX}, {slot}')
            S.I(f's_add_u32 s{sK0}, s{sK0}, 1')
            S.I(f'buffer_load_dwordx4 {v(vXa)}, s[{RX}:{RX+3}], s4 offen {ntA}lds', tag=f'S{st}')
        def f1():
            S.I(f'buffer_load_dwordx4 {v(vXb)}, s[{RX}:{RX+3}], s4 offen offset:1024 {ntA}lds', tag=f'S{st}')
            S.I(f's_and_b32 s{sK0}, s{sK0}, 7')
        return [(f'S{st}', f0), (f'S{st}', f1)]
    def w_ops(st):
        slot = (st % 3) * 32768
        ops = []
        for half in range(2):
            for seg in range(3):
                def f(half=half, seg=seg):
                    if seg == 0:
                        S.I(f's_add_u32 m0, s{sMW}, {slot + 3072*half}')
                        if half == 0: S.I(f's_mul_i32 s4, s{sK1}, {64*3072}\ns_add_u32 s4, s4, s{sB1}')
                    S.I(f'buffer_load_dwordx4 {v(vW2 if half else vW)}, s[{RW}:{RW+3}], s4 offen offset:{seg*1024} {ntA}lds', tag=f'S{st}')
                    if half and seg == 2: S.I(f's_add_u32 s{sK1}, s{sK1}, 1\ns_and_b32 s{sK1}, s{sK1}, 7')
                ops.append((f'S{st}', f))
        return ops
    def now(ops):
        assert not S.bg
        for _, f in ops: f()
    now(x_ops(0)); now(w_ops(0)); now(x_ops(1))
    if opt.get('codepf', 1):
        S.I('s_getpc_b64 s[66:67]')
        S.I(f's_and_b32 s3, s{sIDX}, 7\ns_lshl_b32 s3, s3, 12')
        S.I('v_lshlrev_b32 v7, 4, v0\nv_add_u32 v7, s3, v7')
        S.I('global_load_dwordx4 v[232:235], v7, s[66:67]', tag='cpf')
    S.I(f'v_mul_u32_u24 v7, 3584, v2\nv_add_u32 {v(vW1a)}, v7, v6\nv_add_u32 {v(vW1b)}, {8*3584-1024}, {v(vW1a)}')
    S.I(f'v_lshl_add_u32 {v(vYa)}, v2, 12, v6\nv_add_u32 {v(vYb)}, {8*4096-1024}, {v(vYa)}')
    S.I(f'v_lshl_add_u32 {v(vOa)}, v2, 10, v6\nv_add_u32 {v(vOb)}, {8*1024-1024}, {v(vOa)}')
    S.I('v_lshrrev_b32 v9, 5, v1')
    S.I(f's_mov_b32 s{sC}, {LOG2E}')
    S.I(f's_mov_b32 s{sMASK}, 0x0000ffff\ns_mov_b32 s{sMASK+1}, 0x0000ffff')
    S.I(f's_and_b32 s3, s{sXCD}, 1\ns_lshl_b32 s3, s3, 2\ns_and_b32 s{sCLS}, s{sIDX}, 3\ns_add_u32 s{sDT}, s3, s{sCLS}')
    S.I(f's_lshr_b32 s3, s{sXCD}, 1\ns_mul_i32 s7, s3, 7\ns_lshr_b32 s4, s{sIDX}, 2\ns_add_u32 s{sFT}, s7, s4')
    S.I(f's_lshl_b32 s3, s3, 3\ns_add_u32 s{sST}, s3, s4')
    S.I(f's_mul_i32 s7, s4, 37\ns_lshr_b32 s7, s7, 3\ns_lshl_b32 s3, s{sCLS}, 3\ns_add_u32 s7, s7, s3\ns_and_b32 s{sK2}, s7, {31 if opt.get("rot",1) else 0}\ns_mov_b32 s{sK3}, s{sK2}')
    S.I(f's_mul_i32 s{sB2}, s{sWAVE}, {512*3584}\ns_lshl_b32 s3, s{sFT}, 7\ns_add_u32 s{sB2}, s{sB2}, s3')
    S.I(f's_lshl_b32 s{sB3}, s{sWAVE}, 19\ns_lshl_b32 s3, s{sDT}, 11\ns_add_u32 s{sB3}, s{sB3}, s3\ns_add_u32 s{sB3}, s{sB3}, {HF}')
    S.I(f's_lshl_b32 s{sMB}, s{sWAVE}, 13')
    srd(S, RW1, PW1, 2048*3584)
    srd(S, RH, PWS, WS_SIZE)
    S.I(f's_cmp_ge_u32 s{sIDX}, 28\ns_cselect_b32 s{RW1+2}, 0, s{RW1+2}\ns_cselect_b32 s{RH+2}, 0, s{RH+2}')
    S.I(f's_add_u32 s{sMS}, s{sMB}, {slot_addr(12)}')
    S.I(f's_lshr_b32 s3, s{sWAVE}, 1\ns_lshl_b32 s3, s3, 12')
    S.I('v_and_b32 v6, 31, v1\nv_lshlrev_b32 v6, 7, v6\nv_bfe_u32 v7, v1, 1, 3\nv_xor_b32 v7, v7, v9\nv_lshl_add_u32 v6, v7, 4, v6')
    S.I(f'v_add_u32 {v(vXr)}, s3, v6')
    for ks in range(1, 4): S.I(f'v_xor_b32 {v(vXr+ks)}, {32*ks}, {v(vXr)}')
    for ks in range(4): S.I(f'v_add_u32 {v(vXr+4+ks)}, 0x10000, {v(vXr+ks)}')
    S.I(f'v_bfe_u32 {v(vLP)}, v1, 2, 2\nv_lshlrev_b32 {v(vLP)}, 7, {v(vLP)}')
    S.I(f'v_bfe_u32 v7, v1, 4, 1\nv_lshl_add_u32 {v(vLP)}, v7, 5, {v(vLP)}')
    S.I(f'v_and_b32 v7, 3, v1\nv_lshl_add_u32 {v(vLP)}, v7, 3, {v(vLP)}')
    S.I(f'v_bfe_u32 v7, v1, 3, 1\nv_lshl_add_u32 {v(vLP)}, v7, 6, {v(vLP)}')
    S.I(f's_and_b32 s3, s{sWAVE}, 1\ns_lshl_b32 s3, s3, 6')
    S.I(f'v_xor_b32 v7, s3, {v(vLP)}')
    S.I(f'v_mul_u32_u24 {v(vWr)}, 3072, v9\nv_add_u32 {v(vWr)}, {v(vWr)}, v7\nv_add_u32 {v(vWr)}, 8192, {v(vWr)}')
    S.I(f'v_add_u32 {v(vWr+1)}, 0x10000, {v(vWr)}')
    def tr_addrs(base, gshift, wsel):
        if wsel == 'hi': S.I(f's_lshr_b32 s3, s{sWAVE}, 1\ns_lshl_b32 s3, s3, 6')
        else: S.I(f's_and_b32 s3, s{sWAVE}, 1\ns_lshl_b32 s3, s3, 6')
        S.I(f'v_xor_b32 v7, s3, {v(vLP)}\nv_lshl_add_u32 v7, v9, {gshift}, v7\nv_add_u32 {v(base)}, s{sMB}, v7')
        S.I(f'v_xor_b32 {v(base+1)}, 64, {v(base)}')
        for wdw in (1, 2):
            S.I(f'v_add_u32 {v(base+2*wdw)}, {wdw*0x10000:#x}, {v(base)}\nv_add_u32 {v(base+2*wdw+1)}, {wdw*0x10000:#x}, {v(base+1)}')
    tr_addrs(vBr, 10, 'hi')
    S.I(f's_and_b32 s3, s{sWAVE}, 1\ns_lshl_b32 s3, s3, 10')
    S.I(f'v_add_u32 {v(vH0)}, s3, v5\nv_xor_b32 {v(vH1)}, 0x400, {v(vH0)}')
    S.I(f's_lshr_b32 s3, s{sWAVE}, 1\ns_lshl_b32 s3, s3, 10')
    S.I(f'v_add_u32 {v(vD0)}, s3, v5\nv_xor_b32 {v(vD1)}, 0x400, {v(vD0)}')
    for r in range(48): S.I(f'v_mov_b32 {v(AQ+r)}, 0')

    S.wait(vm='lnx')
    stamp(S, opt, 1)
    def wphi_loads():
        S.I(f's_and_b32 s3, s{sWAVE}, 1\ns_lshl_b32 s3, s3, 1\ns_lshl_b32 s7, s{sQUAD}, 2\ns_add_u32 s3, s3, s7\ns_lshl_b32 s3, s3, 9')
        S.I('v_bfe_u32 v6, v1, 4, 1\nv_lshlrev_b32 v6, 9, v6\nv_and_b32 v7, 15, v1\nv_lshl_add_u32 v6, v7, 1, v6\nv_lshl_add_u32 v6, v9, 7, v6\nv_add_u32 v6, s3, v6')
        for j in range(8):
            d = (j & 3) + 8 * (j >> 2)
            S.I(f'global_load_ushort {v(180 + j)}, v6, s[{PWPHI}:{PWPHI+1}] offset:{d*32}', tag='wphi')
    S.push(w_ops(1) + [wphi_loads])
    S.bg_every = 16
    fa, fb, fg = 140, 148, 156
    for dst, src in ((fa, 128), (fb, 132), (fg, 136)):
        for i in range(4):
            S.I(f'v_lshlrev_b32 {v(dst+2*i)}, 16, {v(src+i)}\nv_and_b32 {v(dst+2*i+1)}, 0xffff0000, {v(src+i)}')
    S.I(f'v_readfirstlane_b32 s{TAG}, v164\nv_readfirstlane_b32 s{TAG+1}, v165')
    sA, sB_, gA, gB = 172, 173, 174, 175
    S.I(f'v_add_f32 {v(sA)}, {v(fa)}, {v(fa+1)}\nv_add_f32 {v(sB_)}, {v(fb)}, {v(fb+1)}')
    S.I(f'v_mul_f32 {v(gA)}, {v(fa)}, {v(fg)}\nv_mul_f32 {v(gB)}, {v(fb)}, {v(fg)}')
    S.I(f's_mul_i32 s{TAG}, s{TAG}, 1664525\ns_add_u32 s{TAG}, s{TAG}, 1013904223')
    S.I(f's_mul_i32 s{TAG+1}, s{TAG+1}, 22695477\ns_add_u32 s{TAG+1}, s{TAG+1}, 1')
    for i in range(1, 8):
        if i >= 2: S.I(f'v_add_f32 {v(sA)}, {v(sA)}, {v(fa+i)}\nv_add_f32 {v(sB_)}, {v(sB_)}, {v(fb+i)}')
        S.I(f'v_fmac_f32 {v(gA)}, {v(fa+i)}, {v(fg+i)}\nv_fmac_f32 {v(gB)}, {v(fb+i)}, {v(fg+i)}')
    allreduce64(S, [sA, sB_, gA, gB], [176, 177, 178, 179])
    S.I(f'v_mul_f32 {v(sA)}, {f2u(1/512):#x}, {v(sA)}\nv_mul_f32 {v(sB_)}, {f2u(1/512):#x}, {v(sB_)}')
    for i in range(8):
        S.I(f'v_sub_f32 {v(fa+i)}, {v(fa+i)}, {v(sA)}\nv_sub_f32 {v(fb+i)}, {v(fb+i)}, {v(sB_)}')
    S.I(f'v_mul_f32 {v(sA)}, {v(fa)}, {v(fa)}\nv_mul_f32 {v(sB_)}, {v(fb)}, {v(fb)}')
    for i in range(1, 8):
        S.I(f'v_fmac_f32 {v(sA)}, {v(fa+i)}, {v(fa+i)}\nv_fmac_f32 {v(sB_)}, {v(fb+i)}, {v(fb+i)}')
    S.I(f'v_cmp_eq_u32 vcc, 0, v1\nv_cndmask_b32 {v(gA)}, {v(gB)}, {v(gA)}, vcc')
    S.I(f'v_mul_f32 {v(gA)}, s{sC}, {v(gA)}\nv_exp_f32 {v(gA)}, -{v(gA)}\nv_add_f32 {v(gA)}, 1.0, {v(gA)}\nv_rcp_f32 {v(gA)}, {v(gA)}')
    allreduce64(S, [sA, sB_], [176, 177])
    S.I(f'v_mov_b32 v176, {f2u(1e-5):#x}')
    S.I(f'v_fmamk_f32 {v(sA)}, {v(sA)}, {f2u(1/512):#x}, v176\nv_fmamk_f32 {v(sB_)}, {v(sB_)}, {f2u(1/512):#x}, v176')
    S.I(f'v_rsq_f32 {v(sA)}, {v(sA)}\nv_rsq_f32 {v(sB_)}, {v(sB_)}')
    for i in range(8):
        S.I(f'v_mul_f32 {v(fa+i)}, {v(sA)}, {v(fa+i)}\nv_mul_f32 {v(fb+i)}, {v(sB_)}, {v(fb+i)}')
    cvt8(S, 128, fa, 4); cvt8(S, 132, fb, 4)
    S.run_bg(); S.bg_every = 0
    LDS_SCR = 3 * 32768
    S.I(f's_mul_i32 s3, s{sWAVE}, 2176\ns_add_u32 s3, s3, {LDS_SCR}\nv_add_u32 v6, s3, v5')
    S.I('ds_write_b128 v6, v[128:131]', tag='lnw')
    S.I('ds_write_b128 v6, v[132:135] offset:1088', tag='lnw')
    S.I(f's_lshr_b32 s3, s6, 8\ns_add_u32 s3, s3, {G_}\nv_lshlrev_b32 v7, 2, v1')
    S.I('s_mov_b64 exec, 3')
    S.I(f'buffer_store_dword {v(gA)}, v7, s[{RWS}:{RWS+3}], s3 offen sc1', tag='hst')
    S.I('s_mov_b64 exec, -1')
    S.I('v_bfe_u32 v6, v1, 2, 2\nv_mul_u32_u24 v6, 1088, v6\nv_lshrrev_b32 v7, 4, v1\nv_lshl_add_u32 v6, v7, 5, v6\nv_and_b32 v7, 3, v1\nv_lshl_add_u32 v6, v7, 3, v6')
    S.I(f's_lshl_b32 s3, s{sWAVE}, 8\ns_add_u32 s3, s3, {LDS_SCR}\nv_add_u32 v6, s3, v6')
    S.I(f's_lshl_b32 s3, s{sSBLK}, 2\ns_lshr_b32 s4, s{sQUAD}, 1\ns_add_u32 s3, s3, s4\ns_lshl_b32 s3, s3, 14\ns_lshl_b32 s4, s{sWAVE}, 12\ns_add_u32 s3, s3, s4')
    S.I(f's_and_b32 s4, s{sQUAD}, 1\ns_lshl_b32 s4, s4, 9\ns_add_u32 s3, s3, s4\ns_add_u32 s{sA68}, s3, {HF}')
    S.I('v_and_b32 v7, 31, v1\nv_lshlrev_b32 v7, 4, v7\nv_lshl_add_u32 v7, v9, 10, v7')
    S.I(f's_lshl_b32 s3, s{sSBLK}, 3\ns_add_u32 s3, s3, s{sQUAD}\ns_lshl_b32 s3, s3, 3\ns_lshl_b32 s4, s{sWAVE}, 11\ns_add_u32 s3, s3, s4\ns_add_u32 s{sA69}, s3, {FH}')
    S.wait(lg='lnw')
    S.I('s_barrier')
    S.I('ds_read_b64_tr_b16 v[128:129], v6', tag='lnr')
    S.I(f'ds_read_b64_tr_b16 v[130:131], v6 offset:{4*1088}', tag='lnr')
    S.I('ds_read_b64_tr_b16 v[132:133], v6 offset:128', tag='lnr')
    S.I(f'ds_read_b64_tr_b16 v[134:135], v6 offset:{4*1088+128}', tag='lnr')
    S.wait(lg='lnr')
    S.I(f'buffer_store_dwordx4 v[128:131], v7, s[{RWS}:{RWS+3}], s{sA68} offen sc1', tag='hst')
    S.I(f'buffer_store_dwordx4 v[132:135], v7, s[{RWS}:{RWS+3}], s{sA68} offen offset:2048 sc1', tag='hst')

    def b_slot(k): return 12 + k if k < 8 else (k - 8) % 11
    def pair_ops(tag, pre, l0, l1, post):
        def f0():
            S.I(pre); S.I(l0, tag=tag)
        def f1():
            S.I(l1, tag=tag); S.I(post)
        return [(tag, f0), (tag, f1)]
    def w1_ops(m0expr, tag, nt=''):
        return pair_ops(tag, f's_mul_i32 s4, s{sK2}, {16*3584}\n{m0expr}\ns_add_u32 s4, s4, s{sB2}\ns_add_u32 s{sK2}, s{sK2}, 1',
            f'buffer_load_dwordx4 {v(vW1a)}, s[{RW1}:{RW1+3}], s4 offen {nt}lds',
            f'buffer_load_dwordx4 {v(vW1b)}, s[{RW1}:{RW1+3}], s4 offen offset:1024 {nt}lds',
            f's_and_b32 s{sK2}, s{sK2}, 31')
    def b_ops(k): return w1_ops(f's_add_u32 m0, s{sMB}, {slot_addr(b_slot(k))}', f'B{k}', ntH)
    def h_ops(k):
        p = k & 15
        return pair_ops(f'H{k}', f's_lshl_b32 s4, s{sK3}, 14\ns_add_u32 s4, s4, s{sB3}\ns_add_u32 s{sK3}, s{sK3}, 1',
            f'buffer_load_dwordx4 {a_(8*p,4)}, {v(vH0)}, s[{RH}:{RH+3}], s4 offen sc1',
            f'buffer_load_dwordx4 {a_(8*p+4,4)}, {v(vH1)}, s[{RH}:{RH+3}], s4 offen sc1',
            f's_and_b32 s{sK3}, s{sK3}, 31')
    def cond_block(cls, body):
        S.run_bg()
        lab = S.newlabel('L_skip')
        S.I(f's_cmp_lg_u32 s{sCLS}, {cls}\ns_cbranch_scc1 {lab}')
        sv = list(S.vm)
        body()
        S.vm = sv
        S.label(lab)
    def m1_block():
        for q in range(4): now(w1_ops(f's_add_u32 m0, s{sMS}, {q*2048}', None, ntW))
        S.I(f's_add_u32 s{sMS}, s{sMS}, 32768')

    def a_reads(kk):
        st, ks = kk >> 2, kk & 3
        slot = st % 3
        hi = slot >> 1
        so = (slot & 1) * 32768
        b = kk & 1
        R = [f'ds_read_b128 {v(XF+4*b,4)}, {v(vXr+4*hi+ks)} offset:{so}']
        for seg in range(3):
            for t in range(2):
                R.append(f'ds_read_b64_tr_b16 {v(WF+12*b+4*seg+2*t,2)}, {v(vWr+hi)} offset:{so + ks*6144 + seg*1024 + t*512}')
        return R
    def a_mfmas(kk):
        b = kk & 1
        return [f'{MF} {v(AQ,16)}, {v(WF+12*b,4)}, {v(XF+4*b,4)}, {v(AQ,16)}',
                f'{MF} {v(AK,16)}, {v(WF+12*b+4,4)}, {v(XF+4*b,4)}, {v(AK,16)}',
                f'{MF} {v(AV,16)}, {v(XF+4*b,4)}, {v(WF+12*b+8,4)}, {v(AV,16)}']
    def a_step(kk):
        R = a_reads(kk) if kk < 32 else []
        M = a_mfmas(kk - 1) if kk > 0 else []
        if M: S.wait(lg=f'R{kk-1}')
        split = [R[0:3], R[3:5], R[5:7]]
        for j in range(3):
            if M: S.I(M[j])
            for r in split[j]: S.I(r, tag=f'R{kk}')
            if j != 1: S.run_bg(1)
    m1pos = {0: (0, 3), 1: (1, 4), 2: (2, 5), 3: (3, 5)} if opt.get('mdesync', 1) else {c: (4, 5) for c in range(4)}
    for kk in range(32):
        st, ks = kk >> 2, kk & 3
        if ks == 0:
            S.comment(f'stage {st}')
            tags = [f'S{st}'] + (['hst'] if st == 2 else [])
            S.wait(vm=tags, lg='all')
            S.I('s_barrier')
            if st == 0: stamp(S, opt, 2)
            if st == 4: stamp(S, opt, 3)
            if st == 2: set_flag(S, sA69)
            if st <= 5: S.push(x_ops(st + 2) + w_ops(st + 2))
            else:
                for q in range(4): S.push(b_ops(8 + 4*(st-6) + q))
            if st == 7:
                S.I(f's_lshr_b32 s3, s{sDT}, 1\ns_lshl_b32 s3, s3, 11\ns_add_u32 s3, s3, {FH}')
                S.I(f'v_lshlrev_b32 {v(vFLa)}, 3, v0\nv_add_u32 {v(vFLa)}, s3, {v(vFLa)}')
                S.I(f'buffer_load_dwordx2 {v(vFL,2)}, {v(vFLa)}, s[{RWS}:{RWS+3}], 0 offen sc1', tag='pollH')
        a_step(kk)
        if st <= 5 and ks == 3:
            for c in range(4):
                for _ in range(m1pos[c].count(st)): cond_block(c, m1_block)
        if kk == 26:
            S.I('v_and_b32 v6, 31, v1\nv_lshlrev_b32 v7, 2, v9\nv_sub_u32 v6, v6, v7')
            S.I('v_mov_b32 v7, 0x3f80\nv_mov_b32 v2, 0x3f800000\nv_mov_b32 v3, 0')
            for base, off in ((IP, 0), (IM, 16)):
                for jj in range(4):
                    f0 = ((2*jj) & 3) + 8*(jj >> 1) + off
                    S.I(f'v_cmp_eq_u32 vcc, {f0}, v6\nv_cmp_eq_u32 s[{sEX}:{sEX+1}], {f0+1}, v6\nv_cndmask_b32 {v(base+jj)}, v3, v7, vcc')
                    S.I(f'v_cndmask_b32 {v(base+jj)}, {v(base+jj)}, v2, s[{sEX}:{sEX+1}]')
        if kk == 29:
            for i in range(4): S.I(f'v_lshl_or_b32 {v(168+i)}, {v(181+2*i)}, 16, {v(180+2*i)}')
            for i in range(4):
                S.I(f'v_cndmask_b32 {v(WA+i)}, 0, {v(168+i)}, s[{sMASK}:{sMASK+1}]')
                S.I(f'v_cndmask_b32 {v(WB+i)}, {v(168+i)}, 0, s[{sMASK}:{sMASK+1}]')
    a_step(32)
    S.run_bg()
    stamp(S, opt, 4)
    S.I('s_barrier')
    poll(S, vFL, vFLa, 'pollH')
    for k in range(5): S.push(h_ops(k))
    for k in range(16, 19): S.push(b_ops(k))
    for k in range(5, 16): S.push(h_ops(k))
    S.run_bg(2)
    S.bg_every = opt.get('bgA', 15)
    KB = 128; P = 136; E = 152; T = 184; PHI = 192
    cvt8(S, KB, AK)
    S.I(f'{MF} {v(P,16)}, {v(WA,4)}, {v(KB,4)}, 0')
    S.I(f'{MF} {v(P,16)}, {v(WB,4)}, {v(KB+4,4)}, {v(P,16)}')
    VBF = 32; VA = 40; VB = 48
    cvt8(S, VBF, AV)
    for i in range(8):
        S.I(f'v_cndmask_b32 {v(VA+i)}, 0, {v(VBF+i)}, s[{sMASK}:{sMASK+1}]')
        S.I(f'v_cndmask_b32 {v(VB+i)}, {v(VBF+i)}, 0, s[{sMASK}:{sMASK+1}]')
    softmax_pm(S, P, E, T, PHI)
    DA, DB = E, E + 16
    S.I(f'{MF} {v(DA,16)}, {v(PHI,4)}, {v(IP,4)}, 0')
    S.I(f'{MF} {v(DB,16)}, {v(PHI+8,4)}, {v(IP,4)}, 0')
    S.I(f'{MF} {v(DA,16)}, {v(PHI+4,4)}, {v(IM,4)}, {v(DA,16)}')
    S.I(f'{MF} {v(DB,16)}, {v(PHI+12,4)}, {v(IM,4)}, {v(DB,16)}')
    cvt8(S, KB, AQ)
    S.I(f'{MF} {v(P,16)}, {v(WA,4)}, {v(KB,4)}, 0')
    S.I(f'{MF} {v(P,16)}, {v(WB,4)}, {v(KB+4,4)}, {v(P,16)}')
    PT = 208
    cvt8(S, PT, DA); cvt8(S, PT+8, DB)
    E1 = AK
    S.I(f'{MF} {v(E1,16)}, {v(PT,4)}, {v(VA,4)}, 0')
    S.I(f'{MF} {v(E1,16)}, {v(PT+4,4)}, {v(VA+4,4)}, {v(E1,16)}')
    S.I(f'{MF} {v(E1,16)}, {v(PT+8,4)}, {v(VB,4)}, {v(E1,16)}')
    S.I(f'{MF} {v(E1,16)}, {v(PT+12,4)}, {v(VB+4,4)}, {v(E1,16)}')
    zA, zB = T, T+1
    S.I(f'v_add_f32 {v(zA)}, {v(DA)}, {v(DA+1)}\nv_add_f32 {v(zB)}, {v(DB)}, {v(DB+1)}')
    for i in range(2, 16):
        S.I(f'v_add_f32 {v(zA)}, {v(zA)}, {v(DA+i)}\nv_add_f32 {v(zB)}, {v(zB)}, {v(DB+i)}')
    S.I(f'v_permlane32_swap_b32 {v(zA)}, {v(zB)}')
    S.I(f'v_add_f32 {v(zA)}, {v(zA)}, {v(zB)}')
    be = S.bg_every; S.bg_every = 0
    S.I(f's_and_b32 s3, s{sWAVE}, 1\ns_lshl_b32 s7, s{sQUAD}, 1\ns_add_u32 s3, s3, s7\ns_lshl_b32 s3, s3, 5\ns_add_u32 s3, s3, s{sSBLK}')
    S.I(f's_lshr_b32 s5, s{sWAVE}, 1')
    S.I(f's_lshl_b32 s7, s3, 1\ns_add_u32 s7, s7, s5\ns_lshl_b32 s7, s7, 3\ns_add_u32 s{sA69}, s7, {FKV}')
    S.I(f's_mul_i32 s3, s3, {KVB}\ns_add_u32 s{sA68}, s3, {KVP}')
    S.I('v_bfe_u32 v6, v1, 3, 2\nv_mul_u32_u24 v6, 1152, v6\nv_and_b32 v7, 7, v1\nv_lshl_add_u32 v6, v7, 2, v6\nv_lshl_add_u32 v6, v9, 5, v6')
    S.I('s_lshl_b32 s7, s5, 6\ns_add_u32 s7, s7, 1024\nv_add_u32 v6, s7, v6')
    S.I(f'buffer_store_dword {v(zA)}, v6, s[{RWS}:{RWS+3}], s{sA68} offen sc1', tag='kvst')
    S.bg_every = be
    KP, SD = 56, 96
    S.I(f's_cmp_eq_u32 s5, 0\ns_cselect_b64 s[{sEX}:{sEX+1}], -1, 0')
    for i in range(8):
        S.I(f'v_cndmask_b32 {v(SD+i)}, {v(E1+i)}, {v(E1+8+i)}, s[{sEX}:{sEX+1}]')
    KVX = slot_addr(11)
    S.I(f's_xor_b32 s3, s{sWAVE}, 2\ns_lshl_b32 s3, s3, 13\nv_add_u32 v6, s3, v5')
    S.I(f'ds_write_b128 v6, {v(SD,4)} offset:{KVX}', tag='kvx')
    S.I(f'ds_write_b128 v6, {v(SD+4,4)} offset:{KVX+1024}', tag='kvx')
    for i in range(8):
        S.I(f'v_cndmask_b32 {v(KP+i)}, {v(E1+8+i)}, {v(E1+i)}, s[{sEX}:{sEX+1}]')
    S.I(f'v_add_u32 v6, s{sMB}, v5')
    S.wait(lg='kvx')
    S.I('s_barrier')
    S.I(f'ds_read_b128 {v(SD,4)}, v6 offset:{KVX}', tag='kvr')
    S.I(f'ds_read_b128 {v(SD+4,4)}, v6 offset:{KVX+1024}', tag='kvr')
    S.I(f's_mul_i32 s3, s5, {2*1152}\ns_add_u32 s{sA68}, s{sA68}, s3')
    S.wait(lg='kvr')
    for i in range(8): S.I(f'v_add_f32 {v(KP+i)}, {v(KP+i)}, {v(SD+i)}')
    S.I(f'buffer_store_dwordx4 {v(KP,4)}, v5, s[{RWS}:{RWS+3}], s{sA68} offen sc1', tag='kvst')
    S.I(f'buffer_store_dwordx4 {v(KP+4,4)}, v5, s[{RWS}:{RWS+3}], s{sA68} offen offset:1152 sc1', tag='kvst')
    softmax_pm(S, P, E, T, PHIQ)
    S.bg_every = 0
    S.wait(vm='kvst')
    set_flag(S, sA69)
    S.run_bg()
    stamp(S, opt, 5)
    RW2, RWO = RX, RW
    srd(S, RW2, PW2, 1792*4096)
    srd(S, RWO, PWO, 512*1024)
    S.I(f's_lshr_b32 s4, s{sIDX}, 2\ns_mul_i32 s3, s4, 7\ns_lshr_b32 s3, s3, 1\ns_mul_i32 s7, s{sCLS}, 7\ns_add_u32 s3, s3, s7')
    S.I(f's_sub_u32 s7, s3, 28\ns_cmp_ge_u32 s3, 28\ns_cselect_b32 s{sK0}, s7, s3')
    S.I(f's_lshl_b32 s3, s{sCLS}, 1\ns_add_u32 s3, s3, s4\ns_and_b32 s{sK1}, s3, 7')
    if not opt.get('rot', 1): S.I(f's_mov_b32 s{sK0}, 0\ns_mov_b32 s{sK1}, 0')
    S.I(f's_mov_b32 s{sMX}, s{sK0}\ns_mov_b32 s{sMW}, s{sK1}')
    S.I(f's_mul_i32 s{sB0}, s{sWAVE}, {28*16*4096}\ns_lshl_b32 s3, s{sST}, 7\ns_add_u32 s{sB0}, s{sB0}, s3')
    S.I(f's_lshl_b32 s{sB1}, s{sWAVE}, 17\ns_lshl_b32 s3, s{sDT}, 7\ns_add_u32 s{sB1}, s{sB1}, s3')
    tr_addrs(vTy, 9, 'lo')

    def y_ops(slot, tag, nt=''):
        return pair_ops(tag, f's_lshl_b32 s4, s{sK0}, 16\ns_add_u32 m0, s{sMB}, {slot_addr(slot)}\ns_add_u32 s4, s4, s{sB0}\ns_add_u32 s{sK0}, s{sK0}, 1',
            f'buffer_load_dwordx4 {v(vYa)}, s[{RW2}:{RW2+3}], s4 offen {nt}lds',
            f'buffer_load_dwordx4 {v(vYb)}, s[{RW2}:{RW2+3}], s4 offen offset:1024 {nt}lds',
            f's_cmp_eq_u32 s{sK0}, 28\ns_cselect_b32 s{sK0}, 0, s{sK0}')
    def wo_ops(slot, tag):
        return pair_ops(tag, f's_lshl_b32 s4, s{sK1}, 14\ns_add_u32 m0, s{sMB}, {slot_addr(slot)}\ns_add_u32 s4, s4, s{sB1}\ns_add_u32 s{sK1}, s{sK1}, 1',
            f'buffer_load_dwordx4 {v(vOa)}, s[{RWO}:{RWO+3}], s4 offen lds',
            f'buffer_load_dwordx4 {v(vOb)}, s[{RWO}:{RWO+3}], s4 offen offset:1024 lds',
            f's_and_b32 s{sK1}, s{sK1}, 7')
    def run(ops):
        for _, f in ops: f()
    def y_dma(slot, tag, nt=''): run(y_ops(slot, tag, nt))
    def wo_dma(slot, tag): run(wo_ops(slot, tag))
    def m2_block(n):
        if n == 0:
            for q in range(4): y_dma(12 + q, None, ntW)
        else:
            for q in range(3): y_dma(16 + q, None, ntW)
            wo_dma(19, None)
    def y_blk(k): return (16 + k) if k < 16 else (k - 16)
    def tr_slot(dst, base, slot, tstep, tag):
        ad = slot_addr(slot); wdw = ad >> 16; so = ad & 0xffff
        for fr in range(2):
            for t in range(2):
                S.I(f'ds_read_b64_tr_b16 {dst(4*fr+2*t)}, {v(base+2*wdw+fr)} offset:{so+t*tstep}', tag=tag)

    class Plan: pass
    def make_plan():
        P_ = Plan()
        P_.slot_of = {k: 12 + k for k in range(7)}
        P_.wo_slot = {0: 19}
        P_.next_y = 7; P_.next_t = 0; P_.next_wo = 1
        P_.free = []
        P_.pending = []
        return P_
    def op_D(P_):
        if not P_.free and P_.pending:
            s_, tg = P_.pending.pop(0)
            S.wait(lg=tg)
            P_.free.append(s_)
        if not P_.free: return False
        if P_.next_y < 28:
            s_ = P_.free.pop(0); k = P_.next_y; P_.next_y += 1
            P_.slot_of[k] = s_
            y_dma(s_, f'Y{k}', ntH)
            return True
        if P_.next_wo < 8:
            s_ = P_.free.pop(0); k = P_.next_wo; P_.next_wo += 1
            P_.wo_slot[k] = s_
            wo_dma(s_, f'WO{k}')
            return True
        return False
    def op_T(P_):
        k = P_.next_t
        if k >= 28 or k >= P_.next_y: return False
        P_.next_t += 1
        S.wait(vm=f'Y{max(k,7)}')
        blk = y_blk(k)
        tr_slot(lambda o: a_(8*blk+o, 2), vTy, P_.slot_of[k], 1024, f'T{k}')
        P_.pending.append((P_.slot_of[k], f'T{k}'))
        return True

    S.I(f's_lshl_b32 s3, s{sFT}, 7\ns_lshr_b32 s4, s{sWAVE}, 1\ns_lshl_b32 s4, s4, 6\ns_add_u32 s3, s3, s4')
    S.I(f's_cmp_ge_u32 s{sIDX}, 28\ns_cbranch_scc1 L_reducer')
    vm_at_branch = list(S.vm)
    S.I('v_lshlrev_b32 v6, 3, v9\nv_add_u32 v6, s3, v6')
    B1R = 48
    for q in range(4):
        S.I(f'global_load_dwordx2 {v(B1R+2*q,2)}, v6, s[{PB1}:{PB1+1}] offset:{16*q}', tag='b1')

    def o_poll_issue():
        S.I(f's_lshl_b32 s3, s{sSBLK}, 6\ns_add_u32 s3, s3, {FH}')
        S.I('v_bfe_u32 v6, v1, 3, 2\nv_lshlrev_b32 v6, 11, v6\nv_and_b32 v7, 7, v1\nv_lshl_add_u32 v6, v7, 3, v6\nv_add_u32 v6, s3, v6')
        S.I(f's_and_b32 s3, s{sWAVE}, 1\ns_lshl_b32 s3, s3, 5\ns_lshl_b32 s7, s{sQUAD}, 6\ns_add_u32 s3, s3, s7\ns_add_u32 s3, s3, {FR}')
        S.I('v_and_b32 v7, 3, v1\nv_lshlrev_b32 v7, 3, v7\nv_add_u32 v7, s3, v7')
        S.I(f'v_cmp_gt_u32 vcc, 32, v1\nv_cndmask_b32 {v(vFLa)}, v7, v6, vcc')
        S.I(f'buffer_load_dwordx2 {v(vFL,2)}, {v(vFLa)}, s[{RWS}:{RWS+3}], 0 offen sc1', tag='pollO')

    PL = make_plan()
    m2pos = {c: (8 + 2*c, 15 + 2*c) for c in range(4)} if opt.get('mdesync', 1) else {c: (20, 21) for c in range(4)}
    def tr_list(dst, base, slot, tstep):
        ad = slot_addr(slot); wdw = ad >> 16; so = ad & 0xffff
        return [f'ds_read_b64_tr_b16 {dst(4*fr+2*t)}, {v(base+2*wdw+fr)} offset:{so+t*tstep}' for fr in range(2) for t in range(2)]
    def b_step(i):
        R = []; M = []
        j = i - 1
        if j >= 0:
            S.wait(vm=f'H{j}', lg=f'R{j}')
            p = j & 15; b = j & 1
            for i1 in range(2):
                for i0 in range(2):
                    c = v(ACC+16*(2*i1+i0), 16)
                    M.append(f'{MF} {c}, {v(AF+8*b+4*i1,4)}, {a_(8*p+4*i0,4)}, {c if j else 0}')
            if j >= 8 and j + 11 < 32: S.push(b_ops(j + 11))
            if j >= 1 and j + 15 < 32: S.push(h_ops(j + 15))
        if i < 32:
            b = i & 1
            R = tr_list(lambda o: v(AF+8*b+o, 2), vBr, b_slot(i), 512)
        for n in range(4):
            if M: S.I(M[n])
            if n == 0 and R: S.wait(vm=f'B{max(i,8)}')
            if n < 2:
                for r in R[2*n:2*n+2]: S.I(r, tag=f'R{i}')
            S.run_bg(1)
        if j >= 0:
            for c in range(4):
                for n in range(2):
                    if m2pos[c][n] == j: cond_block(c, lambda n=n: m2_block(n))
            if j >= 21:
                s_ = b_slot(j)
                if s_ not in (4, 5, 6, 7, 8, 9): PL.free.append(s_)
                if j == 22: PL.free.append(11)
                if j >= 22:
                    S.run_bg(); op_D(PL)
                if j >= 25: op_T(PL)
    for i in range(33): b_step(i)
    S.run_bg()
    stamp(S, opt, 6)
    S.I('s_barrier')
    lab = S.newlabel('L_noE')
    S.I(f's_lshl_b32 s3, s2, 2\ns_add_u32 s3, s3, s{sWAVE}\ns_cmp_lg_u32 s3, 0\ns_cbranch_scc1 {lab}')
    S.I('s_mov_b32 s3, 0')
    sv = list(S.vm); set_flag(S, 3); S.vm = sv
    S.label(lab)
    exchange(S, ACC)
    def bgop():
        op_T(PL); op_D(PL)
    S.bg = [bgop] * opt.get('nbgB', 6)
    S.bg_every = opt.get('bgB', 36)
    S.wait(vm='b1')
    Bf = 128
    for q in range(4):
        for h2 in range(2):
            S.I(f'v_lshlrev_b32 {v(Bf+4*q+2*h2)}, 16, {v(B1R+2*q+h2)}\nv_and_b32 {v(Bf+4*q+2*h2+1)}, 0xffff0000, {v(B1R+2*q+h2)}')
    for r in range(16): S.I(f'v_add_f32 {v(ACC+r)}, {v(ACC+r)}, {v(Bf+r)}')
    exchange_sum(S, ACC)
    k0 = 2 * math.sqrt(2 / math.pi) * math.log2(math.e); k1 = k0 * 0.044715
    S.I(f's_mov_b32 s7, {f2u(-k1):#x}\nv_mov_b32 v2, {f2u(-k0):#x}')
    Tm = 144
    for r in range(16): S.I(f'v_mul_f32 {v(Tm+r)}, {v(ACC+r)}, {v(ACC+r)}')
    for r in range(16): S.I(f'v_fma_f32 {v(Tm+r)}, {v(Tm+r)}, s7, v2')
    for r in range(16): S.I(f'v_mul_f32 {v(Tm+r)}, {v(Tm+r)}, {v(ACC+r)}')
    for r in range(16): S.I(f'v_exp_f32 {v(Tm+r)}, {v(Tm+r)}')
    for r in range(16): S.I(f'v_add_f32 {v(Tm+r)}, 1.0, {v(Tm+r)}')
    for r in range(16): S.I(f'v_rcp_f32 {v(Tm+r)}, {v(Tm+r)}')
    for r in range(16): S.I(f'v_mul_f32 {v(ACC+r)}, {v(ACC+r)}, {v(Tm+r)}')
    cvt8(S, Bf, ACC)
    S.bg = []; S.bg_every = 0
    S.I(f's_lshl_b32 s3, s{sFT}, 16\ns_lshr_b32 s4, s{sWAVE}, 1\ns_lshl_b32 s4, s4, 15\ns_add_u32 s3, s3, s4\ns_lshl_b32 s4, s{sDT}, 11\ns_add_u32 s3, s3, s4')
    S.I(f's_and_b32 s4, s{sWAVE}, 1\ns_lshl_b32 s4, s4, 10\ns_add_u32 s3, s3, s4\ns_add_u32 s3, s3, {UF}\ns_add_u32 s4, s3, 16384')
    S.I(f'buffer_store_dwordx4 {v(Bf,4)}, v5, s[{RWS}:{RWS+3}], s3 offen sc1', tag='ust')
    S.I(f'buffer_store_dwordx4 {v(Bf+4,4)}, v5, s[{RWS}:{RWS+3}], s4 offen sc1', tag='ust')
    o_poll_issue()
    PL.free += [4, 5, 6, 7, 8, 9]
    for _ in range(3): op_D(PL)
    S.I(f's_mul_i32 s3, s{sDT}, 28\ns_add_u32 s3, s3, s{sFT}\ns_lshl_b32 s3, s3, 2\ns_add_u32 s3, s3, s{sWAVE}\ns_lshl_b32 s3, s3, 3\ns_add_u32 s{sA69}, s3, {FU}')
    S.wait(vm='ust')
    set_flag(S, sA69)
    S.I('s_branch L_join')
    main_vm = list(S.vm); main_lg = list(S.lg)

    S.label('L_reducer')
    S.hist = []; S.vm = vm_at_branch; S.lg = []
    sHD = sK2
    S.I(f's_lshl_b32 s{sHD}, s{sXCD}, 2\ns_add_u32 s{sHD}, s{sHD}, s{sIDX}\ns_sub_u32 s{sHD}, s{sHD}, 28')
    S.wait(vm='all')
    m2_block(0); m2_block(1)
    S.I(f's_lshr_b32 s3, s{sHD}, 1\ns_lshl_b32 s4, s3, 9\ns_add_u32 s4, s4, {FKV}')
    S.I(f'v_lshlrev_b32 {v(vFLa)}, 3, v1\nv_add_u32 {v(vFLa)}, s4, {v(vFLa)}')
    S.I(f'buffer_load_dwordx2 {v(vFL,2)}, {v(vFLa)}, s[{RWS}:{RWS+3}], 0 offen sc1', tag='pollKV')
    S.I(f's_and_b32 s5, s{sHD}, 1')
    S.I('v_and_b32 v6, 15, v1\nv_lshl_add_u32 v6, v9, 5, v6\nv_lshlrev_b32 v6, 4, v6\ns_lshl_b32 s4, s5, 8\nv_add_u32 v6, s4, v6')
    S.I('v_bfe_u32 v7, v1, 3, 1\nv_lshlrev_b32 v7, 6, v7\nv_lshl_add_u32 v7, v9, 4, v7\ns_lshl_b32 s4, s5, 5\ns_add_u32 s4, s4, 1024\nv_add_u32 v7, s4, v7')
    S.I(f'v_cndmask_b32 v6, v7, v6, s[{sMASK}:{sMASK+1}]')
    S.I(f's_lshl_b32 s3, s3, 5\ns_lshl_b32 s4, s{sWAVE}, 3\ns_add_u32 s3, s3, s4\ns_mul_i32 s3, s3, {KVB}\ns_add_u32 s{sA68}, s3, {KVP}')
    poll(S, vFL, vFLa, 'pollKV')
    stamp(S, opt, 6)
    RB = 64
    for sb in range(8):
        for q in range(4):
            S.I(f'buffer_load_dwordx4 {v(RB+16*sb+4*q,4)}, v6, s[{RWS}:{RWS+3}], s{sA68} offen offset:{q*1152} sc1', tag=f'P{sb}')
        S.I(f's_add_u32 s{sA68}, s{sA68}, {KVB}')
    for sb in range(1, 8):
        S.wait(vm=f'P{sb}')
        for r in range(16): S.I(f'v_add_f32 {v(RB+r)}, {v(RB+r)}, {v(RB+16*sb+r)}')
    S.I(f'v_add_u32 v6, s{sMB}, v5')
    for q in range(4): S.I(f'ds_write_b128 v6, {v(RB+4*q,4)} offset:{q*1024}', tag='rw')
    S.wait(lg='rw')
    S.I('s_barrier')
    S.I(f's_lshl_b32 s3, s{sWAVE}, 11\ns_and_b32 s3, s3, 2048\nv_add_u32 v6, s3, v5')
    for src in range(4):
        for q2 in range(2):
            S.I(f'ds_read_b128 {v(RB+8*src+4*q2,4)}, v6 offset:{src*8192+q2*1024}', tag='rr')
    S.wait(lg='rr')
    S.I('s_barrier')
    S.I(f's_cmp_ge_u32 s{sWAVE}, 2\ns_cbranch_scc1 L_red_done')
    for src in range(1, 4):
        for r in range(8): S.I(f'v_add_f32 {v(RB+r)}, {v(RB+r)}, {v(RB+8*src+r)}')
    for r in range(8):
        S.I(f'v_add_f32_dpp {v(RB+r)}, {v(RB+r)}, {v(RB+r)} row_ror:8 row_mask:0xa bank_mask:0xf')
    cvt8(S, RB+8, RB, 4)
    S.I(f's_lshl_b32 s3, s{sHD}, 1\ns_add_u32 s3, s3, s{sWAVE}\ns_lshl_b32 s4, s3, 10\ns_add_u32 s4, s4, {KVF}\ns_lshl_b32 s3, s3, 3\ns_add_u32 s{sA69}, s3, {FR}')
    S.I(f'buffer_store_dwordx4 {v(RB+8,4)}, v5, s[{RWS}:{RWS+3}], s4 offen sc1', tag='kvf')
    S.wait(vm='kvf')
    set_flag(S, sA69)
    S.label('L_red_done')
    S.hist = []; S.vm = []; S.lg = []
    S.raw('    s_waitcnt vmcnt(0) lgkmcnt(0)')
    tdone = 0
    for k in range(7, PL.next_y):
        s_ = PL.slot_of[k]
        prev = [kk for kk in range(k) if PL.slot_of[kk] == s_]
        if prev:
            while tdone <= prev[-1]:
                S.wait(vm='all')
                blk = y_blk(tdone)
                tr_slot(lambda o: a_(8*blk+o, 2), vTy, PL.slot_of[tdone], 1024, 'Tr')
                tdone += 1
            S.wait(lg='all')
        y_dma(s_, f'Y{k}')
    assert PL.next_wo == 1
    S.wait(vm='all')
    while tdone < PL.next_t:
        blk = y_blk(tdone)
        tr_slot(lambda o: a_(8*blk+o, 2), vTy, PL.slot_of[tdone], 1024, 'Tr')
        tdone += 1
    assert tdone == PL.next_t
    o_poll_issue()
    S.raw('    s_waitcnt vmcnt(0) lgkmcnt(0)')

    S.label('L_join')
    S.hist = []; S.vm = main_vm; S.lg = main_lg
    stamp(S, opt, 7)
    tr_addrs(vTa, 9, 'hi')
    poll(S, vFL, vFLa, 'pollO')
    S.I(f's_and_b32 s3, s{sWAVE}, 1\ns_lshl_b32 s3, s3, 1\ns_lshl_b32 s4, s{sQUAD}, 2\ns_add_u32 s5, s3, s4\ns_lshl_b32 s3, s5, 11\ns_add_u32 s3, s3, {KVF}')
    for i in range(4):
        S.I(f'buffer_load_dwordx4 {v(32+4*i,4)}, v5, s[{RWS}:{RWS+3}], s3 offen offset:{i*1024} sc1', tag='kvf')
    S.I(f's_lshl_b32 s3, s{sSBLK}, 1\ns_lshr_b32 s4, s{sWAVE}, 1\ns_add_u32 s6, s3, s4\ns_lshl_b32 s3, s6, 7\ns_add_u32 s3, s3, {G_}')
    S.I('v_and_b32 v6, 31, v1\nv_lshlrev_b32 v6, 2, v6')
    S.I(f'buffer_load_dword v7, v6, s[{RWS}:{RWS+3}], s3 offen sc1', tag='kvf')
    S.I(f's_lshl_b32 s3, s5, 16\ns_lshl_b32 s4, s6, 10\ns_add_u32 s3, s3, s4\ns_add_u32 s{sA68}, s3, {OF}\ns_add_u32 s7, s{sA68}, 65536')
    S.I(f's_lshl_b32 s3, s{sSBLK}, 3\ns_add_u32 s3, s3, s{sQUAD}\ns_lshl_b32 s3, s3, 2\ns_add_u32 s3, s3, s{sWAVE}\ns_lshl_b32 s3, s3, 3\ns_add_u32 s{sA69}, s3, {FO}')
    for _ in range(3): op_D(PL)
    for _ in range(3): op_T(PL)
    S.wait(vm='kvf')
    for hb in range(2):
        O = 64 + 16*hb
        S.I(f'{MF} {v(O,16)}, {v(32+8*hb,4)}, {v(PHIQ+8*hb,4)}, 0')
        S.I(f'{MF} {v(O,16)}, {v(36+8*hb,4)}, {v(PHIQ+8*hb+4,4)}, {v(O,16)}')
    op_D(PL); op_D(PL)
    for hb in range(2):
        O = 64 + 16*hb
        S.I(f'v_add_f32 {v(O+8)}, {f2u(1e-6):#x}, {v(O+8)}\nv_rcp_f32 {v(O+8)}, {v(O+8)}\nv_mul_f32 {v(O+8)}, v7, {v(O+8)}')
        for r in range(8): S.I(f'v_mul_f32 {v(O+r)}, {v(O+8)}, {v(O+r)}')
        cvt8(S, O+12, O, 4)
        S.I(f'buffer_store_dwordx4 {v(O+12,4)}, v5, s[{RWS}:{RWS+3}], s{sA68 if hb == 0 else 7} offen sc1', tag='ost')
    n = 0
    flagged = False
    while True:
        d = op_D(PL); t = op_T(PL)
        n += 1
        if n == 4 and not flagged:
            S.wait(vm='ost'); set_flag(S, sA69); flagged = True
        if not d and not t: break
        if PL.next_y == 28 and PL.next_wo == 8: break
    if not flagged:
        S.wait(vm='ost'); set_flag(S, sA69)
    S.I(f's_mul_i32 s3, s{sDT}, {28*32}\ns_mul_i32 s4, s{sWAVE}, {7*32}\ns_add_u32 s3, s3, s4\ns_add_u32 s3, s3, {FU}')
    S.I('v_min_u32 v6, 27, v1\nv_lshlrev_b32 v6, 3, v6\nv_add_u32 v6, s3, v6')
    S.I(f's_lshl_b32 s3, s{sST}, 6\ns_add_u32 s3, s3, {FH}')
    S.I('v_bfe_u32 v7, v1, 3, 2\nv_lshlrev_b32 v7, 11, v7\nv_and_b32 v2, 7, v1\nv_lshl_add_u32 v7, v2, 3, v7\nv_add_u32 v7, s3, v7')
    S.I(f'v_cmp_gt_u32 vcc, 32, v1\nv_cndmask_b32 {v(vFLa)}, v7, v6, vcc')
    S.I(f'buffer_load_dwordx2 {v(vFL,2)}, {v(vFLa)}, s[{RWS}:{RWS+3}], 0 offen sc1', tag='pollU')
    while op_T(PL): pass
    sKU, sKO, sBU, sBO = sMX, sMW, sB2, sB3
    S.I(f's_mul_i32 s{sBU}, s{sWAVE}, {28*16384}\ns_lshl_b32 s3, s{sDT}, 11\ns_add_u32 s{sBU}, s{sBU}, s3\ns_add_u32 s{sBU}, s{sBU}, {UF}')
    S.I(f's_lshl_b32 s{sBO}, s{sWAVE}, 19\ns_lshl_b32 s3, s{sST}, 11\ns_add_u32 s{sBO}, s{sBO}, s3\ns_add_u32 s{sBO}, s{sBO}, {OF}')
    ROUT = RW1
    srd(S, ROUT, POUT, 2048*1024)
    poll(S, vFL, vFLa, 'pollU')
    stamp(S, opt, 8)
    DR = 128; ND = 12
    def direct_ops(i):
        r = DR + 8 * (i % ND)
        if i < 28:
            return pair_ops(f'U{i}', f's_lshl_b32 s4, s{sKU}, 14\ns_add_u32 s4, s4, s{sBU}\ns_add_u32 s{sKU}, s{sKU}, 1',
                f'buffer_load_dwordx4 {v(r,4)}, {v(vD0)}, s[{RWS}:{RWS+3}], s4 offen sc1',
                f'buffer_load_dwordx4 {v(r+4,4)}, {v(vD1)}, s[{RWS}:{RWS+3}], s4 offen sc1',
                f's_cmp_eq_u32 s{sKU}, 28\ns_cselect_b32 s{sKU}, 0, s{sKU}')
        return pair_ops(f'U{i}', f's_lshl_b32 s4, s{sKO}, 16\ns_add_u32 s4, s4, s{sBO}\ns_add_u32 s{sKO}, s{sKO}, 1',
                f'buffer_load_dwordx4 {v(r,4)}, {v(vH0)}, s[{RWS}:{RWS+3}], s4 offen sc1',
                f'buffer_load_dwordx4 {v(r+4,4)}, {v(vH1)}, s[{RWS}:{RWS+3}], s4 offen sc1',
                f's_and_b32 s{sKO}, s{sKO}, 7')
    PD = opt.get('pdC', 6)
    for i in range(PD): run(direct_ops(i))
    S.I(f's_lshl_b32 s3, s{sST}, 8\ns_add_u32 s3, s3, {G_}')
    S.I(f's_and_b32 s4, s{sWAVE}, 1\ns_lshl_b32 s4, s4, 7\nv_and_b32 v6, 31, v1\nv_lshlrev_b32 v6, 2, v6\nv_add_u32 v6, s4, v6\nv_xor_b32 v7, 0x80, v6')
    S.I(f'buffer_load_dword v10, v6, s[{RWS}:{RWS+3}], s3 offen sc1', tag='g')
    S.I(f'buffer_load_dword v11, v7, s[{RWS}:{RWS+3}], s3 offen sc1', tag='g')
    S.I(f's_lshl_b32 s3, s{sST}, 7\nv_lshrrev_b32 v6, 1, v6\nv_add_u32 v6, s3, v6')
    S.I(f'global_load_ushort v12, v6, s[{PB2}:{PB2+1}]', tag='g')
    S.I(f's_lshl_b32 s3, s{sST}, 8\ns_lshl_b32 s4, s{sWAVE}, 6\ns_add_u32 s3, s3, s4\ns_add_u32 s3, s3, {FO}')
    S.I(f'v_and_b32 v6, 7, v1\nv_lshlrev_b32 v6, 3, v6\nv_add_u32 {v(vFLa)}, s3, v6')
    S.wait(lg='all')
    for i in range(36):
        r = DR + 8 * (i % ND)
        if i == 28 - PD - 4:
            S.I(f'buffer_load_dwordx2 {v(vFL,2)}, {v(vFLa)}, s[{RWS}:{RWS+3}], 0 offen sc1', tag='pollO2')
        if i >= 27 and i + 1 < 36:
            j = i + 1 - 28
            b = j & 1
            tr_slot(lambda o: v(AF+8*b+o, 2), vTa, PL.wo_slot[j], 1024, f'R{i+1}')
        S.wait(vm=f'U{i}', lg=(f'R{i}' if i >= 28 else None))
        if i + PD == 28:
            poll(S, vFL, vFLa, 'pollO2')
        if i + PD < 36: S.push(direct_ops(i + PD))
        for i1 in range(2):
            for i0 in range(2):
                c = v(ACC+16*(2*i1+i0), 16)
                if i < 28:
                    S.I(f'{MF} {c}, {v(r+4*i1,4)}, {a_(8*y_blk(i)+4*i0,4)}, {c if i else 0}')
                else:
                    b = (i - 28) & 1
                    S.I(f'{MF} {c}, {v(AF+8*b+4*i1,4)}, {v(r+4*i0,4)}, {c}')
                if i0 == 0: S.run_bg(1)
        if i == 27:
            S.wait(vm='g')
            S.I('v_sub_f32 v10, 1.0, v10\nv_sub_f32 v11, 1.0, v11\nv_lshlrev_b32 v12, 16, v12\nv_mul_f32 v12, v10, v12')
            for t in range(4):
                for rr in range(16):
                    S.I(f'v_mul_f32 {v(ACC+16*t+rr)}, {v(10+(t&1))}, {v(ACC+16*t+rr)}')
    stamp(S, opt, 9)
    S.I('s_barrier')
    exchange(S, ACC)
    S.I(f's_lshl_b32 s3, s{sST}, 16\ns_and_b32 s4, s{sWAVE}, 1\ns_lshl_b32 s4, s4, 15\ns_add_u32 s3, s3, s4\ns_lshl_b32 s4, s{sDT}, 7\ns_add_u32 s3, s3, s4\ns_lshr_b32 s4, s{sWAVE}, 1\ns_lshl_b32 s4, s4, 6\ns_add_u32 s3, s3, s4')
    S.I('v_and_b32 v6, 31, v1\nv_lshlrev_b32 v6, 10, v6\nv_lshl_add_u32 v6, v9, 4, v6')
    for r in range(16): S.I(f'v_add_f32 {v(ACC+r)}, {v(ACC+r)}, v12')
    exchange_sum(S, ACC)
    cvt8(S, 32, ACC)
    for qp in range(2):
        b = 32 + 4*qp
        S.I(f'v_permlane32_swap_b32 {v(b)}, {v(b+2)}')
        S.I(f'v_permlane32_swap_b32 {v(b+1)}, {v(b+3)}')
        S.I(f'buffer_store_dwordx4 {v(b,4)}, v6, s[{ROUT}:{ROUT+3}], s3 offen offset:{32*qp}', tag='out')
    stamp_out(S, opt)
    S.label('L_end')
    S.I('s_endpgm')

def build(opt):
    hdr = open(f'cdna_kernels/{NAME}.s.ref').read().split('\n')
    top = [l for l in hdr if l.startswith(';') and '@launch' not in l and 'Override launch' not in l and 'grid=ceil' not in l]
    out = '\n'.join(top) + '\n'
    out += f'; @launch grid=(256,1,1) block=(256,1,1) lds={LDS_TOTAL}\n'
    out += '.amdgcn_target "amdgcn-amd-amdhsa--gfx950"\n.text\n'
    name = NAME + '_kernel'
    S = Stream()
    gen(S, opt)
    out += f'.globl {name}\n.p2align 8\n.type {name},@function\n{name}:\n' + S.text()
    print('lines', len(S.out), 'nops', S.nnop, file=sys.stderr)
    out += '.p2align 8\n.fill 2048, 4, 0xbf800000\n'
    out += f'''.section .rodata,"a"
.p2align 6
.amdhsa_kernel {name}
  .amdhsa_next_free_vgpr 512
  .amdhsa_next_free_sgpr 102
  .amdhsa_accum_offset 256
  .amdhsa_group_segment_fixed_size 0
  .amdhsa_kernarg_size 104
  .amdhsa_user_sgpr_count 2
  .amdhsa_user_sgpr_kernarg_segment_ptr 1
  .amdhsa_system_sgpr_workgroup_id_x 1
.end_amdhsa_kernel
'''
    return out

if __name__ == '__main__':
    opt = {}
    for a in sys.argv[2:]:
        k, x = a.split('=')
        opt[k] = int(x)
    open(sys.argv[1], 'w').write(build(opt))
```

```python
import sys, math, struct
from asmlib import Stream

NAME = 'gated_mix__linear_kernel_hedgehog__mixer_token_mlp__prompt'
MB = 1 << 20
WS_E = 0
KVF = 0x10000
FR = 0x30000
FH = 0x40000
FKV = 0x60000
FU = 0x80000
FO = 0xA0000
G_ = 0xC0000
HF = 1 * MB
KVP = 3 * MB
OF = 6 * MB
UF = 8 * MB
STAMP_BASE = 12 * MB
WS_SIZE = 16 * MB
KVB = 4608
LOG2E = 0x3fb8aa3b
SPIN_MAX = 50000
LDS_TOTAL = 163840

def f2u(x): return struct.unpack('<I', struct.pack('<f', x))[0]
def v(a, n=1): return f'v{a}' if n == 1 else f'v[{a}:{a+n-1}]'
def a_(a, n=1): return f'a{a}' if n == 1 else f'a[{a}:{a+n-1}]'
MF = 'v_mfma_f32_32x32x16_bf16'

PX, PWQKV, PWPHI, PWO, PW1, PB1, PW2, PB2, PGW, POUT, PWS = 36, 38, 40, 42, 46, 48, 50, 52, 54, 56, 60
RX, RW, RWS, RW1 = 8, 12, 16, 20
RH = 64
sWAVE, sSBLK, sQUAD, sDT, sFT, sIDX, sXCD, sST = 24, 25, 26, 27, 28, 29, 30, 31
sB0, sB1, sK0, sK1 = 32, 33, 34, 35
TAG = 62
sC = 68
sMASK = 70
sEX = 72
sMB = 74
sCLS = 75
sA68, sA69 = 76, 77
sB2, sK2, sB3, sK3 = 44, 45, 58, 59
sMS = 69
sMX, sMW = 78, 79
AREA = [2, 0, 1, 3, 4]
def slot_addr(t): return AREA[t >> 2] * 32768 + (t & 3) * 2048

def srd(S, d, lo, nbytes):
    S.I(f's_mov_b32 s{d}, s{lo}\ns_mov_b32 s{d+1}, s{lo+1}\ns_mov_b32 s{d+2}, {nbytes}\ns_mov_b32 s{d+3}, 0x00020000')

def poll(S, vdata, vaddr, first_tag=None):
    ok = S.newlabel('L_ok'); lp = S.newlabel('L_spin')
    S.wait(vm=first_tag)
    S.I(f'v_cmp_ne_u64 vcc, s[{TAG}:{TAG+1}], {v(vdata,2)}')
    S.I('s_nop 4')
    S.I(f's_cbranch_vccz {ok}')
    S.I(f's_mov_b32 s3, {SPIN_MAX}')
    S.label(lp)
    S.I('s_sleep 2')
    S.raw(f'    buffer_load_dwordx2 {v(vdata,2)}, {v(vaddr)}, s[{RWS}:{RWS+3}], 0 offen sc1')
    S.raw('    s_waitcnt vmcnt(0)')
    S.I(f'v_cmp_ne_u64 vcc, s[{TAG}:{TAG+1}], {v(vdata,2)}')
    S.I('s_sub_u32 s3, s3, 1')
    S.I('s_cmp_eq_u32 s3, 0')
    S.I(f's_cbranch_scc1 {ok}')
    S.I('s_nop 2')
    S.I(f's_cbranch_vccnz {lp}')
    S.label(ok)

def set_flag(S, soff, vt=2):
    S.I(f'v_mov_b32 {v(vt)}, s{TAG}\nv_mov_b32 {v(vt+1)}, s{TAG+1}\nv_mov_b32 {v(vt+2)}, 0')
    S.I('s_mov_b64 exec, 1')
    S.I(f'buffer_store_dwordx2 {v(vt,2)}, {v(vt+2)}, s[{RWS}:{RWS+3}], s{soff} offen sc1', tag='flag')
    S.I('s_mov_b64 exec, -1')

def allreduce64(S, regs, tmp):
    for sh in (8, 4, 2, 1):
        for r in regs:
            S.I(f'v_add_f32_dpp {v(r)}, {v(r)}, {v(r)} row_ror:{sh} row_mask:0xf bank_mask:0xf')
    for op in ('v_permlane16_swap_b32', 'v_permlane32_swap_b32'):
        for r, t in zip(regs, tmp): S.I(f'v_mov_b32 {v(t)}, {v(r)}')
        for r, t in zip(regs, tmp): S.I(f'{op} {v(r)}, {v(t)}')
        for r, t in zip(regs, tmp): S.I(f'v_add_f32 {v(r)}, {v(r)}, {v(t)}')

def pair_allreduce2(S, pairs, post):
    for ra, rb, op in pairs: S.I(f'v_permlane32_swap_b32 {v(ra)}, {v(rb)}')
    for ra, rb, op in pairs: S.I(f'{op} {v(ra)}, {v(ra)}, {v(rb)}')
    for ra, rb, op in pairs: post(ra)
    for ra, rb, op in pairs: S.I(f'v_mov_b32 {v(rb)}, {v(ra)}')
    for ra, rb, op in pairs: S.I(f'v_permlane32_swap_b32 {v(ra)}, {v(rb)}')

def softmax_pm(S, P, E, T, OUT):
    mxA, mxB, mnA, mnB = T, T+1, T+2, T+3
    q4 = ((mxA, P, 'max'), (mxB, P+8, 'max'), (mnA, P, 'min'), (mnB, P+8, 'min'))
    for m, base, o in q4: S.I(f'v_{o}3_f32 {v(m)}, {v(base)}, {v(base+1)}, {v(base+2)}')
    for k in (3, 5):
        for m, base, o in q4: S.I(f'v_{o}3_f32 {v(m)}, {v(m)}, {v(base+k)}, {v(base+k+1)}')
    for m, base, o in q4: S.I(f'v_{o}_f32 {v(m)}, {v(m)}, {v(base+7)}')
    pair_allreduce2(S, [(mxA, mxB, 'v_max_f32'), (mnA, mnB, 'v_min_f32')], lambda r: S.I(f'v_mul_f32 {v(r)}, s{sC}, {v(r)}'))
    for hb, (mx, mn) in enumerate(((mxA, mnA), (mxB, mnB))):
        for i in range(8):
            S.I(f'v_fma_f32 {v(E+16*hb+i)}, {v(P+8*hb+i)}, s{sC}, -{v(mx)}')
            S.I(f'v_fma_f32 {v(E+16*hb+8+i)}, -{v(P+8*hb+i)}, s{sC}, {v(mn)}')
        for i in range(16):
            S.I(f'v_exp_f32 {v(E+16*hb+i)}, {v(E+16*hb+i)}')
    sm = [T+4, T+5, T+6, T+7]
    for g in range(4): S.I(f'v_add_f32 {v(sm[g])}, {v(E+8*g)}, {v(E+8*g+1)}')
    for i in range(2, 8):
        for g in range(4): S.I(f'v_add_f32 {v(sm[g])}, {v(sm[g])}, {v(E+8*g+i)}')
    pair_allreduce2(S, [(sm[0], sm[1], 'v_add_f32'), (sm[2], sm[3], 'v_add_f32')], lambda r: S.I(f'v_rcp_f32 {v(r)}, {v(r)}'))
    for g in range(4):
        for i in range(8): S.I(f'v_mul_f32 {v(E+8*g+i)}, {v(sm[g])}, {v(E+8*g+i)}')
        for i in range(4): S.I(f'v_cvt_pk_bf16_f32 {v(OUT+4*g+i)}, {v(E+8*g+2*i)}, {v(E+8*g+2*i+1)}')

def cvt8(S, dst, src, n=8):
    for i in range(n): S.I(f'v_cvt_pk_bf16_f32 {v(dst+i)}, {v(src+2*i)}, {v(src+2*i+1)}')

NSTAMP = 11
SSETS = {
 0: [0,1,2,3,4,5,6,7,8,9],
 1: [0,'Aw0','A0','Aw1','A1','Aw2','A2','Aw3','A3','Aw4'],
 2: [0,5,'B0','B4','Bkv','B8','B12','B16','B22','B28'],
 3: [0,6,'x1','x2','ust','ua',7,'qs','po','kvf'],
 4: [0,'kvf','ost','dd','td','oa',8,'C4','C12','C24'],
 5: [0,'A4','Aw5','A5','Aw6','A6','hp0','hp1','A7',4],
}
def stamp(S, opt, k, early=False):
    if early or not opt.get('stamps'): return
    L = SSETS[opt.get('sset', 0)]
    if k in L:
        n = L.index(k)
        S.I(f'{"s_memtime" if opt.get("stamps") == 2 else "s_memrealtime"} s[{80+2*n}:{81+2*n}]')
def stamp_out(S, opt):
    if opt.get('stamps'):
        n = NSTAMP - 1
        S.I('s_waitcnt vmcnt(0) lgkmcnt(0)')
        S.I(f'{"s_memtime" if opt.get("stamps") == 2 else "s_memrealtime"} s[{80+2*n}:{81+2*n}]')
        S.I('s_waitcnt lgkmcnt(0)')
        S.I('v_mov_b32 v2, 0')
        for k in range(n + 1): S.I(f'v_writelane_b32 v2, s{80+2*k}, {k}')
        S.I(f's_lshl_b32 s3, s2, 2\ns_add_u32 s3, s3, s{sWAVE}\ns_lshl_b32 s3, s3, 6\ns_add_u32 s3, s3, {STAMP_BASE}')
        S.I('v_lshlrev_b32 v3, 2, v1')
        S.I('s_mov_b64 exec, 0xffff')
        S.I(f'buffer_store_dword v2, v3, s[{RWS}:{RWS+3}], s3 offen')

INBOX = [slot_addr(4), slot_addr(6), slot_addr(8)]
def exchange(S, ACC):
    for i in range(1, 4):
        S.I(f's_xor_b32 s3, s{sWAVE}, {i}\ns_lshl_b32 s3, s3, 13\nv_add_u32 v6, s3, v5')
        for q in range(4):
            S.I(f'ds_write_b128 v6, {v(ACC+16*i+4*q,4)} offset:{INBOX[i-1]+q*1024}', tag='xw')
    S.I(f'v_add_u32 v7, s{sMB}, v5')
    S.wait(lg='xw')
    S.I('s_barrier')
    for i in range(1, 4):
        for q in range(4):
            S.I(f'ds_read_b128 {v(ACC+16*i+4*q,4)}, v7 offset:{INBOX[i-1]+q*1024}', tag=f'xr{i}')
def exchange_sum(S, ACC):
    for i in range(1, 4):
        S.wait(lg=f'xr{i}')
        for r in range(16): S.I(f'v_add_f32 {v(ACC+r)}, {v(ACC+r)}, {v(ACC+16*i+r)}')

def gen(S, opt):
    ROT = opt.get('rot', 1)
    vXa, vXb, vW, vW2 = 10, 11, 12, 13
    vW1a, vW1b, vYa, vYb, vOa, vOb = 14, 15, 16, 17, 18, 19
    vH0, vH1, vD0, vD1 = 20, 21, 22, 23
    vXr = 24
    vWr = 224
    vBr = 226
    vTy, vTa = 24, 226
    vLP = 8
    FR_ = 32
    AQ, AK, AV = 80, 96, 112
    IP, IM = 216, 220
    QB, WA, WB = 240, 248, 252
    vFL, vFLa = 236, 238
    ACC = 64; AF = 32

    def NT(cond, bit): return 'nt ' if cond and (opt.get('ntlast', 0) & bit) else ''
    def pair_ops(tag, pre, l0, l1, post):
        def f0():
            S.I(pre); S.I(l0, tag=tag)
        def f1():
            S.I(l1, tag=tag); S.I(post)
        return [(tag, f0), (tag, f1)]
    def run(ops):
        for o in ops: (o[1] if isinstance(o, tuple) else o)()
    def cond_block(cls, body):
        S.run_bg()
        lab = S.newlabel('L_skip')
        S.I(f's_cmp_lg_u32 s{sCLS}, {cls}\ns_cbranch_scc1 {lab}')
        sv = list(S.vm)
        body()
        S.vm = sv
        S.label(lab)

    S.I('s_cmp_ge_u32 s2, 256\ns_cbranch_scc1 L_end')
    stamp(S, opt, 0)
    S.I('s_load_dwordx16 s[36:51], s[0:1], 0')
    S.I('s_load_dwordx8 s[52:59], s[0:1], 64')
    S.I('s_load_dwordx2 s[60:61], s[0:1], 96')
    S.I('s_getpc_b64 s[66:67]')
    S.I(f's_and_b32 s{sXCD}, s2, 7\ns_lshr_b32 s{sIDX}, s2, 3')
    S.I(f's_and_b32 s4, s{sIDX}, 7\ns_lshl_b32 s3, s4, 12')
    S.I('v_lshl_add_u32 v7, v0, 4, s3')
    S.I('global_load_dwordx4 v[232:235], v7, s[66:67]', tag='cpf')
    S.I('v_and_b32 v1, 63, v0\nv_lshrrev_b32 v2, 6, v0')
    S.I(f's_lshr_b32 s3, s{sXCD}, 1\ns_lshl_b32 s3, s3, 3\ns_add_u32 s{sSBLK}, s3, s4')
    S.I(f'v_readfirstlane_b32 s{sWAVE}, v2')
    S.I('v_lshrrev_b32 v2, 3, v1\nv_and_b32 v3, 7, v1\nv_lshrrev_b32 v4, 4, v1')
    S.I(f's_and_b32 s3, s{sXCD}, 1\ns_lshl_b32 s3, s3, 2\ns_lshr_b32 s7, s{sIDX}, 3\ns_add_u32 s{sQUAD}, s3, s7')
    RA = opt.get('rotA', 8)
    if RA == 8:   S.I(f's_lshl_b32 s7, s7, 1\ns_add_u32 s{sK0}, s7, s4\ns_and_b32 s{sK0}, s{sK0}, 7')
    elif RA == 4: S.I(f's_add_u32 s{sK0}, s7, s4\ns_and_b32 s{sK0}, s{sK0}, 3')
    else:         S.I(f's_mov_b32 s{sK0}, 0')
    S.I(f's_lshl_b32 s5, s{sSBLK}, 16\ns_lshl_b32 s6, s{sQUAD}, 13\ns_add_u32 s6, s6, s5\ns_lshl_b32 s{sMX}, s{sWAVE}, 11\ns_add_u32 s6, s6, s{sMX}')
    S.I('v_lshlrev_b32 v5, 4, v1')
    S.I(f'v_xor_b32 v6, v3, v4\nv_lshlrev_b32 v6, 4, v6\nv_lshl_add_u32 {v(vXa)}, v2, 10, v6')
    S.I(f'v_xor_b32 {v(vXb)}, 64, {v(vXa)}\nv_add_u32 {v(vXb)}, 7168, {v(vXb)}')
    S.I('v_and_b32 v6, 1, v4\nv_lshlrev_b32 v6, 2, v6\nv_xor_b32 v6, v3, v6\nv_lshlrev_b32 v6, 4, v6')
    S.I(f'v_mul_u32_u24 v7, 3072, v2\nv_add_u32 {v(vW)}, v7, v6\nv_add_u32 {v(vW2)}, 24576, {v(vW)}')
    S.I(f's_lshl_b32 s7, s{sWAVE}, 14\ns_add_u32 s{sB0}, s5, s7')
    S.I(f's_mul_i32 s{sB1}, s{sWAVE}, {16*3072}\ns_lshl_b32 s7, s{sQUAD}, 7\ns_add_u32 s{sB1}, s{sB1}, s7')
    S.I(f's_mul_i32 s{sMW}, s{sWAVE}, 6144\ns_add_u32 s{sMW}, s{sMW}, 8192')
    S.I(f's_mov_b32 s{sK1}, s{sK0}')
    S.I('v_mov_b32 v9, 0')
    S.I(f's_mov_b32 s{RX+2}, {2048*1024}\ns_mov_b32 s{RX+3}, 0x00020000\ns_mov_b32 s{RW+2}, {512*3072}\ns_mov_b32 s{RW+3}, 0x00020000\ns_mov_b32 s{RWS+2}, {WS_SIZE}\ns_mov_b32 s{RWS+3}, 0x00020000')
    S.I('s_waitcnt lgkmcnt(0)')
    S.I(f's_mov_b64 s[{RX}:{RX+1}], s[{PX}:{PX+1}]')
    S.I(f'buffer_load_dwordx4 v[128:131], v5, s[{RX}:{RX+3}], s6 offen', tag='lnx')
    S.I(f'buffer_load_dwordx4 v[132:135], v5, s[{RX}:{RX+3}], s6 offen offset:1024', tag='lnx')
    S.I(f'global_load_dwordx4 v[136:139], v5, s[{PGW}:{PGW+1}]', tag='lnx')
    S.I(f's_mov_b64 s[{RWS}:{RWS+1}], s[{PWS}:{PWS+1}]\ns_mov_b64 s[{RW}:{RW+1}], s[{PWQKV}:{PWQKV+1}]')
    S.I(f'buffer_load_dwordx2 v[164:165], v9, s[{RWS}:{RWS+3}], 0 offen sc1', tag='lnx')

    def adv(sk, st):
        if RA == 8: return f's_add_u32 s{sk}, s{sk}, 1\ns_and_b32 s{sk}, s{sk}, 7'
        if RA == 4:
            nxt = st + 1
            return f's_add_u32 s{sk}, s{sk}, 1\ns_and_b32 s{sk}, s{sk}, 3' + (f'\ns_or_b32 s{sk}, s{sk}, 4' if nxt >= 4 else '')
        return f's_add_u32 s{sk}, s{sk}, 1'
    def x_ops(st):
        slot = (st % 3) * 32768
        return pair_ops(f'S{st}', f's_lshl_b32 s4, s{sK0}, 7\ns_add_u32 m0, s{sMX}, {slot}\ns_add_u32 s4, s4, s{sB0}',
            f'buffer_load_dwordx4 {v(vXa)}, s[{RX}:{RX+3}], s4 offen {NT(st >= 6, 1)}lds',
            f'buffer_load_dwordx4 {v(vXb)}, s[{RX}:{RX+3}], s4 offen offset:1024 {NT(st >= 6, 1)}lds', adv(sK0, st))
    def w_ops(st):
        slot = (st % 3) * 32768
        ops = []
        for half in range(2):
            for seg in range(3):
                def f(half=half, seg=seg):
                    if seg == 0:
                        S.I(f's_add_u32 m0, s{sMW}, {slot + 3072*half}')
                        if half == 0: S.I(f's_mul_i32 s4, s{sK1}, {64*3072}\ns_add_u32 s4, s4, s{sB1}')
                    S.I(f'buffer_load_dwordx4 {v(vW2 if half else vW)}, s[{RW}:{RW+3}], s4 offen offset:{seg*1024} {NT(st >= 7, 1)}lds', tag=f'S{st}')
                    if half and seg == 2: S.I(adv(sK1, st))
                ops.append((f'S{st}', f))
        return ops
    run(x_ops(0)); run(w_ops(0)[:3])
    S.I(f'v_mul_u32_u24 v7, 3584, v2\nv_add_u32 {v(vW1a)}, v7, v6')
    S.I(f'v_lshl_add_u32 {v(vYa)}, v2, 12, v6\nv_lshl_add_u32 {v(vOa)}, v2, 10, v6')
    S.I('v_lshrrev_b32 v9, 5, v1')
    S.I(f's_mov_b32 s{sC}, {LOG2E}')
    S.I(f's_lshr_b32 s3, s{sWAVE}, 1\ns_lshl_b32 s3, s3, 12')
    S.I('v_and_b32 v6, 31, v1\nv_lshlrev_b32 v6, 7, v6\nv_bfe_u32 v7, v1, 1, 3\nv_xor_b32 v7, v7, v9\nv_lshl_add_u32 v6, v7, 4, v6')
    S.I(f'v_add_u32 {v(vXr)}, s3, v6')
    run(w_ops(0)[3:4])
    for ks in range(1, 4): S.I(f'v_xor_b32 {v(vXr+ks)}, {32*ks}, {v(vXr)}')
    S.I(f'v_bfe_u32 {v(vLP)}, v1, 2, 2\nv_lshlrev_b32 {v(vLP)}, 7, {v(vLP)}')
    S.I(f'v_bfe_u32 v7, v1, 4, 1\nv_lshl_add_u32 {v(vLP)}, v7, 5, {v(vLP)}')
    S.I(f'v_and_b32 v7, 3, v1\nv_lshl_add_u32 {v(vLP)}, v7, 3, {v(vLP)}')
    S.I(f'v_bfe_u32 v7, v1, 3, 1\nv_lshl_add_u32 {v(vLP)}, v7, 6, {v(vLP)}')
    run(w_ops(0)[4:5])
    S.I(f's_and_b32 s3, s{sWAVE}, 1\ns_lshl_b32 s3, s3, 6')
    S.I(f'v_xor_b32 v7, s3, {v(vLP)}')
    S.I(f'v_mul_u32_u24 {v(vWr)}, 3072, v9\nv_add_u32 {v(vWr)}, {v(vWr)}, v7\nv_add_u32 {v(vWr)}, 8192, {v(vWr)}')
    run(w_ops(0)[5:6])
    LDS_SCR = 4 * 32768
    S.I(f's_mul_i32 s3, s{sWAVE}, 2176\ns_add_u32 s3, s3, {LDS_SCR}\nv_add_u32 v188, s3, v5')
    S.I('v_bfe_u32 v6, v1, 2, 2\nv_mul_u32_u24 v6, 1088, v6\nv_lshl_add_u32 v6, v4, 5, v6\nv_and_b32 v7, 3, v1\nv_lshl_add_u32 v6, v7, 3, v6')
    S.I(f's_lshl_b32 s3, s{sWAVE}, 8\ns_add_u32 s3, s3, {LDS_SCR}\nv_add_u32 v189, s3, v6')
    S.I(f's_lshl_b32 s3, s{sSBLK}, 2\ns_lshr_b32 s7, s{sQUAD}, 1\ns_add_u32 s3, s3, s7\ns_lshl_b32 s3, s3, 14\ns_lshl_b32 s7, s{sWAVE}, 12\ns_add_u32 s3, s3, s7')
    S.I(f's_and_b32 s7, s{sQUAD}, 1\ns_lshl_b32 s7, s7, 9\ns_add_u32 s3, s3, s7\ns_add_u32 s{sA68}, s3, {HF}')
    S.I('v_and_b32 v7, 31, v1\nv_lshlrev_b32 v7, 4, v7\nv_lshl_add_u32 v190, v9, 10, v7')
    S.I(f's_lshr_b32 s5, s6, 4\ns_add_u32 s5, s5, {G_}\nv_lshlrev_b32 v191, 2, v1')

    S.wait(vm='lnx')
    stamp(S, opt, 1)
    S.push(x_ops(1) + w_ops(1) + x_ops(2) + w_ops(2))
    S.bg_every = opt.get('bgLN', 12)
    fa, fb, fg = 140, 148, 156
    for dst, src in ((fa, 128), (fb, 132), (fg, 136)):
        for i in range(4):
            S.I(f'v_lshlrev_b32 {v(dst+2*i)}, 16, {v(src+i)}\nv_and_b32 {v(dst+2*i+1)}, 0xffff0000, {v(src+i)}')
    S.I(f'v_readfirstlane_b32 s{TAG}, v164\nv_readfirstlane_b32 s{TAG+1}, v165')
    sA, sB_, gA, gB = 172, 173, 174, 175
    S.I(f'v_add_f32 {v(sA)}, {v(fa)}, {v(fa+1)}\nv_add_f32 {v(sB_)}, {v(fb)}, {v(fb+1)}')
    S.I(f'v_mul_f32 {v(gA)}, {v(fa)}, {v(fg)}\nv_mul_f32 {v(gB)}, {v(fb)}, {v(fg)}')
    S.I(f's_mul_i32 s{TAG}, s{TAG}, 1664525\ns_add_u32 s{TAG}, s{TAG}, 1013904223')
    S.I(f's_mul_i32 s{TAG+1}, s{TAG+1}, 22695477\ns_add_u32 s{TAG+1}, s{TAG+1}, 1')
    for i in range(1, 8):
        if i >= 2: S.I(f'v_add_f32 {v(sA)}, {v(sA)}, {v(fa+i)}\nv_add_f32 {v(sB_)}, {v(sB_)}, {v(fb+i)}')
        S.I(f'v_fmac_f32 {v(gA)}, {v(fa+i)}, {v(fg+i)}\nv_fmac_f32 {v(gB)}, {v(fb+i)}, {v(fg+i)}')
    allreduce64(S, [sA, sB_, gA, gB], [176, 177, 178, 179])
    S.I(f'v_mul_f32 {v(sA)}, {f2u(1/512):#x}, {v(sA)}\nv_mul_f32 {v(sB_)}, {f2u(1/512):#x}, {v(sB_)}')
    for i in range(8):
        S.I(f'v_sub_f32 {v(fa+i)}, {v(fa+i)}, {v(sA)}\nv_sub_f32 {v(fb+i)}, {v(fb+i)}, {v(sB_)}')
    S.I(f'v_mul_f32 {v(sA)}, {v(fa)}, {v(fa)}\nv_mul_f32 {v(sB_)}, {v(fb)}, {v(fb)}')
    for i in range(1, 8):
        S.I(f'v_fmac_f32 {v(sA)}, {v(fa+i)}, {v(fa+i)}\nv_fmac_f32 {v(sB_)}, {v(fb+i)}, {v(fb+i)}')
    S.I(f'v_cmp_eq_u32 vcc, 0, v1\nv_cndmask_b32 {v(gA)}, {v(gB)}, {v(gA)}, vcc')
    S.I(f'v_mul_f32 {v(gA)}, s{sC}, {v(gA)}\nv_exp_f32 {v(gA)}, -{v(gA)}\nv_add_f32 {v(gA)}, 1.0, {v(gA)}\nv_rcp_f32 {v(gA)}, {v(gA)}')
    allreduce64(S, [sA, sB_], [176, 177])
    S.I(f'v_mov_b32 v176, {f2u(1e-5):#x}')
    S.I(f'v_fmamk_f32 {v(sA)}, {v(sA)}, {f2u(1/512):#x}, v176\nv_fmamk_f32 {v(sB_)}, {v(sB_)}, {f2u(1/512):#x}, v176')
    S.I(f'v_rsq_f32 {v(sA)}, {v(sA)}\nv_rsq_f32 {v(sB_)}, {v(sB_)}')
    for i in range(8):
        S.I(f'v_mul_f32 {v(fa+i)}, {v(sA)}, {v(fa+i)}\nv_mul_f32 {v(fb+i)}, {v(sB_)}, {v(fb+i)}')
    cvt8(S, 128, fa, 4); cvt8(S, 132, fb, 4)
    S.bg_every = 0
    S.I('ds_write_b128 v188, v[128:131]', tag='lnw')
    S.I('ds_write_b128 v188, v[132:135] offset:1088', tag='lnw')
    S.I('s_mov_b64 exec, 3')
    S.I(f'buffer_store_dword {v(gA)}, v191, s[{RWS}:{RWS+3}], s5 offen sc1', tag='hst')
    S.I('s_mov_b64 exec, -1')

    def w1_ops(m0expr, tag, nt=''):
        return pair_ops(tag, f's_mul_i32 s4, s{sK2}, {16*3584}\n{m0expr}\ns_add_u32 s4, s4, s{sB2}\ns_add_u32 s{sK2}, s{sK2}, {0 if opt.get("fakeW1") and tag else 1}',
            f'buffer_load_dwordx4 {v(vW1a)}, s[{RW1}:{RW1+3}], s4 offen {nt}lds',
            f'buffer_load_dwordx4 {v(vW1b)}, s[{RW1}:{RW1+3}], s4 offen offset:1024 {nt}lds',
            f's_and_b32 s{sK2}, s{sK2}, 31')
    bslot = {k: 12 + k for k in range(8)}
    for k in range(8, 19): bslot[k] = k - 8
    for k in range(19, 32): bslot[k] = bslot[k - 19]
    def b_ops(k): return w1_ops(f's_add_u32 m0, s{sMB}, {slot_addr(bslot[k])}', f'B{k}', NT(k >= 24, 2))
    def h_ops(k):
        return pair_ops(f'H{k}', f's_lshl_b32 s4, s{sK3}, 14\ns_add_u32 s4, s4, s{sB3}\ns_add_u32 s{sK3}, s{sK3}, {0 if opt.get("fakeH") and k >= 4 else 1}',
            f'buffer_load_dwordx4 {a_(8*k,4)}, {v(vH0)}, s[{RH}:{RH+3}], s4 offen sc1 {NT(k >= 28, 2)}',
            f'buffer_load_dwordx4 {a_(8*k+4,4)}, {v(vH1)}, s[{RH}:{RH+3}], s4 offen sc1 {NT(k >= 28, 2)}',
            f's_and_b32 s{sK3}, s{sK3}, 31')
    def m1_block():
        for q in range(4): run(w1_ops(f's_add_u32 m0, s{sMS}, {q*2048}', None))
        S.I(f's_add_u32 s{sMS}, s{sMS}, 32768')
    def tr_addrs(base, gshift, wsel):
        if wsel == 'hi': S.I(f's_lshr_b32 s3, s{sWAVE}, 1\ns_lshl_b32 s3, s3, 6')
        else: S.I(f's_and_b32 s3, s{sWAVE}, 1\ns_lshl_b32 s3, s3, 6')
        S.I(f'v_xor_b32 v7, s3, {v(vLP)}\nv_lshl_add_u32 v7, v9, {gshift}, v7\nv_add_u32 {v(base)}, s{sMB}, v7')
        S.I(f'v_xor_b32 {v(base+1)}, 64, {v(base)}')
        for wdw in (1, 2):
            S.I(f'v_add_u32 {v(base+2*wdw)}, {wdw*0x10000:#x}, {v(base)}\nv_add_u32 {v(base+2*wdw+1)}, {wdw*0x10000:#x}, {v(base+1)}')

    def setup1():
        S.I(f's_and_b32 s3, s{sXCD}, 1\ns_lshl_b32 s3, s3, 2\ns_and_b32 s{sCLS}, s{sIDX}, 3\ns_add_u32 s{sDT}, s3, s{sCLS}')
        S.I(f's_lshr_b32 s3, s{sXCD}, 1\ns_mul_i32 s7, s3, 7\ns_lshr_b32 s5, s{sIDX}, 2\ns_add_u32 s{sFT}, s7, s5')
        S.I(f's_lshl_b32 s3, s3, 3\ns_add_u32 s{sST}, s3, s5')
        S.I(f's_mul_i32 s7, s5, 37\ns_lshr_b32 s7, s7, 3\ns_lshl_b32 s3, s{sCLS}, 3\ns_add_u32 s7, s7, s3\ns_and_b32 s3, s{sXCD}, {opt.get("xoff",0)}\ns_lshl_b32 s3, s3, 2\ns_add_u32 s7, s7, s3\ns_and_b32 s{sK2}, s7, {31 if ROT else 0}\ns_mov_b32 s{sK3}, s{sK2}')
    def setup2():
        S.I(f's_mul_i32 s{sB2}, s{sWAVE}, {512*3584}\ns_lshl_b32 s3, s{sFT}, 7\ns_add_u32 s{sB2}, s{sB2}, s3')
        S.I(f's_lshl_b32 s{sMB}, s{sWAVE}, 13')
        srd(S, RW1, PW1, 2048*3584)
        S.I(f's_cmp_ge_u32 s{sIDX}, 28\ns_cselect_b32 s{RW1+2}, 0, s{RW1+2}')
        S.I(f's_add_u32 s{sMS}, s{sMB}, {slot_addr(12)}')
        S.I(f'v_add_u32 {v(vW1b)}, {8*3584-1024}, {v(vW1a)}')
        S.I(f's_lshl_b32 s3, s{sSBLK}, 3\ns_add_u32 s3, s3, s{sQUAD}\ns_lshl_b32 s3, s3, 7\ns_lshl_b32 s7, s{sWAVE}, 15\ns_add_u32 s3, s3, s7\ns_add_u32 s{sA69}, s3, {FH}')
    def setup3():
        for ks in range(4): S.I(f'v_add_u32 {v(vXr+4+ks)}, 0x10000, {v(vXr+ks)}')
        S.I(f'v_add_u32 {v(vWr+1)}, 0x10000, {v(vWr)}')
    def wphi_loads():
        S.I(f's_and_b32 s3, s{sWAVE}, 1\ns_lshl_b32 s3, s3, 1\ns_lshl_b32 s7, s{sQUAD}, 2\ns_add_u32 s3, s3, s7\ns_lshl_b32 s3, s3, 9')
        S.I('v_bfe_u32 v6, v1, 4, 1\nv_lshlrev_b32 v6, 9, v6\nv_and_b32 v7, 15, v1\nv_lshl_add_u32 v6, v7, 1, v6\nv_lshl_add_u32 v6, v9, 7, v6\nv_add_u32 v6, s3, v6')
        for j in range(8):
            d = (j & 3) + 8 * (j >> 2)
            S.I(f'global_load_ushort {v(180 + j)}, v6, s[{PWPHI}:{PWPHI+1}] offset:{d*32}', tag='wphi')
    def setup4():
        S.I(f's_lshl_b32 s{sB3}, s{sWAVE}, 19\ns_lshl_b32 s3, s{sDT}, 11\ns_add_u32 s{sB3}, s{sB3}, s3\ns_add_u32 s{sB3}, s{sB3}, {HF}')
        srd(S, RH, PWS, WS_SIZE)
        S.I(f's_cmp_ge_u32 s{sIDX}, 28\ns_cselect_b32 s{RH+2}, 0, s{RH+2}')
        S.I(f's_mov_b32 s{sMASK}, 0x0000ffff\ns_mov_b32 s{sMASK+1}, 0x0000ffff')
        S.I(f's_and_b32 s3, s{sWAVE}, 1\ns_lshl_b32 s3, s3, 10')
        S.I(f'v_add_u32 {v(vH0)}, s3, v5\nv_xor_b32 {v(vH1)}, 0x400, {v(vH0)}')
    def setup5():
        tr_addrs(vBr, 10, 'hi')
    def setup6():
        S.I(f's_lshr_b32 s3, s{sWAVE}, 1\ns_lshl_b32 s3, s3, 10')
        S.I(f'v_add_u32 {v(vD0)}, s3, v5\nv_xor_b32 {v(vD1)}, 0x400, {v(vD0)}')
        S.I(f'v_add_u32 {v(vYb)}, {8*4096-1024}, {v(vYa)}\nv_add_u32 {v(vOb)}, {8*1024-1024}, {v(vOa)}')
        S.I('v_and_b32 v6, 31, v1\nv_lshlrev_b32 v7, 2, v9\nv_sub_u32 v192, v6, v7')
        S.I('v_mov_b32 v193, 0x3f80\nv_mov_b32 v194, 0x3f800000')
    def ident(base, off):
        def f():
            for jj in range(4):
                f0 = ((2*jj) & 3) + 8*(jj >> 1) + off
                S.I(f'v_cmp_eq_u32 vcc, {f0}, v192\nv_cmp_eq_u32 s[{sEX}:{sEX+1}], {f0+1}, v192\nv_cndmask_b32 {v(base+jj)}, 0, v193, vcc')
                S.I(f'v_cndmask_b32 {v(base+jj)}, {v(base+jj)}, v194, s[{sEX}:{sEX+1}]')
        return f
    def wphi_pack():
        for i in range(4): S.I(f'v_lshl_or_b32 {v(168+i)}, {v(181+2*i)}, 16, {v(180+2*i)}')
        for i in range(4):
            S.I(f'v_cndmask_b32 {v(WA+i)}, 0, {v(168+i)}, s[{sMASK}:{sMASK+1}]')
            S.I(f'v_cndmask_b32 {v(WB+i)}, {v(168+i)}, 0, s[{sMASK}:{sMASK+1}]')
    def kv_addr():
        S.I(f's_and_b32 s3, s{sWAVE}, 1\ns_lshl_b32 s7, s{sQUAD}, 1\ns_add_u32 s3, s3, s7\ns_lshl_b32 s3, s3, 5\ns_add_u32 s3, s3, s{sSBLK}')
        S.I(f's_lshr_b32 s5, s{sWAVE}, 1')
        S.I(f's_lshl_b32 s7, s3, 1\ns_add_u32 s7, s7, s5\ns_lshl_b32 s7, s7, 7\ns_add_u32 s{sA69}, s7, {FKV}')
        S.I(f's_mul_i32 s3, s3, {KVB}\ns_add_u32 s{sA68}, s3, {KVP}')
        S.I('s_lshl_b32 s7, s5, 8\ns_add_u32 s7, s7, 4096\nv_lshl_add_u32 v232, v1, 2, s7')
        S.I(f's_xor_b32 s3, s{sWAVE}, 2\ns_lshl_b32 s3, s3, 13\nv_add_u32 v233, s3, v5\nv_add_u32 v234, s{sMB}, v5')
    def h_poll_issue():
        S.I(f's_lshr_b32 s3, s{sDT}, 1\ns_lshl_b32 s3, s3, 15\ns_add_u32 s3, s3, {FH}')
        S.I(f'v_lshl_add_u32 {v(vFLa)}, v0, 7, s3')
        S.I(f'buffer_load_dwordx2 {v(vFL,2)}, {v(vFLa)}, s[{RWS}:{RWS+3}], 0 offen sc1', tag='pollH')
    HP = opt.get('hpoll', 24)
    extras = {1: setup1, 2: setup2, 3: setup3, 5: wphi_loads, 6: setup4, 9: setup5, 10: setup6, 13: ident(IP, 0), 14: ident(IM, 16),
              17: wphi_pack, 18: kv_addr}

    def a_reads(kk):
        st, ks = kk >> 2, kk & 3
        slot = st % 3
        hi = slot >> 1
        so = (slot & 1) * 32768
        b = FR_ + 16 * (kk % 3)
        R = [f'ds_read_b128 {v(b,4)}, {v(vXr+4*hi+ks)} offset:{so}']
        for seg in range(3):
            for t in range(2):
                R.append(f'ds_read_b64_tr_b16 {v(b+4+4*seg+2*t,2)}, {v(vWr+hi)} offset:{so + ks*6144 + seg*1024 + t*512}')
        return R
    def a_mfmas(kk):
        b = FR_ + 16 * (kk % 3)
        c = (lambda r: v(r, 16)) if kk else (lambda r: '0')
        return [f'{MF} {v(AQ,16)}, {v(b+4,4)}, {v(b,4)}, {c(AQ)}',
                f'{MF} {v(AK,16)}, {v(b+8,4)}, {v(b,4)}, {c(AK)}',
                f'{MF} {v(AV,16)}, {v(b,4)}, {v(b+12,4)}, {c(AV)}']
    HFS = opt.get('hfs', 2)
    m1pos = {0: {0: (0, 3), 1: (1, 4), 2: (2, 5), 3: (1, 5)}, 1: {0: (0, 2), 1: (1, 3), 2: (2, 4), 3: (3, 5)}, 2: {c: (4, 5) for c in range(4)}}[opt.get('m1v', 0)]
    for kk in range(34):
        st, ks = kk >> 2, kk & 3
        R = a_reads(kk) if kk < 32 else []
        M = a_mfmas(kk - 2) if kk >= 2 else []
        if M: S.wait(lg=f'R{kk-2}')
        if ks == 0:
            S.comment(f'stage {st}')
            for m in M[:2]: S.I(m)
            stamp(S, opt, f'Aw{st}')
            if st < 8: S.wait(vm=[f'S{st}'] + (['hst'] if st == HFS else []), lg='all')
            else: S.wait(lg='all')
            S.I('s_barrier')
            stamp(S, opt, f'A{st}')
            if st == 0:
                stamp(S, opt, 2)
                S.I('ds_read_b64_tr_b16 v[128:129], v189', tag='lnr')
                S.I(f'ds_read_b64_tr_b16 v[130:131], v189 offset:{4*1088}', tag='lnr')
                S.I('ds_read_b64_tr_b16 v[132:133], v189 offset:128', tag='lnr')
                S.I(f'ds_read_b64_tr_b16 v[134:135], v189 offset:{4*1088+128}', tag='lnr')
            if st == 4: stamp(S, opt, 3)
            if 1 <= st <= 5: S.push(x_ops(st + 2) + w_ops(st + 2))
            elif st == 6:
                for q in range(4): S.push(b_ops(8 + q))
            for r in R[:4]: S.I(r, tag=f'R{kk}')
            if st == 0:
                S.wait(lg='lnr')
                S.I(f'buffer_store_dwordx4 v[128:131], v190, s[{RWS}:{RWS+3}], s{sA68} offen sc1', tag='hst')
                S.I(f'buffer_store_dwordx4 v[132:135], v190, s[{RWS}:{RWS+3}], s{sA68} offen offset:2048 sc1', tag='hst')
            S.run_bg(1)
            for m in M[2:]: S.I(m)
            for r in R[4:]: S.I(r, tag=f'R{kk}')
            S.run_bg(1)
            if st == HFS: set_flag(S, sA69)
        else:
            split = [R[0:3], R[3:5], R[5:7]]
            for j in range(3):
                if M: S.I(M[j])
                for r in split[j]: S.I(r, tag=f'R{kk}')
                if j == 1 and kk in extras: extras[kk]()
                if j != 1: S.run_bg(1)
        if kk == HP: h_poll_issue()
        if kk == HP + 3:
            S.run_bg()
            stamp(S, opt, 'hp0')
            poll(S, vFL, vFLa, 'pollH')
            stamp(S, opt, 'hp1')
            for k in range(5): S.push(h_ops(k))
        if st <= 5 and ks == 3:
            for c in range(4):
                for _ in range(m1pos[c].count(st)): cond_block(c, m1_block)
    stamp(S, opt, 4)
    for k in range(5, 12): S.push(h_ops(k))
    for k in range(12, 19): S.push(b_ops(k) + h_ops(k))
    S.bg_every = opt.get('bgA', 15)
    KB = 128; P = 136; E = 152; T = 184; PHI = 192
    cvt8(S, KB, AK)
    S.I(f'{MF} {v(P,16)}, {v(WA,4)}, {v(KB,4)}, 0')
    S.I(f'{MF} {v(P,16)}, {v(WB,4)}, {v(KB+4,4)}, {v(P,16)}')
    VBF = 32; VA = 40; VB = 48
    cvt8(S, VBF, AV)
    for i in range(8):
        S.I(f'v_cndmask_b32 {v(VA+i)}, 0, {v(VBF+i)}, s[{sMASK}:{sMASK+1}]')
        S.I(f'v_cndmask_b32 {v(VB+i)}, {v(VBF+i)}, 0, s[{sMASK}:{sMASK+1}]')
    softmax_pm(S, P, E, T, PHI)
    DA, DB = E, E + 16
    S.I(f'{MF} {v(DA,16)}, {v(PHI,4)}, {v(IP,4)}, 0')
    S.I(f'{MF} {v(DB,16)}, {v(PHI+8,4)}, {v(IP,4)}, 0')
    S.I(f'{MF} {v(DA,16)}, {v(PHI+4,4)}, {v(IM,4)}, {v(DA,16)}')
    S.I(f'{MF} {v(DB,16)}, {v(PHI+12,4)}, {v(IM,4)}, {v(DB,16)}')
    cvt8(S, QB, AQ)
    S.I(f's_cmp_eq_u32 s5, 0\ns_cselect_b64 s[{sEX}:{sEX+1}], -1, 0')
    PT = 64
    cvt8(S, PT, DA); cvt8(S, PT+8, DB)
    E1 = AK
    S.I(f'{MF} {v(E1,16)}, {v(PT,4)}, {v(VA,4)}, 0')
    S.I(f'{MF} {v(E1,16)}, {v(PT+4,4)}, {v(VA+4,4)}, {v(E1,16)}')
    S.I(f'{MF} {v(E1,16)}, {v(PT+8,4)}, {v(VB,4)}, {v(E1,16)}')
    S.I(f'{MF} {v(E1,16)}, {v(PT+12,4)}, {v(VB+4,4)}, {v(E1,16)}')
    zA, zB = T, T+1
    S.I(f'v_add_f32 {v(zA)}, {v(DA)}, {v(DA+1)}\nv_add_f32 {v(zB)}, {v(DB)}, {v(DB+1)}')
    for i in range(2, 16):
        S.I(f'v_add_f32 {v(zA)}, {v(zA)}, {v(DA+i)}\nv_add_f32 {v(zB)}, {v(zB)}, {v(DB+i)}')
    S.I(f'v_permlane32_swap_b32 {v(zA)}, {v(zB)}')
    S.I(f'v_add_f32 {v(zA)}, {v(zA)}, {v(zB)}')
    S.I(f'buffer_store_dword {v(zA)}, v232, s[{RWS}:{RWS+3}], s{sA68} offen sc1', tag='kvst')
    KP, SD = 128, 136
    for i in range(8):
        S.I(f'v_cndmask_b32 {v(SD+i)}, {v(E1+i)}, {v(E1+8+i)}, s[{sEX}:{sEX+1}]')
    KVX = slot_addr(11)
    S.I(f'ds_write_b128 v233, {v(SD,4)} offset:{KVX}', tag='kvx')
    S.I(f'ds_write_b128 v233, {v(SD+4,4)} offset:{KVX+1024}', tag='kvx')
    for i in range(8):
        S.I(f'v_cndmask_b32 {v(KP+i)}, {v(E1+8+i)}, {v(E1+i)}, s[{sEX}:{sEX+1}]')
    RW2, RWO = RX, RW
    srd(S, RW2, PW2, 1792*4096)
    srd(S, RWO, PWO, 512*1024)
    S.I(f's_lshl_b32 s3, s5, 11\ns_add_u32 s{sA68}, s{sA68}, s3')
    S.wait(lg='kvx')
    S.I('s_barrier')
    S.I(f'ds_read_b128 {v(SD,4)}, v234 offset:{KVX}', tag='kvr')
    S.I(f'ds_read_b128 {v(SD+4,4)}, v234 offset:{KVX+1024}', tag='kvr')
    S.I(f's_lshr_b32 s5, s{sIDX}, 2\ns_mul_i32 s3, s5, 7\ns_lshr_b32 s3, s3, 1\ns_mul_i32 s7, s{sCLS}, 7\ns_add_u32 s3, s3, s7\ns_and_b32 s7, s{sXCD}, {opt.get("xoff",0)}\ns_mul_i32 s7, s7, 3\ns_add_u32 s3, s3, s7')
    S.I(f's_sub_u32 s7, s3, 28\ns_cmp_ge_u32 s3, 28\ns_cselect_b32 s{sK0}, s7, s3')
    S.I(f's_lshl_b32 s3, s{sCLS}, 1\ns_add_u32 s3, s3, s5\ns_and_b32 s{sK1}, s3, 7')
    if not ROT: S.I(f's_mov_b32 s{sK0}, 0\ns_mov_b32 s{sK1}, 0')
    S.I(f's_mov_b32 s{sMX}, s{sK0}\ns_mov_b32 s{sMW}, s{sK1}')
    S.I(f's_mul_i32 s{sB0}, s{sWAVE}, {28*16*4096}\ns_lshl_b32 s3, s{sST}, 7\ns_add_u32 s{sB0}, s{sB0}, s3')
    S.I(f's_lshl_b32 s{sB1}, s{sWAVE}, 17\ns_lshl_b32 s3, s{sDT}, 7\ns_add_u32 s{sB1}, s{sB1}, s3')
    tr_addrs(vTy, 9, 'lo')
    S.wait(lg='kvr')
    for i in range(8): S.I(f'v_add_f32 {v(KP+i)}, {v(KP+i)}, {v(SD+i)}')
    S.I(f'buffer_store_dwordx4 {v(KP,4)}, v5, s[{RWS}:{RWS+3}], s{sA68} offen sc1', tag='kvst')
    S.I(f'buffer_store_dwordx4 {v(KP+4,4)}, v5, s[{RWS}:{RWS+3}], s{sA68} offen offset:1024 sc1', tag='kvst')
    S.bg_every = 0
    if len(S.bg) & 1: S.run_bg(1)
    stamp(S, opt, 5)

    def y_ops(slot, tag):
        return pair_ops(tag, f's_lshl_b32 s4, s{sK0}, 16\ns_add_u32 m0, s{sMB}, {slot_addr(slot)}\ns_add_u32 s4, s4, s{sB0}\ns_add_u32 s{sK0}, s{sK0}, 1',
            f'buffer_load_dwordx4 {v(vYa)}, s[{RW2}:{RW2+3}], s4 offen lds',
            f'buffer_load_dwordx4 {v(vYb)}, s[{RW2}:{RW2+3}], s4 offen offset:1024 lds',
            f's_cmp_eq_u32 s{sK0}, 28\ns_cselect_b32 s{sK0}, 0, s{sK0}')
    def wo_ops(slot, tag):
        return pair_ops(tag, f's_lshl_b32 s4, s{sK1}, 14\ns_add_u32 m0, s{sMB}, {slot_addr(slot)}\ns_add_u32 s4, s4, s{sB1}\ns_add_u32 s{sK1}, s{sK1}, 1',
            f'buffer_load_dwordx4 {v(vOa)}, s[{RWO}:{RWO+3}], s4 offen lds',
            f'buffer_load_dwordx4 {v(vOb)}, s[{RWO}:{RWO+3}], s4 offen offset:1024 lds',
            f's_and_b32 s{sK1}, s{sK1}, 7')
    def tr_list(dst, base, slot, tstep):
        ad = slot_addr(slot); wdw = ad >> 16; so = ad & 0xffff
        return [f'ds_read_b64_tr_b16 {dst(4*fr+2*t)}, {v(base+2*wdw+fr)} offset:{so+t*tstep}' for fr in range(2) for t in range(2)]
    def tr_slot(dst, base, slot, tstep, tag):
        for r in tr_list(dst, base, slot, tstep): S.I(r, tag=tag)

    order = [('Y', k) for k in range(7)] + [('W', 0)] + [('Y', k) for k in range(7, 28)] + [('W', k) for k in range(1, 8)]
    class Plan: pass
    PL = Plan(); PL.nd = 0; PL.nt = 0; PL.slot = {}; PL.free = []; PL.pending = []; PL.log = []
    def next_D():
        if PL.nd >= len(order): return None
        pre = []
        if not PL.free:
            if not PL.pending: return None
            s_, tg = PL.pending.pop(0)
            pre = [tg]; PL.free.append(s_)
        kind, k = order[PL.nd]; PL.nd += 1
        s_ = PL.free.pop(0); PL.slot[(kind, k)] = s_
        PL.log.append(('D', kind, k))
        ops = y_ops(s_, f'Y{k}') if kind == 'Y' else wo_ops(s_, f'W{k}')
        if pre:
            t0, f0 = ops[0]
            ops[0] = (t0, lambda f0=f0, tg=pre[0]: (S.wait(lg=tg), f0()))
        return ops
    def push_D():
        ops = next_D()
        if ops: S.push(ops)
        return bool(ops)
    def T_op():
        k = PL.nt
        if k >= 28 or ('Y', k) not in PL.slot: return None
        PL.nt += 1
        PL.log.append(('T', 'Y', k))
        s_ = PL.slot[('Y', k)]
        PL.pending.append((s_, f'T{k}'))
        def f():
            S.wait(vm=f'Y{k}')
            tr_slot(lambda o: a_(8*k+o, 2), vTy, s_, 1024, f'T{k}')
        return (f'TT{k}', f)
    def push_T():
        o = T_op()
        if o: S.push([o])
        return bool(o)

    S.I(f's_lshl_b32 s3, s{sFT}, 7\ns_lshr_b32 s7, s{sWAVE}, 1\ns_lshl_b32 s7, s7, 6\ns_add_u32 s3, s3, s7')
    S.I(f's_cmp_ge_u32 s{sIDX}, 28\ns_cbranch_scc1 L_reducer')
    vm_at_branch = list(S.vm)
    S.I('v_lshlrev_b32 v6, 3, v9\nv_add_u32 v6, s3, v6')
    B1R = 56
    for q in range(4):
        S.I(f'global_load_dwordx2 {v(B1R+2*q,2)}, v6, s[{PB1}:{PB1+1}] offset:{16*q}', tag='b1')

    def o_poll_issue():
        S.I(f's_lshl_b32 s3, s{sSBLK}, 10\ns_add_u32 s3, s3, {FH}')
        S.I('v_bfe_u32 v6, v1, 3, 2\nv_lshlrev_b32 v6, 15, v6\nv_and_b32 v7, 7, v1\nv_lshl_add_u32 v6, v7, 7, v6\nv_add_u32 v6, s3, v6')
        S.I(f's_and_b32 s3, s{sWAVE}, 1\ns_lshl_b32 s3, s3, 9\ns_lshl_b32 s7, s{sQUAD}, 10\ns_add_u32 s3, s3, s7\ns_add_u32 s3, s3, {FR}')
        S.I('v_and_b32 v7, 3, v1\nv_lshl_add_u32 v7, v7, 7, s3')
        S.I(f'v_cmp_gt_u32 vcc, 32, v1\nv_cndmask_b32 {v(vFLa)}, v7, v6, vcc')
        S.I(f'buffer_load_dwordx2 {v(vFL,2)}, {v(vFLa)}, s[{RWS}:{RWS+3}], 0 offen sc1', tag='pollO')

    INB = (4, 5, 6, 7, 8, 9)
    popsB = opt.get('popsB', 3)
    PL.free.append(11)
    for i in range(34):
        R = []; M = []
        j = i - 2
        if j >= 0:
            S.wait(vm=f'H{j}', lg=f'R{j}')
            b = AF + 8 * (j % 3)
            for i1 in range(2):
                for i0 in range(2):
                    c = v(ACC+16*(2*i1+i0), 16)
                    M.append(f'{MF} {c}, {v(b+4*i1,4)}, {a_(8*j+4*i0,4)}, {c if j else 0}')
            if j + 19 < 32: S.push(b_ops(j + 19) + h_ops(j + 19))
            else:
                if bslot[j] not in INB: PL.free.append(bslot[j])
            if j >= 13 and len(S.bg) < 2 and PL.nd < opt.get('ndB', 8): push_D()
        if i < 32:
            b2_ = AF + 8 * (i % 3)
            R = tr_list(lambda o: v(b2_+o, 2), vBr, bslot[i], 512)
        npop = popsB if any(isinstance(o, tuple) and o[0][0] in 'BH' for o in S.bg) else 2
        pos = {2: (0, 2), 3: (0, 1, 3), 4: (0, 1, 2, 3)}[npop]
        for n in range(4):
            if M: S.I(M[n])
            if n == 0 and R: S.wait(vm=f'B{max(i,8)}')
            if R: S.I(R[n], tag=f'R{i}')
            if n in pos: S.run_bg(1)
        stamp(S, opt, f'B{j}')
        if j == opt.get('kvflag', 4):
            S.wait(vm='kvst'); set_flag(S, sA69)
            stamp(S, opt, 'Bkv')
        if j == 20:
            S.wait(vm='b1')
            for q in range(4):
                for h2 in range(2):
                    S.I(f'v_lshlrev_b32 {v(128+4*q+2*h2)}, 16, {v(B1R+2*q+h2)}\nv_and_b32 {v(128+4*q+2*h2+1)}, 0xffff0000, {v(B1R+2*q+h2)}')
        if j == 24:
            S.I(f's_lshl_b32 s3, s{sFT}, 16\ns_lshr_b32 s7, s{sWAVE}, 1\ns_lshl_b32 s7, s7, 15\ns_add_u32 s3, s3, s7\ns_lshl_b32 s7, s{sDT}, 11\ns_add_u32 s3, s3, s7')
            S.I(f's_and_b32 s7, s{sWAVE}, 1\ns_lshl_b32 s7, s7, 10\ns_add_u32 s3, s3, s7\ns_add_u32 s{sA68}, s3, {UF}\ns_add_u32 s6, s{sA68}, 16384')
            S.I(f's_mul_i32 s3, s{sDT}, 28\ns_add_u32 s3, s3, s{sFT}\ns_lshl_b32 s3, s3, 2\ns_add_u32 s3, s3, s{sWAVE}\ns_lshl_b32 s3, s3, 7\ns_add_u32 s{sA69}, s3, {FU}')
    S.run_bg()
    stamp(S, opt, 6)
    S.I('s_barrier')
    stamp(S, opt, 'x1')
    exchange(S, ACC)
    stamp(S, opt, 'x2')
    for _ in range(opt.get('ndE', 4)): push_D()
    S.bg_every = opt.get('bgB', 20)
    Bf = 128
    for r in range(16): S.I(f'v_add_f32 {v(ACC+r)}, {v(ACC+r)}, {v(Bf+r)}')
    exchange_sum(S, ACC)
    k0 = 2 * math.sqrt(2 / math.pi) * math.log2(math.e); k1 = k0 * 0.044715
    S.I(f's_mov_b32 s7, {f2u(-k1):#x}\nv_mov_b32 v2, {f2u(-k0):#x}')
    Tm = 144
    for r in range(16): S.I(f'v_mul_f32 {v(Tm+r)}, {v(ACC+r)}, {v(ACC+r)}')
    for r in range(16): S.I(f'v_fma_f32 {v(Tm+r)}, {v(Tm+r)}, s7, v2')
    for r in range(16): S.I(f'v_mul_f32 {v(Tm+r)}, {v(Tm+r)}, {v(ACC+r)}')
    for r in range(16): S.I(f'v_exp_f32 {v(Tm+r)}, {v(Tm+r)}')
    for r in range(16): S.I(f'v_add_f32 {v(Tm+r)}, 1.0, {v(Tm+r)}')
    for r in range(16): S.I(f'v_rcp_f32 {v(Tm+r)}, {v(Tm+r)}')
    for r in range(16): S.I(f'v_mul_f32 {v(ACC+r)}, {v(ACC+r)}, {v(Tm+r)}')
    cvt8(S, Bf, ACC)
    S.I(f'buffer_store_dwordx4 {v(Bf,4)}, v5, s[{RWS}:{RWS+3}], s{sA68} offen sc1', tag='ust')
    S.I(f'buffer_store_dwordx4 {v(Bf+4,4)}, v5, s[{RWS}:{RWS+3}], s6 offen sc1', tag='ust')
    stamp(S, opt, 'ust')
    S.bg_every = 0
    S.run_bg()
    lab = S.newlabel('L_noE')
    S.I(f's_lshl_b32 s3, s2, 2\ns_add_u32 s3, s3, s{sWAVE}\ns_cmp_lg_u32 s3, 0\ns_cbranch_scc1 {lab}')
    S.I('s_mov_b32 s3, 0')
    sv = list(S.vm); set_flag(S, 3); S.vm = sv
    S.label(lab)
    S.I('s_branch L_join')
    main_vm = list(S.vm); main_lg = list(S.lg)

    S.label('L_reducer')
    S.hist = []; S.vm = vm_at_branch; S.lg = []
    assert not S.bg
    sHD = sK2
    S.I(f's_lshl_b32 s{sHD}, s{sXCD}, 2\ns_add_u32 s{sHD}, s{sHD}, s{sIDX}\ns_sub_u32 s{sHD}, s{sHD}, 28')
    S.I(f's_lshr_b32 s3, s{sHD}, 1\ns_lshl_b32 s4, s3, 13\ns_lshl_b32 s5, s{sWAVE}, 11\ns_add_u32 s4, s4, s5\ns_add_u32 s4, s4, {FKV}')
    S.I(f'v_and_b32 v6, 15, v1\nv_lshl_add_u32 {v(vFLa)}, v6, 7, s4')
    S.I(f's_and_b32 s5, s{sHD}, 1')
    S.I('v_and_b32 v6, 15, v1\nv_lshl_add_u32 v6, v9, 5, v6\nv_lshlrev_b32 v6, 4, v6\ns_lshl_b32 s4, s5, 8\nv_add_u32 v6, s4, v6')
    S.I('v_bfe_u32 v7, v1, 3, 1\nv_lshlrev_b32 v7, 8, v7\nv_lshl_add_u32 v7, v9, 4, v7\ns_lshl_b32 s4, s5, 7\ns_add_u32 s4, s4, 4096\nv_add_u32 v7, s4, v7')
    for q in range(4):
        S.I(f'v_add_u32 v2, {q*1024}, v6\nv_add_u32 v3, {q*32}, v7\nv_cndmask_b32 {v(56+q)}, v3, v2, s[{sMASK}:{sMASK+1}]')
    S.I(f's_lshl_b32 s3, s3, 5\ns_lshl_b32 s4, s{sWAVE}, 3\ns_add_u32 s3, s3, s4\ns_mul_i32 s3, s3, {KVB}\ns_add_u32 s{sA68}, s3, {KVP}')
    S.wait(vm='all')
    set_flag(S, sA69)
    assert all(e[0] == 'D' for e in PL.log)
    sK0_, sK1_ = None, None
    for e in PL.log:
        s_ = PL.slot[(e[1], e[2])]
        assert s_ not in INB
        run(y_ops(s_, 'rp') if e[1] == 'Y' else wo_ops(s_, 'rp'))
    S.I(f'buffer_load_dwordx2 {v(vFL,2)}, {v(vFLa)}, s[{RWS}:{RWS+3}], 0 offen sc1', tag='pollKV')
    poll(S, vFL, vFLa, 'pollKV')
    stamp(S, opt, 6)
    RB = 64
    for sb in range(8):
        for q in range(4):
            S.I(f'buffer_load_dwordx4 {v(RB+16*sb+4*q,4)}, {v(56+q)}, s[{RWS}:{RWS+3}], s{sA68} offen sc1', tag=f'P{sb}')
        S.I(f's_add_u32 s{sA68}, s{sA68}, {KVB}')
    for sb in range(1, 8):
        S.wait(vm=f'P{sb}')
        for r in range(16): S.I(f'v_add_f32 {v(RB+r)}, {v(RB+r)}, {v(RB+16*sb+r)}')
    S.I(f'v_add_u32 v6, s{sMB}, v5')
    for q in range(4): S.I(f'ds_write_b128 v6, {v(RB+4*q,4)} offset:{q*1024}', tag='rw')
    S.wait(lg='rw')
    S.I('s_barrier')
    S.I(f's_lshl_b32 s3, s{sWAVE}, 11\ns_and_b32 s3, s3, 2048\nv_add_u32 v6, s3, v5')
    for src in range(4):
        for q2 in range(2):
            S.I(f'ds_read_b128 {v(RB+8*src+4*q2,4)}, v6 offset:{src*8192+q2*1024}', tag='rr')
    S.wait(lg='rr')
    S.I('s_barrier')
    for src in range(1, 4):
        for r in range(8): S.I(f'v_add_f32 {v(RB+r)}, {v(RB+r)}, {v(RB+8*src+r)}')
    for r in range(8):
        S.I(f'v_add_f32_dpp {v(RB+r)}, {v(RB+r)}, {v(RB+r)} row_ror:8 row_mask:0xa bank_mask:0xf')
    cvt8(S, RB+8, RB, 4)
    S.I(f's_lshl_b32 s3, s{sHD}, 1\ns_and_b32 s7, s{sWAVE}, 1\ns_add_u32 s3, s3, s7\ns_lshr_b32 s7, s{sWAVE}, 1')
    S.I(f's_lshl_b32 s4, s3, 10\ns_lshl_b32 s5, s7, 16\ns_add_u32 s4, s4, s5\ns_add_u32 s4, s4, {KVF}')
    S.I(f's_lshl_b32 s3, s3, 7\ns_lshl_b32 s5, s7, 13\ns_add_u32 s3, s3, s5\ns_add_u32 s{sA69}, s3, {FR}')
    S.I(f'buffer_store_dwordx4 {v(RB+8,4)}, v5, s[{RWS}:{RWS+3}], s4 offen sc1', tag='kvf')
    S.raw('    s_waitcnt vmcnt(0) lgkmcnt(0)')

    S.label('L_join')
    S.hist = []; S.vm = main_vm; S.lg = main_lg
    PL.free += list(INB)
    def refill():
        while len(S.bg) < 12:
            a = push_D(); b = False
            if PL.nd - PL.nt > opt.get('tlag', 7) or PL.nd >= NPRE: b = push_T()
            if PL.nd >= NPRE and not b: break
            if not a and not b: break
    NPRE = opt.get('npre', len(order))
    P = 64; E = 80; T = 112; PHIQ = 128
    S.I(f'{MF} {v(P,16)}, {v(WA,4)}, {v(QB,4)}, 0')
    S.I(f'{MF} {v(P,16)}, {v(WB,4)}, {v(QB+4,4)}, {v(P,16)}')
    for _ in range(4): push_D()
    S.run_bg(4)
    tr_addrs(vTa, 9, 'hi')
    S.run_bg(4)
    stamp(S, opt, 'ua')
    S.wait(vm='ust')
    set_flag(S, sA69)
    stamp(S, opt, 7)
    o_poll_issue()
    for _ in range(10):
        push_T(); push_D()
    S.bg_every = opt.get('bgQ', 8)
    softmax_pm(S, P, E, T, PHIQ)
    S.bg_every = 0
    while S.bg and len([o for o in S.bg if not o[0].startswith('TT')]) & 1: S.run_bg(1)
    stamp(S, opt, 'qs')
    poll(S, vFL, vFLa, 'pollO')
    stamp(S, opt, 'po')
    S.I(f's_and_b32 s3, s{sWAVE}, 1\ns_lshl_b32 s3, s3, 1\ns_lshl_b32 s7, s{sQUAD}, 2\ns_add_u32 s5, s3, s7\ns_lshl_b32 s3, s5, 11\ns_add_u32 s3, s3, {KVF}')
    for i in range(4):
        S.I(f'buffer_load_dwordx4 {v(32+4*i,4)}, v5, s[{RWS}:{RWS+3}], s3 offen offset:{i*1024} sc1', tag='kvf')
    S.I(f's_lshl_b32 s3, s{sSBLK}, 1\ns_lshr_b32 s7, s{sWAVE}, 1\ns_add_u32 s6, s3, s7\ns_lshl_b32 s3, s6, 11\ns_add_u32 s3, s3, {G_}')
    S.I('v_bfe_u32 v6, v1, 1, 4\nv_lshlrev_b32 v6, 7, v6\nv_and_b32 v7, 1, v1\nv_lshl_add_u32 v6, v7, 2, v6\nv_mov_b32 v14, v6')
    S.I(f'buffer_load_dword v10, v6, s[{RWS}:{RWS+3}], s3 offen sc1', tag='kvf')
    S.I(f's_lshl_b32 s3, s5, 16\ns_lshl_b32 s7, s6, 10\ns_add_u32 s3, s3, s7\ns_add_u32 s{sA68}, s3, {OF}\ns_add_u32 s6, s{sA68}, 65536')
    S.I(f's_lshl_b32 s3, s{sSBLK}, 3\ns_add_u32 s3, s3, s{sQUAD}\ns_lshl_b32 s3, s3, 2\ns_add_u32 s3, s3, s{sWAVE}\ns_lshl_b32 s3, s3, 7\ns_add_u32 s{sA69}, s3, {FO}')
    S.I(f's_mul_i32 s3, s{sDT}, {28*512}\ns_mul_i32 s7, s{sWAVE}, {7*512}\ns_add_u32 s3, s3, s7\ns_add_u32 s3, s3, {FU}')
    S.I('v_min_u32 v6, 27, v1\nv_lshl_add_u32 v6, v6, 7, s3')
    S.I(f's_lshl_b32 s3, s{sST}, 10\ns_add_u32 s3, s3, {FH}')
    S.I('v_bfe_u32 v7, v1, 3, 2\nv_lshlrev_b32 v7, 15, v7\nv_and_b32 v2, 7, v1\nv_lshl_add_u32 v7, v2, 7, v7\nv_add_u32 v7, s3, v7')
    S.I(f'v_cmp_gt_u32 vcc, 32, v1\nv_cndmask_b32 {v(vFLa)}, v7, v6, vcc')
    sKU, sKO, sBU, sBO = sMX, sMW, sB2, sB3
    S.I(f's_mul_i32 s{sBU}, s{sWAVE}, {28*16384}\ns_lshl_b32 s3, s{sDT}, 11\ns_add_u32 s{sBU}, s{sBU}, s3\ns_add_u32 s{sBU}, s{sBU}, {UF}')
    S.I(f's_lshl_b32 s{sBO}, s{sWAVE}, 19\ns_lshl_b32 s3, s{sST}, 11\ns_add_u32 s{sBO}, s{sBO}, s3\ns_add_u32 s{sBO}, s{sBO}, {OF}')
    ROUT = RW1
    srd(S, ROUT, POUT, 2048*1024)
    S.run_bg()
    for _ in range(3):
        push_T(); push_D()
    S.run_bg()
    S.wait(vm='kvf')
    stamp(S, opt, 'kvf')
    for hb in range(2):
        O = 64 + 16*hb
        S.I(f'{MF} {v(O,16)}, {v(32+8*hb,4)}, {v(PHIQ+8*hb,4)}, 0')
        S.I(f'{MF} {v(O,16)}, {v(36+8*hb,4)}, {v(PHIQ+8*hb+4,4)}, {v(O,16)}')
    push_T(); push_D(); S.run_bg()
    for hb in range(2):
        O = 64 + 16*hb
        S.I(f'v_add_f32 {v(O+8)}, {f2u(1e-6):#x}, {v(O+8)}\nv_rcp_f32 {v(O+8)}, {v(O+8)}\nv_mul_f32 {v(O+8)}, v10, {v(O+8)}')
        for r in range(8): S.I(f'v_mul_f32 {v(O+r)}, {v(O+8)}, {v(O+r)}')
        cvt8(S, O+12, O, 4)
        S.I(f'buffer_store_dwordx4 {v(O+12,4)}, v5, s[{RWS}:{RWS+3}], s{sA68 if hb == 0 else 6} offen sc1', tag='ost')
    stamp(S, opt, 'ost')
    while PL.nd < NPRE:
        push_T(); push_D(); S.run_bg()
    S.I(f'buffer_load_dwordx2 {v(vFL,2)}, {v(vFLa)}, s[{RWS}:{RWS+3}], 0 offen sc1', tag='pollU')
    stamp(S, opt, 'dd')
    while push_T(): S.run_bg()
    stamp(S, opt, 'td')
    S.wait(vm='ost')
    set_flag(S, sA69)
    stamp(S, opt, 'oa')
    poll(S, vFL, vFLa, 'pollU')
    stamp(S, opt, 8)

    DR = 128; ND = 12
    def direct_ops(i):
        r = DR + 8 * (i % ND)
        if i < 28:
            return pair_ops(f'U{i}', f's_lshl_b32 s4, s{sKU}, 14\ns_add_u32 s4, s4, s{sBU}\ns_add_u32 s{sKU}, s{sKU}, 1',
                f'buffer_load_dwordx4 {v(r,4)}, {v(vD0)}, s[{RWS}:{RWS+3}], s4 offen sc1',
                f'buffer_load_dwordx4 {v(r+4,4)}, {v(vD1)}, s[{RWS}:{RWS+3}], s4 offen sc1',
                f's_cmp_eq_u32 s{sKU}, 28\ns_cselect_b32 s{sKU}, 0, s{sKU}')
        return pair_ops(f'U{i}', f's_lshl_b32 s4, s{sKO}, 16\ns_add_u32 s4, s4, s{sBO}\ns_add_u32 s{sKO}, s{sKO}, 1',
                f'buffer_load_dwordx4 {v(r,4)}, {v(vH0)}, s[{RWS}:{RWS+3}], s4 offen sc1',
                f'buffer_load_dwordx4 {v(r+4,4)}, {v(vH1)}, s[{RWS}:{RWS+3}], s4 offen sc1',
                f's_and_b32 s{sKO}, s{sKO}, 7')
    PD = opt.get('pdC', 5)
    for i in range(PD): run(direct_ops(i))
    S.I(f's_lshl_b32 s3, s{sST}, 12\ns_add_u32 s3, s3, {G_}')
    S.I(f's_and_b32 s7, s{sWAVE}, 1\ns_lshl_b32 s5, s7, 11\nv_add_u32 v6, s5, v14\nv_xor_b32 v7, 0x800, v6')
    S.I(f'buffer_load_dword v10, v6, s[{RWS}:{RWS+3}], s3 offen sc1', tag='g')
    S.I(f'buffer_load_dword v11, v7, s[{RWS}:{RWS+3}], s3 offen sc1', tag='g')
    S.I(f's_lshl_b32 s3, s{sST}, 7\ns_lshl_b32 s7, s7, 6\ns_add_u32 s3, s3, s7\nv_and_b32 v6, 31, v1\nv_lshl_add_u32 v6, v6, 1, s3')
    S.I(f'global_load_ushort v12, v6, s[{PB2}:{PB2+1}]', tag='g')
    S.I(f's_lshl_b32 s3, s{sST}, 12\ns_lshl_b32 s7, s{sWAVE}, 10\ns_add_u32 s3, s3, s7\ns_add_u32 s3, s3, {FO}')
    S.I(f'v_and_b32 v6, 7, v1\nv_lshl_add_u32 {v(vFLa)}, v6, 7, s3')
    S.wait(lg='all')
    assert PL.nt == 28
    for i in range(36):
        r = DR + 8 * (i % ND)
        if i == 28 - PD - 4:
            S.I(f'buffer_load_dwordx2 {v(vFL,2)}, {v(vFLa)}, s[{RWS}:{RWS+3}], 0 offen sc1', tag='pollO2')
        S.wait(vm=f'U{i}', lg=(f'R{i}' if i >= 28 else None))
        if i + PD == 28:
            S.run_bg()
            poll(S, vFL, vFLa, 'pollO2')
        if i + PD < 36: S.push(direct_ops(i + PD))
        if PL.nd < len(order) and i >= 4: push_D()
        R = []
        if i >= 26 and i + 2 < 36:
            j = i + 2 - 28
            S.wait(vm=f'W{j}')
            b = AF + 8 * (j % 3)
            R = tr_list(lambda o: v(b+o, 2), vTa, PL.slot[('W', j)], 1024)
        n = 0
        npop = 4 if len(S.bg) > 2 else 2
        for i1 in range(2):
            for i0 in range(2):
                c = v(ACC+16*(2*i1+i0), 16)
                if i < 28:
                    S.I(f'{MF} {c}, {v(r+4*i1,4)}, {a_(8*i+4*i0,4)}, {c if i else 0}')
                else:
                    b = AF + 8 * ((i - 28) % 3)
                    S.I(f'{MF} {c}, {v(b+4*i1,4)}, {v(r+4*i0,4)}, {c}')
                if R: S.I(R[n], tag=f'R{i+2}')
                if npop == 4 or i0 == 0: S.run_bg(1)
                n += 1
        stamp(S, opt, f'C{i}')
        if i == 20:
            S.wait(vm='g')
            S.I('v_sub_f32 v10, 1.0, v10\nv_sub_f32 v11, 1.0, v11\nv_lshlrev_b32 v12, 16, v12\nv_mul_f32 v12, v10, v12')
            S.I(f's_lshl_b32 s3, s{sST}, 16\ns_and_b32 s7, s{sWAVE}, 1\ns_lshl_b32 s7, s7, 15\ns_add_u32 s3, s3, s7\ns_lshl_b32 s7, s{sDT}, 7\ns_add_u32 s3, s3, s7\ns_lshr_b32 s7, s{sWAVE}, 1\ns_lshl_b32 s7, s7, 6\ns_add_u32 s{sA68}, s3, s7')
            S.I('v_and_b32 v6, 31, v1\nv_lshlrev_b32 v6, 10, v6\nv_lshl_add_u32 v13, v9, 4, v6')
        if i == 27:
            for t in range(4):
                for rr in range(16):
                    if t == 0: S.I(f'v_fma_f32 {v(ACC+rr)}, v10, {v(ACC+rr)}, v12')
                    else: S.I(f'v_mul_f32 {v(ACC+16*t+rr)}, {v(10+(t&1))}, {v(ACC+16*t+rr)}')
    stamp(S, opt, 9)
    S.I('s_barrier')
    exchange(S, ACC)
    exchange_sum(S, ACC)
    cvt8(S, 32, ACC)
    for qp in range(2):
        b = 32 + 4*qp
        S.I(f'v_permlane32_swap_b32 {v(b)}, {v(b+2)}')
        S.I(f'v_permlane32_swap_b32 {v(b+1)}, {v(b+3)}')
        S.I(f'buffer_store_dwordx4 {v(b,4)}, v13, s[{ROUT}:{ROUT+3}], s{sA68} offen offset:{32*qp}', tag='out')
    stamp_out(S, opt)
    S.label('L_end')
    S.I('s_endpgm')

def build(opt):
    hdr = open(f'cdna_kernels/{NAME}.s.ref').read().split('\n')
    top = [l for l in hdr if l.startswith(';') and '@launch' not in l and 'Override launch' not in l and 'grid=ceil' not in l]
    out = '\n'.join(top) + '\n'
    out += f'; @launch grid=(256,1,1) block=(256,1,1) lds={LDS_TOTAL}\n'
    out += '.amdgcn_target "amdgcn-amd-amdhsa--gfx950"\n.text\n'
    name = NAME + '_kernel'
    S = Stream()
    gen(S, opt)
    out += f'.globl {name}\n.p2align 8\n.type {name},@function\n{name}:\n' + S.text()
    print('lines', len(S.out), 'nops', S.nnop, file=sys.stderr)
    out += '.p2align 8\n.fill 2048, 4, 0xbf800000\n'
    out += f'''.section .rodata,"a"
.p2align 6
.amdhsa_kernel {name}
  .amdhsa_next_free_vgpr 512
  .amdhsa_next_free_sgpr 102
  .amdhsa_accum_offset 256
  .amdhsa_group_segment_fixed_size 0
  .amdhsa_kernarg_size 104
  .amdhsa_user_sgpr_count 2
  .amdhsa_user_sgpr_kernarg_segment_ptr 1
  .amdhsa_system_sgpr_workgroup_id_x 1
.end_amdhsa_kernel
'''
    return out

if __name__ == '__main__':
    opt = {}
    for a in sys.argv[2:]:
        k, x = a.split('=')
        opt[k] = int(x)
    open(sys.argv[1], 'w').write(build(opt))
```

```python
import sys, math, struct
from asmlib import Stream

NAME = 'gated_mix__linear_kernel_hedgehog__mixer_token_mlp__prompt'
MB = 1 << 20
WS_E = 0
KVF = 0x10000
FR = 0x30000
FH = 0x40000
FKV = 0x60000
FU = 0x80000
FO = 0xA0000
G_ = 0xC0000
HF = 1 * MB
KVP = 3 * MB + 4096
OF = 6 * MB + 4096
UF = 8 * MB + 8192
STAMP_BASE = 12 * MB
WS_SIZE = 16 * MB
KVB = 4608
LOG2E = 0x3fb8aa3b
SPIN_MAX = 50000
LDS_TOTAL = 163840

def f2u(x): return struct.unpack('<I', struct.pack('<f', x))[0]
def v(a, n=1): return f'v{a}' if n == 1 else f'v[{a}:{a+n-1}]'
def a_(a, n=1): return f'a{a}' if n == 1 else f'a[{a}:{a+n-1}]'
MF = 'v_mfma_f32_32x32x16_bf16'

PX, PWQKV, PWPHI, PWO, PW1, PB1, PW2, PB2, PGW, POUT, PWS = 36, 38, 40, 42, 46, 48, 50, 52, 54, 56, 60
RX, RW, RWS, RW1 = 8, 12, 16, 20
RH = 64
sWAVE, sSBLK, sQUAD, sDT, sFT, sIDX, sXCD, sST = 24, 25, 26, 27, 28, 29, 30, 31
sB0, sB1, sK0, sK1 = 32, 33, 34, 35
TAG = 62
sC = 68
sMASK = 70
sEX = 72
sMB = 74
sCLS = 75
sA68, sA69 = 76, 77
sB2, sK2, sB3, sK3 = 44, 45, 58, 59
sMS = 69
sMX, sMW = 78, 79
AREA = [2, 0, 1, 3, 4]
def slot_addr(t): return AREA[t >> 2] * 32768 + (t & 3) * 2048

def srd(S, d, lo, nbytes):
    S.I(f's_mov_b32 s{d}, s{lo}\ns_mov_b32 s{d+1}, s{lo+1}\ns_mov_b32 s{d+2}, {nbytes}\ns_mov_b32 s{d+3}, 0x00020000')

def poll(S, vdata, vaddr, first_tag=None):
    ok = S.newlabel('L_ok'); lp = S.newlabel('L_spin')
    S.wait(vm=first_tag)
    S.I(f'v_cmp_ne_u64 vcc, s[{TAG}:{TAG+1}], {v(vdata,2)}')
    S.I('s_nop 4')
    S.I(f's_cbranch_vccz {ok}')
    S.I(f's_mov_b32 s3, {SPIN_MAX}')
    S.label(lp)
    S.I('s_sleep 2')
    S.raw(f'    buffer_load_dwordx2 {v(vdata,2)}, {v(vaddr)}, s[{RWS}:{RWS+3}], 0 offen sc1')
    S.raw('    s_waitcnt vmcnt(0)')
    S.I(f'v_cmp_ne_u64 vcc, s[{TAG}:{TAG+1}], {v(vdata,2)}')
    S.I('s_sub_u32 s3, s3, 1')
    S.I('s_cmp_eq_u32 s3, 0')
    S.I(f's_cbranch_scc1 {ok}')
    S.I('s_nop 2')
    S.I(f's_cbranch_vccnz {lp}')
    S.label(ok)

def set_flag(S, soff, vt=2):
    S.I(f'v_mov_b32 {v(vt)}, s{TAG}\nv_mov_b32 {v(vt+1)}, s{TAG+1}\nv_mov_b32 {v(vt+2)}, 0')
    S.I('s_mov_b64 exec, 1')
    S.I(f'buffer_store_dwordx2 {v(vt,2)}, {v(vt+2)}, s[{RWS}:{RWS+3}], s{soff} offen sc1', tag='flag')
    S.I('s_mov_b64 exec, -1')

def allreduce64(S, regs, tmp):
    for sh in (8, 4, 2, 1):
        for r in regs:
            S.I(f'v_add_f32_dpp {v(r)}, {v(r)}, {v(r)} row_ror:{sh} row_mask:0xf bank_mask:0xf')
    for op in ('v_permlane16_swap_b32', 'v_permlane32_swap_b32'):
        for r, t in zip(regs, tmp): S.I(f'v_mov_b32 {v(t)}, {v(r)}')
        for r, t in zip(regs, tmp): S.I(f'{op} {v(r)}, {v(t)}')
        for r, t in zip(regs, tmp): S.I(f'v_add_f32 {v(r)}, {v(r)}, {v(t)}')

def pair_allreduce2(S, pairs, post):
    for ra, rb, op in pairs: S.I(f'v_permlane32_swap_b32 {v(ra)}, {v(rb)}')
    for ra, rb, op in pairs: S.I(f'{op} {v(ra)}, {v(ra)}, {v(rb)}')
    for ra, rb, op in pairs: post(ra)
    for ra, rb, op in pairs: S.I(f'v_mov_b32 {v(rb)}, {v(ra)}')
    for ra, rb, op in pairs: S.I(f'v_permlane32_swap_b32 {v(ra)}, {v(rb)}')

def softmax_pm(S, P, E, T, OUT):
    mxA, mxB, mnA, mnB = T, T+1, T+2, T+3
    q4 = ((mxA, P, 'max'), (mxB, P+8, 'max'), (mnA, P, 'min'), (mnB, P+8, 'min'))
    for m, base, o in q4: S.I(f'v_{o}3_f32 {v(m)}, {v(base)}, {v(base+1)}, {v(base+2)}')
    for k in (3, 5):
        for m, base, o in q4: S.I(f'v_{o}3_f32 {v(m)}, {v(m)}, {v(base+k)}, {v(base+k+1)}')
    for m, base, o in q4: S.I(f'v_{o}_f32 {v(m)}, {v(m)}, {v(base+7)}')
    pair_allreduce2(S, [(mxA, mxB, 'v_max_f32'), (mnA, mnB, 'v_min_f32')], lambda r: S.I(f'v_mul_f32 {v(r)}, s{sC}, {v(r)}'))
    for hb, (mx, mn) in enumerate(((mxA, mnA), (mxB, mnB))):
        for i in range(8):
            S.I(f'v_fma_f32 {v(E+16*hb+i)}, {v(P+8*hb+i)}, s{sC}, -{v(mx)}')
            S.I(f'v_fma_f32 {v(E+16*hb+8+i)}, -{v(P+8*hb+i)}, s{sC}, {v(mn)}')
        for i in range(16):
            S.I(f'v_exp_f32 {v(E+16*hb+i)}, {v(E+16*hb+i)}')
    sm = [T+4, T+5, T+6, T+7]
    for g in range(4): S.I(f'v_add_f32 {v(sm[g])}, {v(E+8*g)}, {v(E+8*g+1)}')
    for i in range(2, 8):
        for g in range(4): S.I(f'v_add_f32 {v(sm[g])}, {v(sm[g])}, {v(E+8*g+i)}')
    pair_allreduce2(S, [(sm[0], sm[1], 'v_add_f32'), (sm[2], sm[3], 'v_add_f32')], lambda r: S.I(f'v_rcp_f32 {v(r)}, {v(r)}'))
    for g in range(4):
        for i in range(8): S.I(f'v_mul_f32 {v(E+8*g+i)}, {v(sm[g])}, {v(E+8*g+i)}')
        for i in range(4): S.I(f'v_cvt_pk_bf16_f32 {v(OUT+4*g+i)}, {v(E+8*g+2*i)}, {v(E+8*g+2*i+1)}')

def cvt8(S, dst, src, n=8):
    for i in range(n): S.I(f'v_cvt_pk_bf16_f32 {v(dst+i)}, {v(src+2*i)}, {v(src+2*i+1)}')

NSTAMP = 11
SSETS = {
 0: [0,1,2,3,4,5,6,7,8,9],
 1: [0,'Aw0','A0','Aw1','A1','Aw2','A2','Aw3','A3','Aw4'],
 2: [0,5,'B0','B4','Bkv','B8','B12','B16','B22','B28'],
 3: [0,6,'x1','x2','ust','ua',7,'qs','po','kvf'],
 4: [0,'kvf','ost','dd','td','oa',8,'C4','C12','C24'],
 5: [0,'A4','Aw5','A5','Aw6','A6','hp0','hp1','A7',4],
}
def stamp(S, opt, k, early=False):
    if early or not opt.get('stamps'): return
    L = SSETS[opt.get('sset', 0)]
    if k in L:
        n = L.index(k)
        S.I(f'{"s_memtime" if opt.get("stamps") == 2 else "s_memrealtime"} s[{80+2*n}:{81+2*n}]')
def stamp_out(S, opt):
    if opt.get('stamps'):
        n = NSTAMP - 1
        S.I('s_waitcnt vmcnt(0) lgkmcnt(0)')
        S.I(f'{"s_memtime" if opt.get("stamps") == 2 else "s_memrealtime"} s[{80+2*n}:{81+2*n}]')
        S.I('s_waitcnt lgkmcnt(0)')
        S.I('v_mov_b32 v2, 0')
        for k in range(n + 1): S.I(f'v_writelane_b32 v2, s{80+2*k}, {k}')
        S.I(f's_lshl_b32 s3, s2, 2\ns_add_u32 s3, s3, s{sWAVE}\ns_lshl_b32 s3, s3, 6\ns_add_u32 s3, s3, {STAMP_BASE}')
        S.I('v_lshlrev_b32 v3, 2, v1')
        S.I('s_mov_b64 exec, 0xffff')
        S.I(f'buffer_store_dword v2, v3, s[{RWS}:{RWS+3}], s3 offen')

INBOX = [slot_addr(4), slot_addr(6), slot_addr(8)]
def exchange(S, ACC):
    for i in range(1, 4):
        S.I(f's_xor_b32 s3, s{sWAVE}, {i}\ns_lshl_b32 s3, s3, 13\nv_add_u32 v6, s3, v5')
        for q in range(4):
            S.I(f'ds_write_b128 v6, {v(ACC+16*i+4*q,4)} offset:{INBOX[i-1]+q*1024}', tag='xw')
    S.I(f'v_add_u32 v7, s{sMB}, v5')
    S.wait(lg='xw')
    S.I('s_barrier')
    for i in range(1, 4):
        for q in range(4):
            S.I(f'ds_read_b128 {v(ACC+16*i+4*q,4)}, v7 offset:{INBOX[i-1]+q*1024}', tag=f'xr{i}')
def exchange_sum(S, ACC):
    for i in range(1, 4):
        S.wait(lg=f'xr{i}')
        for r in range(16): S.I(f'v_add_f32 {v(ACC+r)}, {v(ACC+r)}, {v(ACC+16*i+r)}')

def gen(S, opt):
    ROT = opt.get('rot', 1)
    vXa, vXb, vW, vW2 = 10, 11, 12, 13
    vW1a, vW1b, vYa, vYb, vOa, vOb = 14, 15, 16, 17, 18, 19
    vH0, vH1, vD0, vD1 = 20, 21, 22, 23
    vXr = 24
    vWr = 224
    vBr = 226
    vTy, vTa = 24, 226
    vLP = 8
    FR_ = 32
    AQ, AK, AV = 80, 96, 112
    IP, IM = 216, 220
    QB, WA, WB = 240, 248, 252
    vFL, vFLa = 236, 238
    ACC = 64; AF = 32

    def NT(cond, bit): return 'nt ' if cond and (opt.get('ntlast', 0) & bit) else ''
    def pair_ops(tag, pre, l0, l1, post):
        def f0():
            S.I(pre); S.I(l0, tag=tag)
        def f1():
            S.I(l1, tag=tag); S.I(post)
        return [(tag, f0), (tag, f1)]
    def run(ops):
        for o in ops: (o[1] if isinstance(o, tuple) else o)()
    def cond_block(cls, body):
        S.run_bg()
        lab = S.newlabel('L_skip')
        S.I(f's_cmp_lg_u32 s{sCLS}, {cls}\ns_cbranch_scc1 {lab}')
        sv = list(S.vm)
        body()
        S.vm = sv
        S.label(lab)

    S.I('s_cmp_ge_u32 s2, 256\ns_cbranch_scc1 L_end')
    stamp(S, opt, 0)
    S.I('s_load_dwordx16 s[36:51], s[0:1], 0')
    S.I('s_load_dwordx8 s[52:59], s[0:1], 64')
    S.I('s_load_dwordx2 s[60:61], s[0:1], 96')
    S.I('s_getpc_b64 s[66:67]')
    S.I(f's_and_b32 s{sXCD}, s2, 7\ns_lshr_b32 s{sIDX}, s2, 3')
    S.I(f's_and_b32 s4, s{sIDX}, 7\ns_lshl_b32 s3, s4, 12')
    S.I('v_lshl_add_u32 v7, v0, 4, s3')
    S.I('global_load_dwordx4 v[232:235], v7, s[66:67]', tag='cpf')
    S.I('v_and_b32 v1, 63, v0\nv_lshrrev_b32 v2, 6, v0')
    S.I(f's_lshr_b32 s3, s{sXCD}, 1\ns_lshl_b32 s3, s3, 3\ns_add_u32 s{sSBLK}, s3, s4')
    S.I(f'v_readfirstlane_b32 s{sWAVE}, v2')
    S.I('v_lshrrev_b32 v2, 3, v1\nv_and_b32 v3, 7, v1\nv_lshrrev_b32 v4, 4, v1')
    S.I(f's_and_b32 s3, s{sXCD}, 1\ns_lshl_b32 s3, s3, 2\ns_lshr_b32 s7, s{sIDX}, 3\ns_add_u32 s{sQUAD}, s3, s7')
    RA = opt.get('rotA', 8)
    if RA == 8:   S.I(f's_lshl_b32 s7, s7, 1\ns_add_u32 s{sK0}, s7, s4\ns_and_b32 s{sK0}, s{sK0}, 7')
    elif RA == 4: S.I(f's_add_u32 s{sK0}, s7, s4\ns_and_b32 s{sK0}, s{sK0}, 3')
    else:         S.I(f's_mov_b32 s{sK0}, 0')
    S.I(f's_lshl_b32 s5, s{sSBLK}, 16\ns_lshl_b32 s6, s{sQUAD}, 13\ns_add_u32 s6, s6, s5\ns_lshl_b32 s{sMX}, s{sWAVE}, 11\ns_add_u32 s6, s6, s{sMX}')
    S.I('v_lshlrev_b32 v5, 4, v1')
    S.I(f'v_xor_b32 v6, v3, v4\nv_lshlrev_b32 v6, 4, v6\nv_lshl_add_u32 {v(vXa)}, v2, 10, v6')
    S.I(f'v_xor_b32 {v(vXb)}, 64, {v(vXa)}\nv_add_u32 {v(vXb)}, 7168, {v(vXb)}')
    S.I('v_and_b32 v6, 1, v4\nv_lshlrev_b32 v6, 2, v6\nv_xor_b32 v6, v3, v6\nv_lshlrev_b32 v6, 4, v6')
    S.I(f'v_mul_u32_u24 v7, 3072, v2\nv_add_u32 {v(vW)}, v7, v6\nv_add_u32 {v(vW2)}, 24576, {v(vW)}')
    S.I(f's_lshl_b32 s7, s{sWAVE}, 14\ns_add_u32 s{sB0}, s5, s7')
    S.I(f's_mul_i32 s{sB1}, s{sWAVE}, {16*3072}\ns_lshl_b32 s7, s{sQUAD}, 7\ns_add_u32 s{sB1}, s{sB1}, s7')
    S.I(f's_mul_i32 s{sMW}, s{sWAVE}, 6144\ns_add_u32 s{sMW}, s{sMW}, 8192')
    S.I(f's_mov_b32 s{sK1}, s{sK0}')
    S.I('v_mov_b32 v9, 0')
    S.I(f's_mov_b32 s{RX+2}, {2048*1024}\ns_mov_b32 s{RX+3}, 0x00020000\ns_mov_b32 s{RW+2}, {512*3072}\ns_mov_b32 s{RW+3}, 0x00020000\ns_mov_b32 s{RWS+2}, {WS_SIZE}\ns_mov_b32 s{RWS+3}, 0x00020000')
    S.I('s_waitcnt lgkmcnt(0)')
    S.I(f's_mov_b64 s[{RX}:{RX+1}], s[{PX}:{PX+1}]')
    S.I(f'buffer_load_dwordx4 v[128:131], v5, s[{RX}:{RX+3}], s6 offen', tag='lnx')
    S.I(f'buffer_load_dwordx4 v[132:135], v5, s[{RX}:{RX+3}], s6 offen offset:1024', tag='lnx')
    S.I(f'global_load_dwordx4 v[136:139], v5, s[{PGW}:{PGW+1}]', tag='lnx')
    S.I(f's_mov_b64 s[{RWS}:{RWS+1}], s[{PWS}:{PWS+1}]\ns_mov_b64 s[{RW}:{RW+1}], s[{PWQKV}:{PWQKV+1}]')
    S.I(f'buffer_load_dwordx2 v[164:165], v9, s[{RWS}:{RWS+3}], 0 offen sc1', tag='lnx')

    if opt.get('tlb', 0):
        def touch(ptr, n, stride, first=0):
            S.I(f'v_min_u32 v7, {n-1}, v1\nv_mul_u32_u24 v7, {stride}, v7' + (f'\nv_add_u32 v7, {first}, v7' if first else ''))
            S.I(f'global_load_dword v239, v7, s[{ptr}:{ptr+1}]', tag='tl')
        groups = [[(PW1, 8, 1 << 20 - 0), (PB1, 1, 0)], [(PW2, 7, 1 << 20), (PB2, 1, 0)], [(PWS, 4, 3 * MB, 0), (PWPHI, 1, 0)], [(POUT, 2, 1 << 20), (PWO, 1, 0)]]
        groups[0][0] = (PW1, 7, 1 << 20)
        done = S.newlabel('L_tl')
        sv = list(S.vm)
        for w in range(4):
            nx = S.newlabel('L_tl')
            S.I(f's_cmp_lg_u32 s{sWAVE}, {w}\ns_cbranch_scc1 {nx}')
            for g in groups[w]:
                if g[0] == PWS:
                    for hole in (3*MB, 5*MB + 786432, 6*MB, 10*MB - 4096):
                        S.I(f'v_mov_b32 v7, {hole}')
                        S.I(f'global_load_dword v239, v7, s[{PWS}:{PWS+1}]', tag='tl')
                else: touch(*g)
            S.label(nx)
        S.vm = sv
    def adv(sk, st):
        if RA == 8: return f's_add_u32 s{sk}, s{sk}, 1\ns_and_b32 s{sk}, s{sk}, 7'
        if RA == 4:
            nxt = st + 1
            return f's_add_u32 s{sk}, s{sk}, 1\ns_and_b32 s{sk}, s{sk}, 3' + (f'\ns_or_b32 s{sk}, s{sk}, 4' if nxt >= 4 else '')
        return f's_add_u32 s{sk}, s{sk}, 1'
    def x_ops(st):
        slot = (st % 3) * 32768
        return pair_ops(f'S{st}', f's_lshl_b32 s4, s{sK0}, 7\ns_add_u32 m0, s{sMX}, {slot}\ns_add_u32 s4, s4, s{sB0}',
            f'buffer_load_dwordx4 {v(vXa)}, s[{RX}:{RX+3}], s4 offen {NT(st >= 6, 1)}lds',
            f'buffer_load_dwordx4 {v(vXb)}, s[{RX}:{RX+3}], s4 offen offset:1024 {NT(st >= 6, 1)}lds', adv(sK0, st))
    def w_ops(st):
        slot = (st % 3) * 32768
        ops = []
        for half in range(2):
            for seg in range(3):
                def f(half=half, seg=seg):
                    if seg == 0:
                        S.I(f's_add_u32 m0, s{sMW}, {slot + 3072*half}')
                        if half == 0: S.I(f's_mul_i32 s4, s{sK1}, {64*3072}\ns_add_u32 s4, s4, s{sB1}')
                    S.I(f'buffer_load_dwordx4 {v(vW2 if half else vW)}, s[{RW}:{RW+3}], s4 offen offset:{seg*1024} {NT(st >= 7, 1)}lds', tag=f'S{st}')
                    if half and seg == 2: S.I(adv(sK1, st))
                ops.append((f'S{st}', f))
        return ops
    run(x_ops(0)); run(w_ops(0)[:3])
    S.I(f'v_mul_u32_u24 v7, 3584, v2\nv_add_u32 {v(vW1a)}, v7, v6')
    S.I(f'v_lshl_add_u32 {v(vYa)}, v2, 12, v6\nv_lshl_add_u32 {v(vOa)}, v2, 10, v6')
    S.I('v_lshrrev_b32 v9, 5, v1')
    S.I(f's_mov_b32 s{sC}, {LOG2E}')
    S.I(f's_lshr_b32 s3, s{sWAVE}, 1\ns_lshl_b32 s3, s3, 12')
    S.I('v_and_b32 v6, 31, v1\nv_lshlrev_b32 v6, 7, v6\nv_bfe_u32 v7, v1, 1, 3\nv_xor_b32 v7, v7, v9\nv_lshl_add_u32 v6, v7, 4, v6')
    S.I(f'v_add_u32 {v(vXr)}, s3, v6')
    run(w_ops(0)[3:4])
    for ks in range(1, 4): S.I(f'v_xor_b32 {v(vXr+ks)}, {32*ks}, {v(vXr)}')
    S.I(f'v_bfe_u32 {v(vLP)}, v1, 2, 2\nv_lshlrev_b32 {v(vLP)}, 7, {v(vLP)}')
    S.I(f'v_bfe_u32 v7, v1, 4, 1\nv_lshl_add_u32 {v(vLP)}, v7, 5, {v(vLP)}')
    S.I(f'v_and_b32 v7, 3, v1\nv_lshl_add_u32 {v(vLP)}, v7, 3, {v(vLP)}')
    S.I(f'v_bfe_u32 v7, v1, 3, 1\nv_lshl_add_u32 {v(vLP)}, v7, 6, {v(vLP)}')
    run(w_ops(0)[4:5])
    S.I(f's_and_b32 s3, s{sWAVE}, 1\ns_lshl_b32 s3, s3, 6')
    S.I(f'v_xor_b32 v7, s3, {v(vLP)}')
    S.I(f'v_mul_u32_u24 {v(vWr)}, 3072, v9\nv_add_u32 {v(vWr)}, {v(vWr)}, v7\nv_add_u32 {v(vWr)}, 8192, {v(vWr)}')
    run(w_ops(0)[5:6])
    LDS_SCR = 4 * 32768
    S.I(f's_mul_i32 s3, s{sWAVE}, 2176\ns_add_u32 s3, s3, {LDS_SCR}\nv_add_u32 v188, s3, v5')
    S.I('v_bfe_u32 v6, v1, 2, 2\nv_mul_u32_u24 v6, 1088, v6\nv_lshl_add_u32 v6, v4, 5, v6\nv_and_b32 v7, 3, v1\nv_lshl_add_u32 v6, v7, 3, v6')
    S.I(f's_lshl_b32 s3, s{sWAVE}, 8\ns_add_u32 s3, s3, {LDS_SCR}\nv_add_u32 v189, s3, v6')
    S.I(f's_lshl_b32 s3, s{sSBLK}, 2\ns_lshr_b32 s7, s{sQUAD}, 1\ns_add_u32 s3, s3, s7\ns_lshl_b32 s3, s3, 14\ns_lshl_b32 s7, s{sWAVE}, 12\ns_add_u32 s3, s3, s7')
    S.I(f's_and_b32 s7, s{sQUAD}, 1\ns_lshl_b32 s7, s7, 9\ns_add_u32 s3, s3, s7\ns_add_u32 s{sA68}, s3, {HF}')
    S.I('v_and_b32 v7, 31, v1\nv_lshlrev_b32 v7, 4, v7\nv_lshl_add_u32 v190, v9, 10, v7')
    S.I(f's_lshr_b32 s5, s6, 4\ns_add_u32 s5, s5, {G_}\nv_lshlrev_b32 v191, 2, v1')

    S.wait(vm='lnx')
    stamp(S, opt, 1)
    S.push(x_ops(1) + w_ops(1) + x_ops(2) + w_ops(2))
    S.bg_every = opt.get('bgLN', 12)
    fa, fb, fg = 140, 148, 156
    for dst, src in ((fa, 128), (fb, 132), (fg, 136)):
        for i in range(4):
            S.I(f'v_lshlrev_b32 {v(dst+2*i)}, 16, {v(src+i)}\nv_and_b32 {v(dst+2*i+1)}, 0xffff0000, {v(src+i)}')
    S.I(f'v_readfirstlane_b32 s{TAG}, v164\nv_readfirstlane_b32 s{TAG+1}, v165')
    sA, sB_, gA, gB = 172, 173, 174, 175
    S.I(f'v_add_f32 {v(sA)}, {v(fa)}, {v(fa+1)}\nv_add_f32 {v(sB_)}, {v(fb)}, {v(fb+1)}')
    S.I(f'v_mul_f32 {v(gA)}, {v(fa)}, {v(fg)}\nv_mul_f32 {v(gB)}, {v(fb)}, {v(fg)}')
    S.I(f's_mul_i32 s{TAG}, s{TAG}, 1664525\ns_add_u32 s{TAG}, s{TAG}, 1013904223')
    S.I(f's_mul_i32 s{TAG+1}, s{TAG+1}, 22695477\ns_add_u32 s{TAG+1}, s{TAG+1}, 1')
    for i in range(1, 8):
        if i >= 2: S.I(f'v_add_f32 {v(sA)}, {v(sA)}, {v(fa+i)}\nv_add_f32 {v(sB_)}, {v(sB_)}, {v(fb+i)}')
        S.I(f'v_fmac_f32 {v(gA)}, {v(fa+i)}, {v(fg+i)}\nv_fmac_f32 {v(gB)}, {v(fb+i)}, {v(fg+i)}')
    allreduce64(S, [sA, sB_, gA, gB], [176, 177, 178, 179])
    S.I(f'v_mul_f32 {v(sA)}, {f2u(1/512):#x}, {v(sA)}\nv_mul_f32 {v(sB_)}, {f2u(1/512):#x}, {v(sB_)}')
    for i in range(8):
        S.I(f'v_sub_f32 {v(fa+i)}, {v(fa+i)}, {v(sA)}\nv_sub_f32 {v(fb+i)}, {v(fb+i)}, {v(sB_)}')
    S.I(f'v_mul_f32 {v(sA)}, {v(fa)}, {v(fa)}\nv_mul_f32 {v(sB_)}, {v(fb)}, {v(fb)}')
    for i in range(1, 8):
        S.I(f'v_fmac_f32 {v(sA)}, {v(fa+i)}, {v(fa+i)}\nv_fmac_f32 {v(sB_)}, {v(fb+i)}, {v(fb+i)}')
    S.I(f'v_cmp_eq_u32 vcc, 0, v1\nv_cndmask_b32 {v(gA)}, {v(gB)}, {v(gA)}, vcc')
    S.I(f'v_mul_f32 {v(gA)}, s{sC}, {v(gA)}\nv_exp_f32 {v(gA)}, -{v(gA)}\nv_add_f32 {v(gA)}, 1.0, {v(gA)}\nv_rcp_f32 {v(gA)}, {v(gA)}')
    allreduce64(S, [sA, sB_], [176, 177])
    S.I(f'v_mov_b32 v176, {f2u(1e-5):#x}')
    S.I(f'v_fmamk_f32 {v(sA)}, {v(sA)}, {f2u(1/512):#x}, v176\nv_fmamk_f32 {v(sB_)}, {v(sB_)}, {f2u(1/512):#x}, v176')
    S.I(f'v_rsq_f32 {v(sA)}, {v(sA)}\nv_rsq_f32 {v(sB_)}, {v(sB_)}')
    for i in range(8):
        S.I(f'v_mul_f32 {v(fa+i)}, {v(sA)}, {v(fa+i)}\nv_mul_f32 {v(fb+i)}, {v(sB_)}, {v(fb+i)}')
    cvt8(S, 128, fa, 4); cvt8(S, 132, fb, 4)
    S.bg_every = 0
    S.I('ds_write_b128 v188, v[128:131]', tag='lnw')
    S.I('ds_write_b128 v188, v[132:135] offset:1088', tag='lnw')
    S.I('s_mov_b64 exec, 3')
    S.I(f'buffer_store_dword {v(gA)}, v191, s[{RWS}:{RWS+3}], s5 offen sc1', tag='hst')
    S.I('s_mov_b64 exec, -1')

    def w1_ops(m0expr, tag, nt=''):
        return pair_ops(tag, f's_mul_i32 s4, s{sK2}, {16*3584}\n{m0expr}\ns_add_u32 s4, s4, s{sB2}\ns_add_u32 s{sK2}, s{sK2}, {0 if opt.get("fakeW1") and tag else 1}',
            f'buffer_load_dwordx4 {v(vW1a)}, s[{RW1}:{RW1+3}], s4 offen {nt}lds',
            f'buffer_load_dwordx4 {v(vW1b)}, s[{RW1}:{RW1+3}], s4 offen offset:1024 {nt}lds',
            f's_and_b32 s{sK2}, s{sK2}, 31')
    bslot = {k: 12 + k for k in range(8)}
    for k in range(8, 19): bslot[k] = k - 8
    for k in range(19, 32): bslot[k] = bslot[k - 19]
    def b_ops(k): return w1_ops(f's_add_u32 m0, s{sMB}, {slot_addr(bslot[k])}', f'B{k}', NT(k >= 24, 2))
    def h_ops(k):
        return pair_ops(f'H{k}', f's_lshl_b32 s4, s{sK3}, 14\ns_add_u32 s4, s4, s{sB3}\ns_add_u32 s{sK3}, s{sK3}, {0 if opt.get("fakeH") and k >= 4 else 1}',
            f'buffer_load_dwordx4 {a_(8*k,4)}, {v(vH0)}, s[{RH}:{RH+3}], s4 offen sc1 {NT(k >= 28, 2)}',
            f'buffer_load_dwordx4 {a_(8*k+4,4)}, {v(vH1)}, s[{RH}:{RH+3}], s4 offen sc1 {NT(k >= 28, 2)}',
            f's_and_b32 s{sK3}, s{sK3}, 31')
    def m1_block():
        for q in range(4): run(w1_ops(f's_add_u32 m0, s{sMS}, {q*2048}', None))
        S.I(f's_add_u32 s{sMS}, s{sMS}, 32768')
    def tr_addrs(base, gshift, wsel):
        if wsel == 'hi': S.I(f's_lshr_b32 s3, s{sWAVE}, 1\ns_lshl_b32 s3, s3, 6')
        else: S.I(f's_and_b32 s3, s{sWAVE}, 1\ns_lshl_b32 s3, s3, 6')
        S.I(f'v_xor_b32 v7, s3, {v(vLP)}\nv_lshl_add_u32 v7, v9, {gshift}, v7\nv_add_u32 {v(base)}, s{sMB}, v7')
        S.I(f'v_xor_b32 {v(base+1)}, 64, {v(base)}')
        for wdw in (1, 2):
            S.I(f'v_add_u32 {v(base+2*wdw)}, {wdw*0x10000:#x}, {v(base)}\nv_add_u32 {v(base+2*wdw+1)}, {wdw*0x10000:#x}, {v(base+1)}')

    def setup1():
        S.I(f's_and_b32 s3, s{sXCD}, 1\ns_lshl_b32 s3, s3, 2\ns_and_b32 s{sCLS}, s{sIDX}, 3\ns_add_u32 s{sDT}, s3, s{sCLS}')
        S.I(f's_lshr_b32 s3, s{sXCD}, 1\ns_mul_i32 s7, s3, 7\ns_lshr_b32 s5, s{sIDX}, 2\ns_add_u32 s{sFT}, s7, s5')
        S.I(f's_lshl_b32 s3, s3, 3\ns_add_u32 s{sST}, s3, s5')
        S.I(f's_mul_i32 s7, s5, 37\ns_lshr_b32 s7, s7, 3\ns_lshl_b32 s3, s{sCLS}, 3\ns_add_u32 s7, s7, s3\ns_and_b32 s3, s{sXCD}, {opt.get("xoff",0)}\ns_lshl_b32 s3, s3, 2\ns_add_u32 s7, s7, s3\ns_and_b32 s{sK2}, s7, {31 if ROT else 0}\ns_mov_b32 s{sK3}, s{sK2}')
    def setup2():
        S.I(f's_mul_i32 s{sB2}, s{sWAVE}, {512*3584}\ns_lshl_b32 s3, s{sFT}, 7\ns_add_u32 s{sB2}, s{sB2}, s3')
        S.I(f's_lshl_b32 s{sMB}, s{sWAVE}, 13')
        srd(S, RW1, PW1, 2048*3584)
        S.I(f's_cmp_ge_u32 s{sIDX}, 28\ns_cselect_b32 s{RW1+2}, 0, s{RW1+2}')
        S.I(f's_add_u32 s{sMS}, s{sMB}, {slot_addr(12)}')
        S.I(f'v_add_u32 {v(vW1b)}, {8*3584-1024}, {v(vW1a)}')
        S.I(f's_lshl_b32 s3, s{sSBLK}, 3\ns_add_u32 s3, s3, s{sQUAD}\ns_lshl_b32 s3, s3, 7\ns_lshl_b32 s7, s{sWAVE}, 15\ns_add_u32 s3, s3, s7\ns_add_u32 s{sA69}, s3, {FH}')
    def setup3():
        for ks in range(4): S.I(f'v_add_u32 {v(vXr+4+ks)}, 0x10000, {v(vXr+ks)}')
        S.I(f'v_add_u32 {v(vWr+1)}, 0x10000, {v(vWr)}')
    def wphi_loads():
        S.I(f's_and_b32 s3, s{sWAVE}, 1\ns_lshl_b32 s3, s3, 1\ns_lshl_b32 s7, s{sQUAD}, 2\ns_add_u32 s3, s3, s7\ns_lshl_b32 s3, s3, 9')
        S.I('v_bfe_u32 v6, v1, 4, 1\nv_lshlrev_b32 v6, 9, v6\nv_and_b32 v7, 15, v1\nv_lshl_add_u32 v6, v7, 1, v6\nv_lshl_add_u32 v6, v9, 7, v6\nv_add_u32 v6, s3, v6')
        for j in range(8):
            d = (j & 3) + 8 * (j >> 2)
            S.I(f'global_load_ushort {v(180 + j)}, v6, s[{PWPHI}:{PWPHI+1}] offset:{d*32}', tag='wphi')
    def setup4():
        S.I(f's_lshl_b32 s{sB3}, s{sWAVE}, 19\ns_lshl_b32 s3, s{sDT}, 11\ns_add_u32 s{sB3}, s{sB3}, s3\ns_add_u32 s{sB3}, s{sB3}, {HF}')
        srd(S, RH, PWS, WS_SIZE)
        S.I(f's_cmp_ge_u32 s{sIDX}, 28\ns_cselect_b32 s{RH+2}, 0, s{RH+2}')
        S.I(f's_mov_b32 s{sMASK}, 0x0000ffff\ns_mov_b32 s{sMASK+1}, 0x0000ffff')
        S.I(f's_and_b32 s3, s{sWAVE}, 1\ns_lshl_b32 s3, s3, 10')
        S.I(f'v_add_u32 {v(vH0)}, s3, v5\nv_xor_b32 {v(vH1)}, 0x400, {v(vH0)}')
    def setup5():
        tr_addrs(vBr, 10, 'hi')
    def setup6():
        S.I(f's_lshr_b32 s3, s{sWAVE}, 1\ns_lshl_b32 s3, s3, 10')
        S.I(f'v_add_u32 {v(vD0)}, s3, v5\nv_xor_b32 {v(vD1)}, 0x400, {v(vD0)}')
        S.I(f'v_add_u32 {v(vYb)}, {8*4096-1024}, {v(vYa)}\nv_add_u32 {v(vOb)}, {8*1024-1024}, {v(vOa)}')
        S.I('v_and_b32 v6, 31, v1\nv_lshlrev_b32 v7, 2, v9\nv_sub_u32 v192, v6, v7')
        S.I('v_mov_b32 v193, 0x3f80\nv_mov_b32 v194, 0x3f800000')
    def ident(base, off):
        def f():
            for jj in range(4):
                f0 = ((2*jj) & 3) + 8*(jj >> 1) + off
                S.I(f'v_cmp_eq_u32 vcc, {f0}, v192\nv_cmp_eq_u32 s[{sEX}:{sEX+1}], {f0+1}, v192\nv_cndmask_b32 {v(base+jj)}, 0, v193, vcc')
                S.I(f'v_cndmask_b32 {v(base+jj)}, {v(base+jj)}, v194, s[{sEX}:{sEX+1}]')
        return f
    def wphi_pack():
        for i in range(4): S.I(f'v_lshl_or_b32 {v(168+i)}, {v(181+2*i)}, 16, {v(180+2*i)}')
        for i in range(4):
            S.I(f'v_cndmask_b32 {v(WA+i)}, 0, {v(168+i)}, s[{sMASK}:{sMASK+1}]')
            S.I(f'v_cndmask_b32 {v(WB+i)}, {v(168+i)}, 0, s[{sMASK}:{sMASK+1}]')
    def kv_addr():
        S.I(f's_and_b32 s3, s{sWAVE}, 1\ns_lshl_b32 s7, s{sQUAD}, 1\ns_add_u32 s3, s3, s7\ns_lshl_b32 s3, s3, 5\ns_add_u32 s3, s3, s{sSBLK}')
        S.I(f's_lshr_b32 s5, s{sWAVE}, 1')
        S.I(f's_lshl_b32 s7, s3, 1\ns_add_u32 s7, s7, s5\ns_lshl_b32 s7, s7, 7\ns_add_u32 s{sA69}, s7, {FKV}')
        S.I(f's_mul_i32 s3, s3, {KVB}\ns_add_u32 s{sA68}, s3, {KVP}')
        S.I('s_lshl_b32 s7, s5, 8\ns_add_u32 s7, s7, 4096\nv_lshl_add_u32 v232, v1, 2, s7')
        S.I(f's_xor_b32 s3, s{sWAVE}, 2\ns_lshl_b32 s3, s3, 13\nv_add_u32 v233, s3, v5\nv_add_u32 v234, s{sMB}, v5')
    def h_poll_issue():
        S.I(f's_lshr_b32 s3, s{sDT}, 1\ns_lshl_b32 s3, s3, 15\ns_add_u32 s3, s3, {FH}')
        S.I(f'v_lshl_add_u32 {v(vFLa)}, v0, 7, s3')
        S.I(f'buffer_load_dwordx2 {v(vFL,2)}, {v(vFLa)}, s[{RWS}:{RWS+3}], 0 offen sc1', tag='pollH')
    HP = opt.get('hpoll', 24)
    extras = {1: setup1, 2: setup2, 3: setup3, 5: wphi_loads, 6: setup4, 9: setup5, 10: setup6, 13: ident(IP, 0), 14: ident(IM, 16),
              17: wphi_pack, 18: kv_addr}

    def a_reads(kk):
        st, ks = kk >> 2, kk & 3
        slot = st % 3
        hi = slot >> 1
        so = (slot & 1) * 32768
        b = FR_ + 16 * (kk % 3)
        R = [f'ds_read_b128 {v(b,4)}, {v(vXr+4*hi+ks)} offset:{so}']
        for seg in range(3):
            for t in range(2):
                R.append(f'ds_read_b64_tr_b16 {v(b+4+4*seg+2*t,2)}, {v(vWr+hi)} offset:{so + ks*6144 + seg*1024 + t*512}')
        return R
    def a_mfmas(kk):
        b = FR_ + 16 * (kk % 3)
        c = (lambda r: v(r, 16)) if kk else (lambda r: '0')
        return [f'{MF} {v(AQ,16)}, {v(b+4,4)}, {v(b,4)}, {c(AQ)}',
                f'{MF} {v(AK,16)}, {v(b+8,4)}, {v(b,4)}, {c(AK)}',
                f'{MF} {v(AV,16)}, {v(b,4)}, {v(b+12,4)}, {c(AV)}']
    HFS = opt.get('hfs', 2)
    m1pos = {0: {0: (0, 3), 1: (1, 4), 2: (2, 5), 3: (1, 5)}, 1: {0: (0, 2), 1: (1, 3), 2: (2, 4), 3: (3, 5)}, 2: {c: (4, 5) for c in range(4)}}[opt.get('m1v', 0)]
    for kk in range(34):
        st, ks = kk >> 2, kk & 3
        R = a_reads(kk) if kk < 32 else []
        M = a_mfmas(kk - 2) if kk >= 2 else []
        if M: S.wait(lg=f'R{kk-2}')
        if ks == 0:
            S.comment(f'stage {st}')
            for m in M[:2]: S.I(m)
            stamp(S, opt, f'Aw{st}')
            if st < 8: S.wait(vm=[f'S{st}'] + (['hst'] if st == HFS else []), lg='all')
            else: S.wait(lg='all')
            S.I('s_barrier')
            stamp(S, opt, f'A{st}')
            if st == 0:
                stamp(S, opt, 2)
                S.I('ds_read_b64_tr_b16 v[128:129], v189', tag='lnr')
                S.I(f'ds_read_b64_tr_b16 v[130:131], v189 offset:{4*1088}', tag='lnr')
                S.I('ds_read_b64_tr_b16 v[132:133], v189 offset:128', tag='lnr')
                S.I(f'ds_read_b64_tr_b16 v[134:135], v189 offset:{4*1088+128}', tag='lnr')
            if st == 4: stamp(S, opt, 3)
            if 1 <= st <= 5: S.push(x_ops(st + 2) + w_ops(st + 2))
            elif st == 6:
                for q in range(4): S.push(b_ops(8 + q))
            for r in R[:4]: S.I(r, tag=f'R{kk}')
            if st == 0:
                S.wait(lg='lnr')
                S.I(f'buffer_store_dwordx4 v[128:131], v190, s[{RWS}:{RWS+3}], s{sA68} offen sc1', tag='hst')
                S.I(f'buffer_store_dwordx4 v[132:135], v190, s[{RWS}:{RWS+3}], s{sA68} offen offset:2048 sc1', tag='hst')
            S.run_bg(1)
            for m in M[2:]: S.I(m)
            for r in R[4:]: S.I(r, tag=f'R{kk}')
            S.run_bg(1)
            if st == HFS: set_flag(S, sA69)
        else:
            split = [R[0:3], R[3:5], R[5:7]]
            for j in range(3):
                if M: S.I(M[j])
                for r in split[j]: S.I(r, tag=f'R{kk}')
                if j == 1 and kk in extras: extras[kk]()
                if j != 1: S.run_bg(1)
        if kk == HP: h_poll_issue()
        if kk == HP + 3:
            S.run_bg()
            stamp(S, opt, 'hp0')
            poll(S, vFL, vFLa, 'pollH')
            stamp(S, opt, 'hp1')
            for k in range(5): S.push(h_ops(k))
        if st <= 5 and ks == 3:
            for c in range(4):
                for _ in range(m1pos[c].count(st)): cond_block(c, m1_block)
    stamp(S, opt, 4)
    for k in range(5, 12): S.push(h_ops(k))
    for k in range(12, 19): S.push(b_ops(k) + h_ops(k))
    S.bg_every = opt.get('bgA', 15)
    KB = 128; P = 136; E = 152; T = 184; PHI = 192
    cvt8(S, KB, AK)
    S.I(f'{MF} {v(P,16)}, {v(WA,4)}, {v(KB,4)}, 0')
    S.I(f'{MF} {v(P,16)}, {v(WB,4)}, {v(KB+4,4)}, {v(P,16)}')
    VBF = 32; VA = 40; VB = 48
    cvt8(S, VBF, AV)
    for i in range(8):
        S.I(f'v_cndmask_b32 {v(VA+i)}, 0, {v(VBF+i)}, s[{sMASK}:{sMASK+1}]')
        S.I(f'v_cndmask_b32 {v(VB+i)}, {v(VBF+i)}, 0, s[{sMASK}:{sMASK+1}]')
    softmax_pm(S, P, E, T, PHI)
    DA, DB = E, E + 16
    S.I(f'{MF} {v(DA,16)}, {v(PHI,4)}, {v(IP,4)}, 0')
    S.I(f'{MF} {v(DB,16)}, {v(PHI+8,4)}, {v(IP,4)}, 0')
    S.I(f'{MF} {v(DA,16)}, {v(PHI+4,4)}, {v(IM,4)}, {v(DA,16)}')
    S.I(f'{MF} {v(DB,16)}, {v(PHI+12,4)}, {v(IM,4)}, {v(DB,16)}')
    cvt8(S, QB, AQ)
    S.I(f's_cmp_eq_u32 s5, 0\ns_cselect_b64 s[{sEX}:{sEX+1}], -1, 0')
    PT = 64
    cvt8(S, PT, DA); cvt8(S, PT+8, DB)
    E1 = AK
    S.I(f'{MF} {v(E1,16)}, {v(PT,4)}, {v(VA,4)}, 0')
    S.I(f'{MF} {v(E1,16)}, {v(PT+4,4)}, {v(VA+4,4)}, {v(E1,16)}')
    S.I(f'{MF} {v(E1,16)}, {v(PT+8,4)}, {v(VB,4)}, {v(E1,16)}')
    S.I(f'{MF} {v(E1,16)}, {v(PT+12,4)}, {v(VB+4,4)}, {v(E1,16)}')
    zA, zB = T, T+1
    S.I(f'v_add_f32 {v(zA)}, {v(DA)}, {v(DA+1)}\nv_add_f32 {v(zB)}, {v(DB)}, {v(DB+1)}')
    for i in range(2, 16):
        S.I(f'v_add_f32 {v(zA)}, {v(zA)}, {v(DA+i)}\nv_add_f32 {v(zB)}, {v(zB)}, {v(DB+i)}')
    S.I(f'v_permlane32_swap_b32 {v(zA)}, {v(zB)}')
    S.I(f'v_add_f32 {v(zA)}, {v(zA)}, {v(zB)}')
    S.I(f'buffer_store_dword {v(zA)}, v232, s[{RWS}:{RWS+3}], s{sA68} offen sc1', tag='kvst')
    KP, SD = 128, 136
    for i in range(8):
        S.I(f'v_cndmask_b32 {v(SD+i)}, {v(E1+i)}, {v(E1+8+i)}, s[{sEX}:{sEX+1}]')
    KVX = slot_addr(11)
    S.I(f'ds_write_b128 v233, {v(SD,4)} offset:{KVX}', tag='kvx')
    S.I(f'ds_write_b128 v233, {v(SD+4,4)} offset:{KVX+1024}', tag='kvx')
    for i in range(8):
        S.I(f'v_cndmask_b32 {v(KP+i)}, {v(E1+8+i)}, {v(E1+i)}, s[{sEX}:{sEX+1}]')
    RW2, RWO = RX, RW
    srd(S, RW2, PW2, 1792*4096)
    srd(S, RWO, PWO, 512*1024)
    S.I(f's_lshl_b32 s3, s5, 11\ns_add_u32 s{sA68}, s{sA68}, s3')
    S.wait(lg='kvx')
    S.I('s_barrier')
    S.I(f'ds_read_b128 {v(SD,4)}, v234 offset:{KVX}', tag='kvr')
    S.I(f'ds_read_b128 {v(SD+4,4)}, v234 offset:{KVX+1024}', tag='kvr')
    S.I(f's_lshr_b32 s5, s{sIDX}, 2\ns_mul_i32 s3, s5, 7\ns_lshr_b32 s3, s3, 1\ns_mul_i32 s7, s{sCLS}, 7\ns_add_u32 s3, s3, s7\ns_and_b32 s7, s{sXCD}, {opt.get("xoff",0)}\ns_mul_i32 s7, s7, 3\ns_add_u32 s3, s3, s7')
    S.I(f's_sub_u32 s7, s3, 28\ns_cmp_ge_u32 s3, 28\ns_cselect_b32 s{sK0}, s7, s3')
    S.I(f's_lshl_b32 s3, s{sCLS}, 1\ns_add_u32 s3, s3, s5\ns_and_b32 s{sK1}, s3, 7')
    if not ROT: S.I(f's_mov_b32 s{sK0}, 0\ns_mov_b32 s{sK1}, 0')
    S.I(f's_mov_b32 s{sMX}, s{sK0}\ns_mov_b32 s{sMW}, s{sK1}')
    S.I(f's_mul_i32 s{sB0}, s{sWAVE}, {28*16*4096}\ns_lshl_b32 s3, s{sST}, 7\ns_add_u32 s{sB0}, s{sB0}, s3')
    S.I(f's_lshl_b32 s{sB1}, s{sWAVE}, 17\ns_lshl_b32 s3, s{sDT}, 7\ns_add_u32 s{sB1}, s{sB1}, s3')
    tr_addrs(vTy, 9, 'lo')
    S.wait(lg='kvr')
    for i in range(8): S.I(f'v_add_f32 {v(KP+i)}, {v(KP+i)}, {v(SD+i)}')
    S.I(f'buffer_store_dwordx4 {v(KP,4)}, v5, s[{RWS}:{RWS+3}], s{sA68} offen sc1', tag='kvst')
    S.I(f'buffer_store_dwordx4 {v(KP+4,4)}, v5, s[{RWS}:{RWS+3}], s{sA68} offen offset:1024 sc1', tag='kvst')
    S.bg_every = 0
    if len(S.bg) & 1: S.run_bg(1)
    stamp(S, opt, 5)

    def y_ops(slot, tag):
        return pair_ops(tag, f's_lshl_b32 s4, s{sK0}, 16\ns_add_u32 m0, s{sMB}, {slot_addr(slot)}\ns_add_u32 s4, s4, s{sB0}\ns_add_u32 s{sK0}, s{sK0}, 1',
            f'buffer_load_dwordx4 {v(vYa)}, s[{RW2}:{RW2+3}], s4 offen lds',
            f'buffer_load_dwordx4 {v(vYb)}, s[{RW2}:{RW2+3}], s4 offen offset:1024 lds',
            f's_cmp_eq_u32 s{sK0}, 28\ns_cselect_b32 s{sK0}, 0, s{sK0}')
    def wo_ops(slot, tag):
        return pair_ops(tag, f's_lshl_b32 s4, s{sK1}, 14\ns_add_u32 m0, s{sMB}, {slot_addr(slot)}\ns_add_u32 s4, s4, s{sB1}\ns_add_u32 s{sK1}, s{sK1}, 1',
            f'buffer_load_dwordx4 {v(vOa)}, s[{RWO}:{RWO+3}], s4 offen lds',
            f'buffer_load_dwordx4 {v(vOb)}, s[{RWO}:{RWO+3}], s4 offen offset:1024 lds',
            f's_and_b32 s{sK1}, s{sK1}, 7')
    def tr_list(dst, base, slot, tstep):
        ad = slot_addr(slot); wdw = ad >> 16; so = ad & 0xffff
        return [f'ds_read_b64_tr_b16 {dst(4*fr+2*t)}, {v(base+2*wdw+fr)} offset:{so+t*tstep}' for fr in range(2) for t in range(2)]
    def tr_slot(dst, base, slot, tstep, tag):
        for r in tr_list(dst, base, slot, tstep): S.I(r, tag=tag)

    order = [('Y', k) for k in range(7)] + [('W', 0)] + [('Y', k) for k in range(7, 28)] + [('W', k) for k in range(1, 8)]
    class Plan: pass
    PL = Plan(); PL.nd = 0; PL.nt = 0; PL.slot = {}; PL.free = []; PL.pending = []; PL.log = []
    def next_D():
        if PL.nd >= len(order): return None
        pre = []
        if not PL.free:
            if not PL.pending: return None
            s_, tg = PL.pending.pop(0)
            pre = [tg]; PL.free.append(s_)
        kind, k = order[PL.nd]; PL.nd += 1
        s_ = PL.free.pop(0); PL.slot[(kind, k)] = s_
        PL.log.append(('D', kind, k))
        ops = y_ops(s_, f'Y{k}') if kind == 'Y' else wo_ops(s_, f'W{k}')
        if pre:
            t0, f0 = ops[0]
            ops[0] = (t0, lambda f0=f0, tg=pre[0]: (S.wait(lg=tg), f0()))
        return ops
    def push_D():
        ops = next_D()
        if ops: S.push(ops)
        return bool(ops)
    def T_op():
        k = PL.nt
        if k >= 28 or ('Y', k) not in PL.slot: return None
        PL.nt += 1
        PL.log.append(('T', 'Y', k))
        s_ = PL.slot[('Y', k)]
        PL.pending.append((s_, f'T{k}'))
        def f():
            S.wait(vm=f'Y{k}')
            tr_slot(lambda o: a_(8*k+o, 2), vTy, s_, 1024, f'T{k}')
        return (f'TT{k}', f)
    def push_T():
        o = T_op()
        if o: S.push([o])
        return bool(o)

    S.I(f's_lshl_b32 s3, s{sFT}, 7\ns_lshr_b32 s7, s{sWAVE}, 1\ns_lshl_b32 s7, s7, 6\ns_add_u32 s3, s3, s7')
    S.I(f's_cmp_ge_u32 s{sIDX}, 28\ns_cbranch_scc1 L_reducer')
    vm_at_branch = list(S.vm)
    S.I('v_lshlrev_b32 v6, 3, v9\nv_add_u32 v6, s3, v6')
    B1R = 56
    for q in range(4):
        S.I(f'global_load_dwordx2 {v(B1R+2*q,2)}, v6, s[{PB1}:{PB1+1}] offset:{16*q}', tag='b1')

    def o_poll_issue():
        S.I(f's_lshl_b32 s3, s{sSBLK}, 10\ns_add_u32 s3, s3, {FH}')
        S.I('v_bfe_u32 v6, v1, 3, 2\nv_lshlrev_b32 v6, 15, v6\nv_and_b32 v7, 7, v1\nv_lshl_add_u32 v6, v7, 7, v6\nv_add_u32 v6, s3, v6')
        S.I(f's_and_b32 s3, s{sWAVE}, 1\ns_lshl_b32 s3, s3, 9\ns_lshl_b32 s7, s{sQUAD}, 10\ns_add_u32 s3, s3, s7\ns_add_u32 s3, s3, {FR}')
        S.I('v_and_b32 v7, 3, v1\nv_lshl_add_u32 v7, v7, 7, s3')
        S.I(f'v_cmp_gt_u32 vcc, 32, v1\nv_cndmask_b32 {v(vFLa)}, v7, v6, vcc')
        S.I(f'buffer_load_dwordx2 {v(vFL,2)}, {v(vFLa)}, s[{RWS}:{RWS+3}], 0 offen sc1', tag='pollO')

    INB = (4, 5, 6, 7, 8, 9)
    popsB = opt.get('popsB', 3)
    PL.free.append(11)
    for i in range(34):
        R = []; M = []
        j = i - 2
        if j >= 0:
            S.wait(vm=f'H{j}', lg=f'R{j}')
            b = AF + 8 * (j % 3)
            for i1 in range(2):
                for i0 in range(2):
                    c = v(ACC+16*(2*i1+i0), 16)
                    M.append(f'{MF} {c}, {v(b+4*i1,4)}, {a_(8*j+4*i0,4)}, {c if j else 0}')
            if j + 19 < 32: S.push(b_ops(j + 19) + h_ops(j + 19))
            else:
                if bslot[j] not in INB: PL.free.append(bslot[j])
            if j >= 13 and len(S.bg) < 2 and PL.nd < opt.get('ndB', 8): push_D()
        if i < 32:
            b2_ = AF + 8 * (i % 3)
            R = tr_list(lambda o: v(b2_+o, 2), vBr, bslot[i], 512)
        npop = popsB if any(isinstance(o, tuple) and o[0][0] in 'BH' for o in S.bg) else 2
        pos = {2: (0, 2), 3: (0, 1, 3), 4: (0, 1, 2, 3)}[npop]
        for n in range(4):
            if M: S.I(M[n])
            if n == 0 and R: S.wait(vm=f'B{max(i,8)}')
            if R: S.I(R[n], tag=f'R{i}')
            if n in pos: S.run_bg(1)
        stamp(S, opt, f'B{j}')
        if j == opt.get('kvflag', 4):
            S.wait(vm='kvst'); set_flag(S, sA69)
            stamp(S, opt, 'Bkv')
        if j == 20:
            S.wait(vm='b1')
            for q in range(4):
                for h2 in range(2):
                    S.I(f'v_lshlrev_b32 {v(128+4*q+2*h2)}, 16, {v(B1R+2*q+h2)}\nv_and_b32 {v(128+4*q+2*h2+1)}, 0xffff0000, {v(B1R+2*q+h2)}')
        if j == 24:
            S.I(f's_lshl_b32 s3, s{sFT}, 16\ns_lshr_b32 s7, s{sWAVE}, 1\ns_lshl_b32 s7, s7, 15\ns_add_u32 s3, s3, s7\ns_lshl_b32 s7, s{sDT}, 11\ns_add_u32 s3, s3, s7')
            S.I(f's_and_b32 s7, s{sWAVE}, 1\ns_lshl_b32 s7, s7, 10\ns_add_u32 s3, s3, s7\ns_add_u32 s{sA68}, s3, {UF}\ns_add_u32 s6, s{sA68}, 16384')
            S.I(f's_mul_i32 s3, s{sDT}, 28\ns_add_u32 s3, s3, s{sFT}\ns_lshl_b32 s3, s3, 2\ns_add_u32 s3, s3, s{sWAVE}\ns_lshl_b32 s3, s3, 7\ns_add_u32 s{sA69}, s3, {FU}')
    S.run_bg()
    stamp(S, opt, 6)
    S.I('s_barrier')
    stamp(S, opt, 'x1')
    exchange(S, ACC)
    stamp(S, opt, 'x2')
    for _ in range(opt.get('ndE', 4)): push_D()
    S.bg_every = opt.get('bgB', 20)
    Bf = 128
    for r in range(16): S.I(f'v_add_f32 {v(ACC+r)}, {v(ACC+r)}, {v(Bf+r)}')
    exchange_sum(S, ACC)
    k0 = 2 * math.sqrt(2 / math.pi) * math.log2(math.e); k1 = k0 * 0.044715
    S.I(f's_mov_b32 s7, {f2u(-k1):#x}\nv_mov_b32 v2, {f2u(-k0):#x}')
    Tm = 144
    for r in range(16): S.I(f'v_mul_f32 {v(Tm+r)}, {v(ACC+r)}, {v(ACC+r)}')
    for r in range(16): S.I(f'v_fma_f32 {v(Tm+r)}, {v(Tm+r)}, s7, v2')
    for r in range(16): S.I(f'v_mul_f32 {v(Tm+r)}, {v(Tm+r)}, {v(ACC+r)}')
    for r in range(16): S.I(f'v_exp_f32 {v(Tm+r)}, {v(Tm+r)}')
    for r in range(16): S.I(f'v_add_f32 {v(Tm+r)}, 1.0, {v(Tm+r)}')
    for r in range(16): S.I(f'v_rcp_f32 {v(Tm+r)}, {v(Tm+r)}')
    for r in range(16): S.I(f'v_mul_f32 {v(ACC+r)}, {v(ACC+r)}, {v(Tm+r)}')
    cvt8(S, Bf, ACC)
    S.I(f'buffer_store_dwordx4 {v(Bf,4)}, v5, s[{RWS}:{RWS+3}], s{sA68} offen sc1', tag='ust')
    S.I(f'buffer_store_dwordx4 {v(Bf+4,4)}, v5, s[{RWS}:{RWS+3}], s6 offen sc1', tag='ust')
    stamp(S, opt, 'ust')
    S.bg_every = 0
    S.run_bg()
    lab = S.newlabel('L_noE')
    S.I(f's_lshl_b32 s3, s2, 2\ns_add_u32 s3, s3, s{sWAVE}\ns_cmp_lg_u32 s3, 0\ns_cbranch_scc1 {lab}')
    S.I('s_mov_b32 s3, 0')
    sv = list(S.vm); set_flag(S, 3); S.vm = sv
    S.label(lab)
    S.I('s_branch L_join')
    main_vm = list(S.vm); main_lg = list(S.lg)

    S.label('L_reducer')
    S.hist = []; S.vm = vm_at_branch; S.lg = []
    assert not S.bg
    sHD = sK2
    S.I(f's_lshl_b32 s{sHD}, s{sXCD}, 2\ns_add_u32 s{sHD}, s{sHD}, s{sIDX}\ns_sub_u32 s{sHD}, s{sHD}, 28')
    S.I(f's_lshr_b32 s3, s{sHD}, 1\ns_lshl_b32 s4, s3, 13\ns_lshl_b32 s5, s{sWAVE}, 11\ns_add_u32 s4, s4, s5\ns_add_u32 s4, s4, {FKV}')
    S.I(f'v_and_b32 v6, 15, v1\nv_lshl_add_u32 {v(vFLa)}, v6, 7, s4')
    S.I(f's_and_b32 s5, s{sHD}, 1')
    S.I('v_and_b32 v6, 15, v1\nv_lshl_add_u32 v6, v9, 5, v6\nv_lshlrev_b32 v6, 4, v6\ns_lshl_b32 s4, s5, 8\nv_add_u32 v6, s4, v6')
    S.I('v_bfe_u32 v7, v1, 3, 1\nv_lshlrev_b32 v7, 8, v7\nv_lshl_add_u32 v7, v9, 4, v7\ns_lshl_b32 s4, s5, 7\ns_add_u32 s4, s4, 4096\nv_add_u32 v7, s4, v7')
    for q in range(4):
        S.I(f'v_add_u32 v2, {q*1024}, v6\nv_add_u32 v3, {q*32}, v7\nv_cndmask_b32 {v(56+q)}, v3, v2, s[{sMASK}:{sMASK+1}]')
    S.I(f's_lshl_b32 s3, s3, 5\ns_lshl_b32 s4, s{sWAVE}, 3\ns_add_u32 s3, s3, s4\ns_mul_i32 s3, s3, {KVB}\ns_add_u32 s{sA68}, s3, {KVP}')
    S.wait(vm='all')
    set_flag(S, sA69)
    assert all(e[0] == 'D' for e in PL.log)
    sK0_, sK1_ = None, None
    for e in PL.log:
        s_ = PL.slot[(e[1], e[2])]
        assert s_ not in INB
        run(y_ops(s_, 'rp') if e[1] == 'Y' else wo_ops(s_, 'rp'))
    S.I(f'buffer_load_dwordx2 {v(vFL,2)}, {v(vFLa)}, s[{RWS}:{RWS+3}], 0 offen sc1', tag='pollKV')
    poll(S, vFL, vFLa, 'pollKV')
    stamp(S, opt, 6)
    RB = 64
    for sb in range(8):
        for q in range(4):
            S.I(f'buffer_load_dwordx4 {v(RB+16*sb+4*q,4)}, {v(56+q)}, s[{RWS}:{RWS+3}], s{sA68} offen sc1', tag=f'P{sb}')
        S.I(f's_add_u32 s{sA68}, s{sA68}, {KVB}')
    for sb in range(1, 8):
        S.wait(vm=f'P{sb}')
        for r in range(16): S.I(f'v_add_f32 {v(RB+r)}, {v(RB+r)}, {v(RB+16*sb+r)}')
    S.I(f'v_add_u32 v6, s{sMB}, v5')
    for q in range(4): S.I(f'ds_write_b128 v6, {v(RB+4*q,4)} offset:{q*1024}', tag='rw')
    S.wait(lg='rw')
    S.I('s_barrier')
    S.I(f's_lshl_b32 s3, s{sWAVE}, 11\ns_and_b32 s3, s3, 2048\nv_add_u32 v6, s3, v5')
    for src in range(4):
        for q2 in range(2):
            S.I(f'ds_read_b128 {v(RB+8*src+4*q2,4)}, v6 offset:{src*8192+q2*1024}', tag='rr')
    S.wait(lg='rr')
    S.I('s_barrier')
    for src in range(1, 4):
        for r in range(8): S.I(f'v_add_f32 {v(RB+r)}, {v(RB+r)}, {v(RB+8*src+r)}')
    for r in range(8):
        S.I(f'v_add_f32_dpp {v(RB+r)}, {v(RB+r)}, {v(RB+r)} row_ror:8 row_mask:0xa bank_mask:0xf')
    cvt8(S, RB+8, RB, 4)
    S.I(f's_lshl_b32 s3, s{sHD}, 1\ns_and_b32 s7, s{sWAVE}, 1\ns_add_u32 s3, s3, s7\ns_lshr_b32 s7, s{sWAVE}, 1')
    S.I(f's_lshl_b32 s4, s3, 10\ns_lshl_b32 s5, s7, 16\ns_add_u32 s4, s4, s5\ns_add_u32 s4, s4, {KVF}')
    S.I(f's_lshl_b32 s3, s3, 7\ns_lshl_b32 s5, s7, 13\ns_add_u32 s3, s3, s5\ns_add_u32 s{sA69}, s3, {FR}')
    S.I(f'buffer_store_dwordx4 {v(RB+8,4)}, v5, s[{RWS}:{RWS+3}], s4 offen sc1', tag='kvf')
    S.raw('    s_waitcnt vmcnt(0) lgkmcnt(0)')

    S.label('L_join')
    S.hist = []; S.vm = main_vm; S.lg = main_lg
    PL.free += list(INB)
    def refill():
        while len(S.bg) < 12:
            a = push_D(); b = False
            if PL.nd - PL.nt > opt.get('tlag', 7) or PL.nd >= NPRE: b = push_T()
            if PL.nd >= NPRE and not b: break
            if not a and not b: break
    NPRE = opt.get('npre', len(order))
    P = 64; E = 80; T = 112; PHIQ = 128
    S.I(f'{MF} {v(P,16)}, {v(WA,4)}, {v(QB,4)}, 0')
    S.I(f'{MF} {v(P,16)}, {v(WB,4)}, {v(QB+4,4)}, {v(P,16)}')
    for _ in range(4): push_D()
    S.run_bg(4)
    tr_addrs(vTa, 9, 'hi')
    S.run_bg(4)
    stamp(S, opt, 'ua')
    S.wait(vm='ust')
    set_flag(S, sA69)
    stamp(S, opt, 7)
    o_poll_issue()
    for _ in range(10):
        push_T(); push_D()
    S.bg_every = opt.get('bgQ', 8)
    softmax_pm(S, P, E, T, PHIQ)
    S.bg_every = 0
    while S.bg and len([o for o in S.bg if not o[0].startswith('TT')]) & 1: S.run_bg(1)
    stamp(S, opt, 'qs')
    poll(S, vFL, vFLa, 'pollO')
    stamp(S, opt, 'po')
    S.I(f's_and_b32 s3, s{sWAVE}, 1\ns_lshl_b32 s3, s3, 1\ns_lshl_b32 s7, s{sQUAD}, 2\ns_add_u32 s5, s3, s7\ns_lshl_b32 s3, s5, 11\ns_add_u32 s3, s3, {KVF}')
    for i in range(4):
        S.I(f'buffer_load_dwordx4 {v(32+4*i,4)}, v5, s[{RWS}:{RWS+3}], s3 offen offset:{i*1024} sc1', tag='kvf')
    S.I(f's_lshl_b32 s3, s{sSBLK}, 1\ns_lshr_b32 s7, s{sWAVE}, 1\ns_add_u32 s6, s3, s7\ns_lshl_b32 s3, s6, 11\ns_add_u32 s3, s3, {G_}')
    S.I('v_bfe_u32 v6, v1, 1, 4\nv_lshlrev_b32 v6, 7, v6\nv_and_b32 v7, 1, v1\nv_lshl_add_u32 v6, v7, 2, v6\nv_mov_b32 v14, v6')
    S.I(f'buffer_load_dword v10, v6, s[{RWS}:{RWS+3}], s3 offen sc1', tag='kvf')
    S.I(f's_lshl_b32 s3, s5, 16\ns_lshl_b32 s7, s6, 10\ns_add_u32 s3, s3, s7\ns_add_u32 s{sA68}, s3, {OF}\ns_add_u32 s6, s{sA68}, 65536')
    S.I(f's_lshl_b32 s3, s{sSBLK}, 3\ns_add_u32 s3, s3, s{sQUAD}\ns_lshl_b32 s3, s3, 2\ns_add_u32 s3, s3, s{sWAVE}\ns_lshl_b32 s3, s3, 7\ns_add_u32 s{sA69}, s3, {FO}')
    S.I(f's_mul_i32 s3, s{sDT}, {28*512}\ns_mul_i32 s7, s{sWAVE}, {7*512}\ns_add_u32 s3, s3, s7\ns_add_u32 s3, s3, {FU}')
    S.I('v_min_u32 v6, 27, v1\nv_lshl_add_u32 v6, v6, 7, s3')
    S.I(f's_lshl_b32 s3, s{sST}, 10\ns_add_u32 s3, s3, {FH}')
    S.I('v_bfe_u32 v7, v1, 3, 2\nv_lshlrev_b32 v7, 15, v7\nv_and_b32 v2, 7, v1\nv_lshl_add_u32 v7, v2, 7, v7\nv_add_u32 v7, s3, v7')
    S.I(f'v_cmp_gt_u32 vcc, 32, v1\nv_cndmask_b32 {v(vFLa)}, v7, v6, vcc')
    sKU, sKO, sBU, sBO = sMX, sMW, sB2, sB3
    S.I(f's_mul_i32 s{sBU}, s{sWAVE}, {28*16384}\ns_lshl_b32 s3, s{sDT}, 11\ns_add_u32 s{sBU}, s{sBU}, s3\ns_add_u32 s{sBU}, s{sBU}, {UF}')
    S.I(f's_lshl_b32 s{sBO}, s{sWAVE}, 19\ns_lshl_b32 s3, s{sST}, 11\ns_add_u32 s{sBO}, s{sBO}, s3\ns_add_u32 s{sBO}, s{sBO}, {OF}')
    ROUT = RW1
    srd(S, ROUT, POUT, 2048*1024)
    S.run_bg()
    for _ in range(3):
        push_T(); push_D()
    S.run_bg()
    S.wait(vm='kvf')
    stamp(S, opt, 'kvf')
    for hb in range(2):
        O = 64 + 16*hb
        S.I(f'{MF} {v(O,16)}, {v(32+8*hb,4)}, {v(PHIQ+8*hb,4)}, 0')
        S.I(f'{MF} {v(O,16)}, {v(36+8*hb,4)}, {v(PHIQ+8*hb+4,4)}, {v(O,16)}')
    push_T(); push_D(); S.run_bg()
    for hb in range(2):
        O = 64 + 16*hb
        S.I(f'v_add_f32 {v(O+8)}, {f2u(1e-6):#x}, {v(O+8)}\nv_rcp_f32 {v(O+8)}, {v(O+8)}\nv_mul_f32 {v(O+8)}, v10, {v(O+8)}')
        for r in range(8): S.I(f'v_mul_f32 {v(O+r)}, {v(O+8)}, {v(O+r)}')
        cvt8(S, O+12, O, 4)
        S.I(f'buffer_store_dwordx4 {v(O+12,4)}, v5, s[{RWS}:{RWS+3}], s{sA68 if hb == 0 else 6} offen sc1', tag='ost')
    stamp(S, opt, 'ost')
    while PL.nd < NPRE:
        push_T(); push_D(); S.run_bg()
    S.I(f'buffer_load_dwordx2 {v(vFL,2)}, {v(vFLa)}, s[{RWS}:{RWS+3}], 0 offen sc1', tag='pollU')
    stamp(S, opt, 'dd')
    while push_T(): S.run_bg()
    stamp(S, opt, 'td')
    S.wait(vm='ost')
    set_flag(S, sA69)
    stamp(S, opt, 'oa')
    poll(S, vFL, vFLa, 'pollU')
    stamp(S, opt, 8)

    DR = 128; ND = 12
    def direct_ops(i):
        r = DR + 8 * (i % ND)
        if i < 28:
            return pair_ops(f'U{i}', f's_lshl_b32 s4, s{sKU}, 14\ns_add_u32 s4, s4, s{sBU}\ns_add_u32 s{sKU}, s{sKU}, 1',
                f'buffer_load_dwordx4 {v(r,4)}, {v(vD0)}, s[{RWS}:{RWS+3}], s4 offen sc1',
                f'buffer_load_dwordx4 {v(r+4,4)}, {v(vD1)}, s[{RWS}:{RWS+3}], s4 offen sc1',
                f's_cmp_eq_u32 s{sKU}, 28\ns_cselect_b32 s{sKU}, 0, s{sKU}')
        return pair_ops(f'U{i}', f's_lshl_b32 s4, s{sKO}, 16\ns_add_u32 s4, s4, s{sBO}\ns_add_u32 s{sKO}, s{sKO}, 1',
                f'buffer_load_dwordx4 {v(r,4)}, {v(vH0)}, s[{RWS}:{RWS+3}], s4 offen sc1',
                f'buffer_load_dwordx4 {v(r+4,4)}, {v(vH1)}, s[{RWS}:{RWS+3}], s4 offen sc1',
                f's_and_b32 s{sKO}, s{sKO}, 7')
    PD = opt.get('pdC', 5)
    for i in range(PD): run(direct_ops(i))
    S.I(f's_lshl_b32 s3, s{sST}, 12\ns_add_u32 s3, s3, {G_}')
    S.I(f's_and_b32 s7, s{sWAVE}, 1\ns_lshl_b32 s5, s7, 11\nv_add_u32 v6, s5, v14\nv_xor_b32 v7, 0x800, v6')
    S.I(f'buffer_load_dword v10, v6, s[{RWS}:{RWS+3}], s3 offen sc1', tag='g')
    S.I(f'buffer_load_dword v11, v7, s[{RWS}:{RWS+3}], s3 offen sc1', tag='g')
    S.I(f's_lshl_b32 s3, s{sST}, 7\ns_lshl_b32 s7, s7, 6\ns_add_u32 s3, s3, s7\nv_and_b32 v6, 31, v1\nv_lshl_add_u32 v6, v6, 1, s3')
    S.I(f'global_load_ushort v12, v6, s[{PB2}:{PB2+1}]', tag='g')
    S.I(f's_lshl_b32 s3, s{sST}, 12\ns_lshl_b32 s7, s{sWAVE}, 10\ns_add_u32 s3, s3, s7\ns_add_u32 s3, s3, {FO}')
    S.I(f'v_and_b32 v6, 7, v1\nv_lshl_add_u32 {v(vFLa)}, v6, 7, s3')
    S.wait(lg='all')
    assert PL.nt == 28
    for i in range(36):
        r = DR + 8 * (i % ND)
        if i == 28 - PD - 4:
            S.I(f'buffer_load_dwordx2 {v(vFL,2)}, {v(vFLa)}, s[{RWS}:{RWS+3}], 0 offen sc1', tag='pollO2')
        S.wait(vm=f'U{i}', lg=(f'R{i}' if i >= 28 else None))
        if i + PD == 28:
            S.run_bg()
            poll(S, vFL, vFLa, 'pollO2')
        if i + PD < 36: S.push(direct_ops(i + PD))
        if PL.nd < len(order) and i >= 4: push_D()
        R = []
        if i >= 26 and i + 2 < 36:
            j = i + 2 - 28
            S.wait(vm=f'W{j}')
            b = AF + 8 * (j % 3)
            R = tr_list(lambda o: v(b+o, 2), vTa, PL.slot[('W', j)], 1024)
        n = 0
        npop = 4 if len(S.bg) > 2 else 2
        for i1 in range(2):
            for i0 in range(2):
                c = v(ACC+16*(2*i1+i0), 16)
                if i < 28:
                    S.I(f'{MF} {c}, {v(r+4*i1,4)}, {a_(8*i+4*i0,4)}, {c if i else 0}')
                else:
                    b = AF + 8 * ((i - 28) % 3)
                    S.I(f'{MF} {c}, {v(b+4*i1,4)}, {v(r+4*i0,4)}, {c}')
                if R: S.I(R[n], tag=f'R{i+2}')
                if npop == 4 or i0 == 0: S.run_bg(1)
                n += 1
        stamp(S, opt, f'C{i}')
        if i == 20:
            S.wait(vm='g')
            S.I('v_sub_f32 v10, 1.0, v10\nv_sub_f32 v11, 1.0, v11\nv_lshlrev_b32 v12, 16, v12\nv_mul_f32 v12, v10, v12')
            S.I(f's_lshl_b32 s3, s{sST}, 16\ns_and_b32 s7, s{sWAVE}, 1\ns_lshl_b32 s7, s7, 15\ns_add_u32 s3, s3, s7\ns_lshl_b32 s7, s{sDT}, 7\ns_add_u32 s3, s3, s7\ns_lshr_b32 s7, s{sWAVE}, 1\ns_lshl_b32 s7, s7, 6\ns_add_u32 s{sA68}, s3, s7')
            S.I('v_and_b32 v6, 31, v1\nv_lshlrev_b32 v6, 10, v6\nv_lshl_add_u32 v13, v9, 4, v6')
        if i == 27:
            for t in range(4):
                for rr in range(16):
                    if t == 0: S.I(f'v_fma_f32 {v(ACC+rr)}, v10, {v(ACC+rr)}, v12')
                    else: S.I(f'v_mul_f32 {v(ACC+16*t+rr)}, {v(10+(t&1))}, {v(ACC+16*t+rr)}')
    stamp(S, opt, 9)
    S.I('s_barrier')
    exchange(S, ACC)
    exchange_sum(S, ACC)
    cvt8(S, 32, ACC)
    for qp in range(2):
        b = 32 + 4*qp
        S.I(f'v_permlane32_swap_b32 {v(b)}, {v(b+2)}')
        S.I(f'v_permlane32_swap_b32 {v(b+1)}, {v(b+3)}')
        S.I(f'buffer_store_dwordx4 {v(b,4)}, v13, s[{ROUT}:{ROUT+3}], s{sA68} offen offset:{32*qp}', tag='out')
    stamp_out(S, opt)
    S.label('L_end')
    S.I('s_endpgm')

def build(opt):
    hdr = open(f'cdna_kernels/{NAME}.s.ref').read().split('\n')
    top = [l for l in hdr if l.startswith(';') and '@launch' not in l and 'Override launch' not in l and 'grid=ceil' not in l]
    out = '\n'.join(top) + '\n'
    out += f'; @launch grid=(256,1,1) block=(256,1,1) lds={LDS_TOTAL}\n'
    out += '.amdgcn_target "amdgcn-amd-amdhsa--gfx950"\n.text\n'
    name = NAME + '_kernel'
    S = Stream()
    gen(S, opt)
    out += f'.globl {name}\n.p2align 8\n.type {name},@function\n{name}:\n' + S.text()
    print('lines', len(S.out), 'nops', S.nnop, file=sys.stderr)
    out += '.p2align 8\n.fill 2048, 4, 0xbf800000\n'
    out += f'''.section .rodata,"a"
.p2align 6
.amdhsa_kernel {name}
  .amdhsa_next_free_vgpr 512
  .amdhsa_next_free_sgpr 102
  .amdhsa_accum_offset 256
  .amdhsa_group_segment_fixed_size 0
  .amdhsa_kernarg_size 104
  .amdhsa_user_sgpr_count 2
  .amdhsa_user_sgpr_kernarg_segment_ptr 1
  .amdhsa_system_sgpr_workgroup_id_x 1
.end_amdhsa_kernel
'''
    return out

if __name__ == '__main__':
    opt = {}
    for a in sys.argv[2:]:
        k, x = a.split('=')
        opt[k] = int(x)
    open(sys.argv[1], 'w').write(build(opt))
```

```python
import sys, math, struct
from asmlib import Stream

NAME = 'gated_mix__linear_kernel_hedgehog__mixer_token_mlp__prompt'
MB = 1 << 20
WS_E = 0
KVF = 0x10000
FR = 0x30000
FH = 0x40000
FKV = 0x60000
FU = 0x80000
FO = 0xA0000
G_ = 0xC0000
HF = 1 * MB
KVP = 3 * MB + 4096
OF = 6 * MB + 4096
UF = 8 * MB + 8192
STAMP_BASE = 12 * MB
WS_SIZE = 16 * MB
KVB = 4608
LOG2E = 0x3fb8aa3b
SPIN_MAX = 50000
LDS_TOTAL = 163840

def f2u(x): return struct.unpack('<I', struct.pack('<f', x))[0]
def v(a, n=1): return f'v{a}' if n == 1 else f'v[{a}:{a+n-1}]'
def a_(a, n=1): return f'a{a}' if n == 1 else f'a[{a}:{a+n-1}]'
MF = 'v_mfma_f32_32x32x16_bf16'

PX, PWQKV, PWPHI, PWO, PW1, PB1, PW2, PB2, PGW, POUT, PWS = 36, 38, 40, 42, 46, 48, 50, 52, 54, 56, 60
RX, RW, RWS, RW1 = 8, 12, 16, 20
RH = 64
sWAVE, sSBLK, sQUAD, sDT, sFT, sIDX, sXCD, sST = 24, 25, 26, 27, 28, 29, 30, 31
sB0, sB1, sIX, sTO2 = 32, 33, 34, 35
TAG = 62
sTB, sTC, sTA, sTO = 68, 70, 72, 73
sT2 = 44
sB2, sB3 = 58, 59
sC, sMB, sA68, sA69, sMX, sMW = 74, 75, 76, 77, 78, 79
sMASK, sEX = 36, 38
AREA = [2, 0, 1, 3, 4]
def slot_addr(t): return AREA[t >> 2] * 32768 + (t & 3) * 2048
def dslot(d): return slot_addr(2 * d)

def seq_of(chunks, r, c, c0=None):
    seq = [chunks[0][r % len(chunks[0])]]
    for g, ch in enumerate(chunks):
        n = len(ch)
        H = [ch[(r + 1 + k) % n] for k in range(n - 1)]
        if g + 1 < len(chunks):
            nx = chunks[g + 1]
            H.insert(min(c if (g or c0 is None) else c0, len(H)), nx[r % len(nx)])
        seq += H
    return seq
def pack(seq): return sum(b << (4 * i) for i, b in enumerate(seq))
def tables(opt):
    out = []
    for wg in range(256):
        xcd, idx = wg & 7, wg >> 3
        par = xcd & 1 if opt.get('xoff', 1) else 0
        c = idx & 3 if opt.get('desync', 1) else 3
        sl, ql = idx & 7, idx >> 3
        chA = [[0, 1, 2, 3], [4, 5, 6, 7]]
        if opt.get('xoff', 1) and ((xcd ^ (xcd >> 1)) & 1): chA = chA[::-1]
        if opt.get('rotA', 4) == 8: A = [(2 * ql + sl + k) & 7 for k in range(8)]
        else: A = seq_of(chA, (sl + ql) & 3, max(c, opt.get('cAmin', 1)))
        i, j = idx & 3, idx >> 2
        r = (i + j) & 3
        chB = [list(range(4 * g, 4 * g + 4)) for g in range(4)]
        if par: chB = [chB[1], chB[0], chB[3], chB[2]]
        B = seq_of(chB, r, c)
        chC = [[0, 1, 2, 3], [4, 5, 6, 7], [8, 9, 10, 11], [12, 13]]
        if par: chC = [[4, 5, 6, 7], [0, 1, 2, 3], [10, 11, 12, 13], [8, 9]]
        C = seq_of(chC, r, c, 3 if opt.get('c0C', 0) else None)
        cm = opt.get('cmode', 0)
        if cm:
            own = [ch[r % len(ch)] for ch in chC]
            rest = [[ch[(r + 1 + k) % len(ch)] for k in range(len(ch) - 1)] for ch in chC]
            if cm == 1: C = own + rest[0] + rest[1] + rest[2] + rest[3]
            if cm == 2:
                H = rest[0] + rest[1]
                k = min(2 * c, 6)
                C = own[:2] + H[:k] + own[2:] + H[k:] + rest[2] + rest[3]
        O = [(r + k) & 3 for k in range(4)]
        assert sorted(A) == list(range(8)) and sorted(B) == list(range(16)) and sorted(C) == list(range(14))
        tb, tc = pack(B), pack(C)
        out += [tb & 0xffffffff, tb >> 32, tc & 0xffffffff, tc >> 32, pack(A), pack(O), 0, 0]
    return out

def srd(S, d, lo, nbytes):
    S.I(f's_mov_b32 s{d}, s{lo}\ns_mov_b32 s{d+1}, s{lo+1}\ns_mov_b32 s{d+2}, {nbytes}\ns_mov_b32 s{d+3}, 0x00020000')

def poll(S, vdata, vaddr, first_tag=None):
    ok = S.newlabel('L_ok'); lp = S.newlabel('L_spin')
    S.wait(vm=first_tag)
    S.I(f'v_cmp_ne_u64 vcc, s[{TAG}:{TAG+1}], {v(vdata,2)}')
    S.I('s_nop 4')
    S.I(f's_cbranch_vccz {ok}')
    S.I(f's_mov_b32 s3, {SPIN_MAX}')
    S.label(lp)
    S.I('s_sleep 2')
    S.raw(f'    buffer_load_dwordx2 {v(vdata,2)}, {v(vaddr)}, s[{RWS}:{RWS+3}], 0 offen sc1')
    S.raw('    s_waitcnt vmcnt(0)')
    S.I(f'v_cmp_ne_u64 vcc, s[{TAG}:{TAG+1}], {v(vdata,2)}')
    S.I('s_sub_u32 s3, s3, 1')
    S.I('s_cmp_eq_u32 s3, 0')
    S.I(f's_cbranch_scc1 {ok}')
    S.I('s_nop 2')
    S.I(f's_cbranch_vccnz {lp}')
    S.label(ok)

def set_flag(S, soff, vt=2):
    S.I(f'v_mov_b32 {v(vt)}, s{TAG}\nv_mov_b32 {v(vt+1)}, s{TAG+1}\nv_mov_b32 {v(vt+2)}, 0')
    S.I('s_mov_b64 exec, 1')
    S.I(f'buffer_store_dwordx2 {v(vt,2)}, {v(vt+2)}, s[{RWS}:{RWS+3}], s{soff} offen sc1', tag='flag')
    S.I('s_mov_b64 exec, -1')

def set_flag_w0(S, soff):
    lab = S.newlabel('L_nf')
    S.I(f's_cmp_lg_u32 s{sWAVE}, 0\ns_cbranch_scc1 {lab}')
    sv = list(S.vm); be = S.bg_every; S.bg_every = 0
    set_flag(S, soff)
    S.vm = sv; S.bg_every = be
    S.label(lab)

def allreduce64(S, regs, tmp):
    for sh in (8, 4, 2, 1):
        for r in regs:
            S.I(f'v_add_f32_dpp {v(r)}, {v(r)}, {v(r)} row_ror:{sh} row_mask:0xf bank_mask:0xf')
    for op in ('v_permlane16_swap_b32', 'v_permlane32_swap_b32'):
        for r, t in zip(regs, tmp): S.I(f'v_mov_b32 {v(t)}, {v(r)}')
        for r, t in zip(regs, tmp): S.I(f'{op} {v(r)}, {v(t)}')
        for r, t in zip(regs, tmp): S.I(f'v_add_f32 {v(r)}, {v(r)}, {v(t)}')

def pair_allreduce2(S, pairs, post):
    for ra, rb, op in pairs: S.I(f'v_permlane32_swap_b32 {v(ra)}, {v(rb)}')
    for ra, rb, op in pairs: S.I(f'{op} {v(ra)}, {v(ra)}, {v(rb)}')
    for ra, rb, op in pairs: post(ra)
    for ra, rb, op in pairs: S.I(f'v_mov_b32 {v(rb)}, {v(ra)}')
    for ra, rb, op in pairs: S.I(f'v_permlane32_swap_b32 {v(ra)}, {v(rb)}')

def bc(r):
    return v(r & ~1, 2), r & 1, r & 1
def pk_add(S, d, a, b): S.I(f'v_pk_add_f32 {v(d,2)}, {v(a,2)}, {v(b,2)}')
def pk_mul_bc(S, d, a, r):
    o, lo, hi = bc(r)
    S.I(f'v_pk_mul_f32 {v(d,2)}, {v(a,2)}, {o} op_sel:[0,{lo}] op_sel_hi:[1,{hi}]')
def softmax_pm(S, P, E, T, OUT, hook=None):
    mxA, mxB, mnA, mnB = T, T+1, T+2, T+3
    q4 = ((mxA, P, 'max'), (mxB, P+8, 'max'), (mnA, P, 'min'), (mnB, P+8, 'min'))
    for m, base, o in q4: S.I(f'v_{o}3_f32 {v(m)}, {v(base)}, {v(base+1)}, {v(base+2)}')
    for k in (3, 5):
        for m, base, o in q4: S.I(f'v_{o}3_f32 {v(m)}, {v(m)}, {v(base+k)}, {v(base+k+1)}')
    for m, base, o in q4: S.I(f'v_{o}_f32 {v(m)}, {v(m)}, {v(base+7)}')
    pair_allreduce2(S, [(mxA, mxB, 'v_max_f32'), (mnA, mnB, 'v_min_f32')], lambda r: S.I(f'v_mul_f32 {v(r)}, s{sC}, {v(r)}'))
    for hb, (mx, mn) in enumerate(((mxA, mnA), (mxB, mnB))):
        ox, lx, hx = bc(mx); on, ln, hn = bc(mn)
        for i in range(0, 8, 2):
            S.I(f'v_pk_fma_f32 {v(E+16*hb+i,2)}, {v(P+8*hb+i,2)}, s[{sC}:{sC+1}], {ox} op_sel:[0,0,{lx}] op_sel_hi:[1,0,{hx}] neg_lo:[0,0,1] neg_hi:[0,0,1]')
            S.I(f'v_pk_fma_f32 {v(E+16*hb+8+i,2)}, {v(P+8*hb+i,2)}, s[{sC}:{sC+1}], {on} op_sel:[0,0,{ln}] op_sel_hi:[1,0,{hn}] neg_lo:[1,0,0] neg_hi:[1,0,0]')
        for i in range(16):
            S.I(f'v_exp_f32 {v(E+16*hb+i)}, {v(E+16*hb+i)}')
        if hook and hb == 0: hook()
    sm = [T+4, T+5, T+6, T+7]
    tp = [T+8, T+10, T+12, T+14]
    for g in range(4): pk_add(S, tp[g], E+8*g, E+8*g+2)
    for i in (4, 6):
        for g in range(4): pk_add(S, tp[g], tp[g], E+8*g+i)
    for g in range(4): S.I(f'v_add_f32 {v(sm[g])}, {v(tp[g])}, {v(tp[g]+1)}')
    pair_allreduce2(S, [(sm[0], sm[1], 'v_add_f32'), (sm[2], sm[3], 'v_add_f32')], lambda r: S.I(f'v_rcp_f32 {v(r)}, {v(r)}'))
    for g in range(4):
        for i in range(0, 8, 2): pk_mul_bc(S, E+8*g+i, E+8*g+i, sm[g])
        for i in range(4): S.I(f'v_cvt_pk_bf16_f32 {v(OUT+4*g+i)}, {v(E+8*g+2*i)}, {v(E+8*g+2*i+1)}')

def cvt8(S, dst, src, n=8):
    for i in range(n): S.I(f'v_cvt_pk_bf16_f32 {v(dst+i)}, {v(src+2*i)}, {v(src+2*i+1)}')

NSTAMP = 11
SSETS = {
 0: [0,1,2,3,4,5,6,7,8,9],
 1: [0,'Aw0','A0','Aw1','A1','Aw2','A2','Aw3','A3','Aw4'],
 2: [0,5,'B0','B4','Bkv','B8','B12','B16','B22',6],
 3: [0,6,'x2','ust','ua',7,'qs','po','kvf','ost'],
 4: [0,'ost','dd',8,'C0','C4','C12','C20','C28',9],
 5: [0,'A4','Aw5','A5','Aw6','A6','hp0','hp1','A7',4],
}
def stamp(S, opt, k, early=False):
    if early or not opt.get('stamps'): return
    L = SSETS[opt.get('sset', 0)]
    if k in L:
        n = L.index(k)
        S.I(f'{"s_memtime" if opt.get("stamps") == 2 else "s_memrealtime"} s[{80+2*n}:{81+2*n}]')
def stamp_out(S, opt):
    if opt.get('stamps'):
        n = NSTAMP - 1
        S.I('s_waitcnt vmcnt(0) lgkmcnt(0)')
        S.I(f'{"s_memtime" if opt.get("stamps") == 2 else "s_memrealtime"} s[{80+2*n}:{81+2*n}]')
        S.I('s_waitcnt lgkmcnt(0)')
        S.I('v_mov_b32 v2, 0')
        for k in range(n + 1): S.I(f'v_writelane_b32 v2, s{80+2*k}, {k}')
        S.I(f's_lshl_b32 s3, s2, 2\ns_add_u32 s3, s3, s{sWAVE}\ns_lshl_b32 s3, s3, 6\ns_add_u32 s3, s3, {STAMP_BASE}')
        S.I('v_lshlrev_b32 v3, 2, v1')
        S.I('s_mov_b64 exec, 0xffff')
        S.I(f'buffer_store_dword v2, v3, s[{RWS}:{RWS+3}], s3 offen')

INB = (2, 3, 4)
XA = [233, 234, 235, 239]
def exch_addr(S):
    for i in range(1, 4):
        S.I(f's_xor_b32 s3, s{sWAVE}, {i}\ns_lshl_b32 s3, s3, 13\nv_add_u32 {v(XA[i])}, s3, v5')
    S.I(f'v_add_u32 {v(XA[0])}, s{sMB}, v5')
def xw(ACC, i, q): return f'ds_write_b128 {v(XA[i])}, {v(ACC+16*i+4*q,4)} offset:{dslot(INB[i-1])+q*1024}'
def exchange_rd(S, ACC):
    S.wait(lg='xw')
    S.I('s_barrier')
    for i in range(1, 4):
        for q in range(4):
            S.I(f'ds_read_b128 {v(ACC+16*i+4*q,4)}, {v(XA[0])} offset:{dslot(INB[i-1])+q*1024}', tag=f'xr{i}')
def exchange(S, ACC):
    for i in range(1, 4):
        for q in range(4): S.I(xw(ACC, i, q), tag='xw')
    exchange_rd(S, ACC)
def exchange_sum(S, ACC):
    for i in range(1, 4):
        S.wait(lg=f'xr{i}')
        for r in range(0, 16, 2): pk_add(S, ACC+r, ACC+r, ACC+16*i+r)

def gen(S, opt):
    vXa, vXb, vW, vW2 = 10, 11, 12, 13
    vO = 10
    vW1, vY = 14, 18
    vH0, vH1, vD0, vD1 = 22, 23, 30, 31
    vXr = 24; vTy = 24
    vWr = 224
    vBr = 226; vTa = 226
    vLP = 8
    FR_ = 32
    AQ, AK, AV = 80, 96, 112
    IP, IM = 216, 220
    QB, WA, WB = 240, 248, 252
    vFL, vFLa = 236, 238
    vSW = 239
    ACC = 64; AF = 32

    def multi_ops(tag, pre, loads):
        ops = []
        for n, l in enumerate(loads):
            def f(n=n, l=l):
                if n == 0: S.I(pre)
                S.I(l, tag=tag)
            ops.append((tag, f))
        return ops
    def run(ops):
        for o in ops: (o[1] if isinstance(o, tuple) else o)()
    def finish_group():
        if S.bg and S.vm and isinstance(S.bg[0], tuple) and S.bg[0][0] in S.vm and not S.bg[0][0].startswith('S'):
            t = S.bg[0][0]
            while S.bg and S.bg[0][0] == t: S.run_bg(1)

    S.I('s_cmp_ge_u32 s2, 256\ns_cbranch_scc1 L_end')
    stamp(S, opt, 0)
    S.I('s_load_dwordx16 s[36:51], s[0:1], 0')
    S.I('s_load_dwordx8 s[52:59], s[0:1], 64')
    S.I('s_load_dwordx2 s[60:61], s[0:1], 96')
    S.I('s_getpc_b64 s[66:67]')
    S.label('L_pc')
    S.I('s_lshl_b32 s3, s2, 5\ns_add_u32 s3, s3, L_table-L_pc')
    S.I(f's_load_dwordx4 s[{sTB}:{sTB+3}], s[66:67], s3')
    S.I('s_add_u32 s3, s3, 16')
    S.I(f's_load_dwordx2 s[{sTA}:{sTA+1}], s[66:67], s3')
    S.I(f's_and_b32 s{sXCD}, s2, 7\ns_lshr_b32 s{sIDX}, s2, 3')
    S.I(f's_and_b32 s4, s{sIDX}, 7\ns_lshl_b32 s3, s4, 12')
    S.I('v_lshl_add_u32 v7, v0, 4, s3')
    S.I('global_load_dwordx4 v[232:235], v7, s[66:67]', tag='cpf')
    S.I('v_and_b32 v1, 63, v0\nv_lshrrev_b32 v2, 6, v0')
    S.I(f's_lshr_b32 s3, s{sXCD}, 1\ns_lshl_b32 s3, s3, 3\ns_add_u32 s{sSBLK}, s3, s4')
    S.I(f'v_readfirstlane_b32 s{sWAVE}, v2')
    S.I('v_lshrrev_b32 v2, 3, v1\nv_and_b32 v3, 7, v1\nv_lshrrev_b32 v4, 4, v1')
    S.I(f's_and_b32 s3, s{sXCD}, 1\ns_lshl_b32 s3, s3, 2\ns_lshr_b32 s7, s{sIDX}, 3\ns_add_u32 s{sQUAD}, s3, s7')
    S.I(f's_lshl_b32 s5, s{sSBLK}, 16\ns_lshl_b32 s6, s{sQUAD}, 13\ns_add_u32 s6, s6, s5\ns_lshl_b32 s{sMX}, s{sWAVE}, 11\ns_add_u32 s6, s6, s{sMX}')
    S.I('v_lshlrev_b32 v5, 4, v1')
    S.I(f'v_xor_b32 v6, v3, v4\nv_lshlrev_b32 v6, 4, v6\nv_lshl_add_u32 {v(vXa)}, v2, 10, v6')
    S.I(f'v_xor_b32 {v(vXb)}, 64, {v(vXa)}\nv_add_u32 {v(vXb)}, 7168, {v(vXb)}')
    S.I('v_and_b32 v6, 1, v4\nv_lshlrev_b32 v6, 2, v6\nv_xor_b32 v6, v3, v6\nv_lshlrev_b32 v6, 4, v6')
    S.I(f'v_mul_u32_u24 v7, 3072, v2\nv_add_u32 {v(vW)}, v7, v6\nv_add_u32 {v(vW2)}, 24576, {v(vW)}')
    S.I(f's_lshl_b32 s7, s{sWAVE}, 14\ns_add_u32 s{sB0}, s5, s7')
    S.I(f's_mul_i32 s{sB1}, s{sWAVE}, {16*3072}\ns_lshl_b32 s7, s{sQUAD}, 7\ns_add_u32 s{sB1}, s{sB1}, s7')
    S.I(f's_mul_i32 s{sMW}, s{sWAVE}, 6144\ns_add_u32 s{sMW}, s{sMW}, 8192')
    S.I('v_mov_b32 v9, 0')
    S.I(f's_mov_b32 s{RX+2}, {2048*1024}\ns_mov_b32 s{RX+3}, 0x00020000\ns_mov_b32 s{RW+2}, {512*3072}\ns_mov_b32 s{RW+3}, 0x00020000\ns_mov_b32 s{RWS+2}, {WS_SIZE}\ns_mov_b32 s{RWS+3}, 0x00020000')
    S.I('s_waitcnt lgkmcnt(0)')
    S.I(f's_mov_b64 s[{RX}:{RX+1}], s[{PX}:{PX+1}]')
    S.I(f'buffer_load_dwordx4 v[128:131], v5, s[{RX}:{RX+3}], s6 offen', tag='lnx')
    S.I(f'buffer_load_dwordx4 v[132:135], v5, s[{RX}:{RX+3}], s6 offen offset:1024', tag='lnx')
    S.I(f'global_load_dwordx4 v[136:139], v5, s[{PGW}:{PGW+1}]', tag='lnx')
    S.I(f's_mov_b64 s[{RWS}:{RWS+1}], s[{PWS}:{PWS+1}]\ns_mov_b64 s[{RW}:{RW+1}], s[{PWQKV}:{PWQKV+1}]')
    S.I(f'buffer_load_dwordx2 v[164:165], v9, s[{RWS}:{RWS+3}], 0 offen sc1', tag='lnx')

    def st_ops(st):
        slot = (st % 3) * 32768
        tg = f'S{st}'
        ops = multi_ops(tg, f's_and_b32 s{sIX}, s{sTA}, 7\ns_add_u32 m0, s{sMX}, {slot}\ns_lshl_b32 s4, s{sIX}, 7\ns_add_u32 s4, s4, s{sB0}',
            [f'buffer_load_dwordx4 {v(vXa)}, s[{RX}:{RX+3}], s4 offen lds', f'buffer_load_dwordx4 {v(vXb)}, s[{RX}:{RX+3}], s4 offen offset:1024 lds'])
        ops += multi_ops(tg, f's_add_u32 m0, s{sMW}, {slot}\ns_mul_i32 s4, s{sIX}, {64*3072}\ns_add_u32 s4, s4, s{sB1}',
            [f'buffer_load_dwordx4 {v(vW)}, s[{RW}:{RW+3}], s4 offen offset:{seg*1024} lds' for seg in range(3)])
        ops += multi_ops(tg, f's_add_u32 m0, s{sMW}, {slot+3072}\ns_lshr_b32 s{sTA}, s{sTA}, 4',
            [f'buffer_load_dwordx4 {v(vW2)}, s[{RW}:{RW+3}], s4 offen offset:{seg*1024} lds' for seg in range(3)])
        return ops
    o0 = st_ops(0)
    run(o0[:5])
    S.I(f'v_mul_u32_u24 v7, 3584, v2\nv_add_u32 {v(vW1)}, v7, v6')
    S.I(f'v_lshl_add_u32 {v(vY)}, v2, 12, v6\nv_lshl_add_u32 {v(vSW)}, v2, 10, v6')
    S.I('v_lshrrev_b32 v9, 5, v1')
    S.I(f's_mov_b32 s{sC}, {LOG2E}')
    S.I(f's_lshr_b32 s3, s{sWAVE}, 1\ns_lshl_b32 s3, s3, 12')
    S.I('v_and_b32 v6, 31, v1\nv_lshlrev_b32 v6, 7, v6\nv_bfe_u32 v7, v1, 1, 3\nv_xor_b32 v7, v7, v9\nv_lshl_add_u32 v6, v7, 4, v6')
    S.I(f'v_add_u32 {v(vXr)}, s3, v6')
    run(o0[5:6])
    for ks in range(1, 4): S.I(f'v_xor_b32 {v(vXr+ks)}, {32*ks}, {v(vXr)}')
    S.I(f'v_bfe_u32 {v(vLP)}, v1, 2, 2\nv_lshlrev_b32 {v(vLP)}, 7, {v(vLP)}')
    S.I(f'v_bfe_u32 v7, v1, 4, 1\nv_lshl_add_u32 {v(vLP)}, v7, 5, {v(vLP)}')
    S.I(f'v_and_b32 v7, 3, v1\nv_lshl_add_u32 {v(vLP)}, v7, 3, {v(vLP)}')
    S.I(f'v_bfe_u32 v7, v1, 3, 1\nv_lshl_add_u32 {v(vLP)}, v7, 6, {v(vLP)}')
    run(o0[6:7])
    S.I(f's_and_b32 s3, s{sWAVE}, 1\ns_lshl_b32 s3, s3, 6')
    S.I(f'v_xor_b32 v7, s3, {v(vLP)}')
    S.I(f'v_mul_u32_u24 {v(vWr)}, 3072, v9\nv_add_u32 {v(vWr)}, {v(vWr)}, v7\nv_add_u32 {v(vWr)}, 8192, {v(vWr)}')
    run(o0[7:8])
    LDS_SCR = 4 * 32768
    S.I(f's_mul_i32 s3, s{sWAVE}, 2176\ns_add_u32 s3, s3, {LDS_SCR}\nv_add_u32 v188, s3, v5')
    S.I('v_bfe_u32 v6, v1, 2, 2\nv_mul_u32_u24 v6, 1088, v6\nv_lshl_add_u32 v6, v4, 5, v6\nv_and_b32 v7, 3, v1\nv_lshl_add_u32 v6, v7, 3, v6')
    S.I(f's_lshl_b32 s3, s{sWAVE}, 8\ns_add_u32 s3, s3, {LDS_SCR}\nv_add_u32 v189, s3, v6')
    S.I(f's_lshl_b32 s3, s{sSBLK}, 2\ns_lshr_b32 s7, s{sQUAD}, 1\ns_add_u32 s3, s3, s7\ns_lshl_b32 s3, s3, 11\ns_lshl_b32 s7, s{sWAVE}, 19\ns_add_u32 s3, s3, s7')
    S.I(f's_and_b32 s7, s{sQUAD}, 1\ns_lshl_b32 s7, s7, 9\ns_add_u32 s3, s3, s7\ns_add_u32 s{sA68}, s3, {HF}\ns_add_u32 s{sA69}, s{sA68}, 262144')
    S.I('v_and_b32 v7, 31, v1\nv_lshlrev_b32 v7, 4, v7\nv_lshl_add_u32 v190, v9, 10, v7')
    S.I(f's_lshr_b32 s5, s6, 13\ns_lshl_b32 s5, s5, 7\ns_add_u32 s5, s5, {G_}\nv_lshlrev_b32 v191, 2, v1')
    S.I(f's_lshl_b32 s3, s{sWAVE}, 3\ns_add_u32 s3, s3, {LDS_SCR + 8704}\nv_add_u32 v187, s3, v191\nv_add_u32 v186, {LDS_SCR + 8704}, v191')

    S.wait(vm='lnx')
    stamp(S, opt, 1)
    S.push(st_ops(1) + st_ops(2))
    S.bg_every = opt.get('bgLN', 30)
    fa, fb, fg = 140, 148, 156
    for dst, src in ((fa, 128), (fb, 132), (fg, 136)):
        for i in range(4):
            S.I(f'v_lshlrev_b32 {v(dst+2*i)}, 16, {v(src+i)}\nv_and_b32 {v(dst+2*i+1)}, 0xffff0000, {v(src+i)}')
    S.I(f'v_readfirstlane_b32 s{TAG}, v164\nv_readfirstlane_b32 s{TAG+1}, v165')
    sA, sB_, gA, gB = 172, 173, 174, 175
    S.I(f'v_add_f32 {v(sA)}, {v(fa)}, {v(fa+1)}\nv_add_f32 {v(sB_)}, {v(fb)}, {v(fb+1)}')
    S.I(f'v_mul_f32 {v(gA)}, {v(fa)}, {v(fg)}\nv_mul_f32 {v(gB)}, {v(fb)}, {v(fg)}')
    S.I(f's_mul_i32 s{TAG}, s{TAG}, 1664525\ns_add_u32 s{TAG}, s{TAG}, 1013904223')
    S.I(f's_mul_i32 s{TAG+1}, s{TAG+1}, 22695477\ns_add_u32 s{TAG+1}, s{TAG+1}, 1')
    for i in range(1, 8):
        if i >= 2: S.I(f'v_add_f32 {v(sA)}, {v(sA)}, {v(fa+i)}\nv_add_f32 {v(sB_)}, {v(sB_)}, {v(fb+i)}')
        S.I(f'v_fmac_f32 {v(gA)}, {v(fa+i)}, {v(fg+i)}\nv_fmac_f32 {v(gB)}, {v(fb+i)}, {v(fg+i)}')
    allreduce64(S, [sA, sB_, gA, gB], [176, 177, 178, 179])
    S.I(f'v_mul_f32 {v(sA)}, {f2u(1/512):#x}, {v(sA)}\nv_mul_f32 {v(sB_)}, {f2u(1/512):#x}, {v(sB_)}')
    for i in range(8):
        S.I(f'v_sub_f32 {v(fa+i)}, {v(fa+i)}, {v(sA)}\nv_sub_f32 {v(fb+i)}, {v(fb+i)}, {v(sB_)}')
    S.I(f'v_mul_f32 {v(sA)}, {v(fa)}, {v(fa)}\nv_mul_f32 {v(sB_)}, {v(fb)}, {v(fb)}')
    for i in range(1, 8):
        S.I(f'v_fmac_f32 {v(sA)}, {v(fa+i)}, {v(fa+i)}\nv_fmac_f32 {v(sB_)}, {v(fb+i)}, {v(fb+i)}')
    S.I(f'v_cmp_eq_u32 vcc, 0, v1\nv_cndmask_b32 {v(gA)}, {v(gB)}, {v(gA)}, vcc')
    S.I(f'v_mul_f32 {v(gA)}, s{sC}, {v(gA)}\nv_exp_f32 {v(gA)}, -{v(gA)}\nv_add_f32 {v(gA)}, 1.0, {v(gA)}\nv_rcp_f32 {v(gA)}, {v(gA)}')
    allreduce64(S, [sA, sB_], [176, 177])
    S.I(f'v_mov_b32 v176, {f2u(1e-5):#x}')
    S.I(f'v_fmamk_f32 {v(sA)}, {v(sA)}, {f2u(1/512):#x}, v176\nv_fmamk_f32 {v(sB_)}, {v(sB_)}, {f2u(1/512):#x}, v176')
    S.I(f'v_rsq_f32 {v(sA)}, {v(sA)}\nv_rsq_f32 {v(sB_)}, {v(sB_)}')
    for i in range(8):
        S.I(f'v_mul_f32 {v(fa+i)}, {v(sA)}, {v(fa+i)}\nv_mul_f32 {v(fb+i)}, {v(sB_)}, {v(fb+i)}')
    cvt8(S, 128, fa, 4); cvt8(S, 132, fb, 4)
    S.bg_every = 0
    S.I('ds_write_b128 v188, v[128:131]', tag='lnw')
    S.I('ds_write_b128 v188, v[132:135] offset:1088', tag='lnw')
    S.I('s_mov_b64 exec, 3')
    S.I(f'ds_write_b32 v187, {v(gA)}', tag='lnw')
    S.I('s_mov_b64 exec, -1')

    def nib(t, wide=True):
        return f's_and_b32 s4, s{t}, 15\n' + (f's_lshr_b64 s[{t}:{t+1}], s[{t}:{t+1}], 4' if wide else f's_lshr_b32 s{t}, s{t}, 4')
    def dma_blk(tag, d, t, wide, scale, base, vreg, R):
        sc = f's_lshl_b32 s4, s4, {scale.bit_length()-1}' if scale & (scale - 1) == 0 else f's_mul_i32 s4, s4, {scale}'
        return multi_ops(tag, f'{nib(t, wide)}\ns_add_u32 m0, s{sMB}, {dslot(d)}\n{sc}\ns_add_u32 s4, s4, s{base}',
            [f'buffer_load_dwordx4 {v(vreg+q)}, s[{R}:{R+3}], s4 offen offset:{q*1024} lds' for q in range(4)])
    def dir_blk(tag, dst, t, wide, base, v0_, v1_, R):
        return multi_ops(tag, f'{nib(t, wide)}\ns_lshl_b32 s4, s4, 12\ns_add_u32 s4, s4, s{base}',
            [f'buffer_load_dwordx4 {dst(4*q)}, {v(v1_ if q & 1 else v0_)}, s[{R}:{R+3}], s4 offen offset:{(q>>1)*2048} sc1' for q in range(4)])
    bds = {0: 6, 1: 7, 2: 8, 3: 9, 4: 0, 5: 1, 6: 2, 7: 3, 8: 4, 9: 5, 10: 6, 11: 7, 12: 8, 13: 9, 14: 0, 15: 1}
    def b_ops(p): return dma_blk(f'B{p}', bds[p], sTB, True, 32*3584, sB2, vW1, RW1)
    def h_ops(p): return dir_blk(f'H{p}', lambda o: a_(16*p+o, 4), sT2, True, sB3, vH0, vH1, RH)
    def tr_addrs(base, gshift, wsel):
        if wsel == 'hi': S.I(f's_lshr_b32 s3, s{sWAVE}, 1\ns_lshl_b32 s3, s3, 6')
        else: S.I(f's_and_b32 s3, s{sWAVE}, 1\ns_lshl_b32 s3, s3, 6')
        S.I(f'v_xor_b32 v7, s3, {v(vLP)}\nv_lshl_add_u32 v7, v9, {gshift}, v7\nv_add_u32 {v(base)}, s{sMB}, v7')
        S.I(f'v_xor_b32 {v(base+1)}, 64, {v(base)}')
        for wdw in (1, 2):
            S.I(f'v_add_u32 {v(base+2*wdw)}, {wdw*0x10000:#x}, {v(base)}\nv_add_u32 {v(base+2*wdw+1)}, {wdw*0x10000:#x}, {v(base+1)}')

    def setup1():
        S.I(f's_and_b32 s3, s{sXCD}, 1\ns_lshl_b32 s3, s3, 2\ns_and_b32 s7, s{sIDX}, 3\ns_add_u32 s{sDT}, s3, s7')
        S.I(f's_lshr_b32 s3, s{sXCD}, 1\ns_mul_i32 s7, s3, 7\ns_lshr_b32 s5, s{sIDX}, 2\ns_add_u32 s{sFT}, s7, s5')
        S.I(f's_lshl_b32 s3, s3, 3\ns_add_u32 s{sST}, s3, s5')
        S.I(f's_mov_b64 s[{sT2}:{sT2+1}], s[{sTB}:{sTB+1}]\ns_mov_b32 s{sTO2}, s{sTO}')
        for q in range(1, 4): S.I(f'v_add_u32 {v(vW1+q)}, {q*(8*3584-1024)}, {v(vW1)}')
    def setup2():
        S.I(f's_mul_i32 s{sB2}, s{sWAVE}, {512*3584}\ns_lshl_b32 s3, s{sFT}, 7\ns_add_u32 s{sB2}, s{sB2}, s3')
        S.I(f's_lshl_b32 s{sMB}, s{sWAVE}, 13')
        srd(S, RW1, PW1, 2048*3584)
        S.I(f's_cmp_ge_u32 s{sIDX}, 28\ns_cselect_b32 s{RW1+2}, 0, s{RW1+2}')
        S.I(f's_lshl_b32 s3, s{sSBLK}, 3\ns_add_u32 s3, s3, s{sQUAD}\ns_lshl_b32 s3, s3, 7\ns_add_u32 s{sA69}, s3, {FH}')
    def setup3():
        for ks in range(4): S.I(f'v_add_u32 {v(vXr+4+ks)}, 0x10000, {v(vXr+ks)}')
        S.I(f'v_add_u32 {v(vWr+1)}, 0x10000, {v(vWr)}')
    def wphi_loads():
        S.I(f's_and_b32 s3, s{sWAVE}, 1\ns_lshl_b32 s3, s3, 1\ns_lshl_b32 s7, s{sQUAD}, 2\ns_add_u32 s3, s3, s7\ns_lshl_b32 s3, s3, 9')
        S.I('v_bfe_u32 v6, v1, 4, 1\nv_lshlrev_b32 v6, 9, v6\nv_and_b32 v7, 15, v1\nv_lshl_add_u32 v6, v7, 1, v6\nv_lshl_add_u32 v6, v9, 7, v6\nv_add_u32 v6, s3, v6')
        for j in range(8):
            d = (j & 3) + 8 * (j >> 2)
            S.I(f'global_load_ushort {v(180 + j)}, v6, s[{PWPHI}:{PWPHI+1}] offset:{d*32}', tag='wphi')
    def setup4():
        S.I(f's_lshl_b32 s{sB3}, s{sWAVE}, 16\ns_lshl_b32 s3, s{sDT}, 18\ns_add_u32 s{sB3}, s{sB3}, s3\ns_add_u32 s{sB3}, s{sB3}, {HF}')
        srd(S, RH, PWS, WS_SIZE)
        S.I(f's_cmp_ge_u32 s{sIDX}, 28\ns_cselect_b32 s{RH+2}, 0, s{RH+2}')
        S.I(f's_mov_b32 s{sMASK}, 0x0000ffff\ns_mov_b32 s{sMASK+1}, 0x0000ffff')
        S.I(f's_and_b32 s3, s{sWAVE}, 1\ns_lshl_b32 s3, s3, 10')
        S.I(f'v_add_u32 {v(vH0)}, s3, v5\nv_xor_b32 {v(vH1)}, 0x400, {v(vH0)}')
    def setup5(): tr_addrs(vBr, 10, 'hi')
    def setup6():
        for q in range(1, 4): S.I(f'v_add_u32 {v(vY+q)}, {q*(8*4096-1024)}, {v(vY)}')
        S.I('v_and_b32 v6, 31, v1\nv_lshlrev_b32 v7, 2, v9\nv_sub_u32 v192, v6, v7')
        S.I('v_mov_b32 v193, 0x3f80\nv_mov_b32 v194, 0x3f800000')
    def ident(base, off):
        def f():
            for jj in range(4):
                f0 = ((2*jj) & 3) + 8*(jj >> 1) + off
                S.I(f'v_cmp_eq_u32 vcc, {f0}, v192\nv_cmp_eq_u32 s[{sEX}:{sEX+1}], {f0+1}, v192\nv_cndmask_b32 {v(base+jj)}, 0, v193, vcc')
                S.I(f'v_cndmask_b32 {v(base+jj)}, {v(base+jj)}, v194, s[{sEX}:{sEX+1}]')
        return f
    def wphi_pack():
        S.wait(vm='wphi')
        for i in range(4): S.I(f'v_lshl_or_b32 {v(168+i)}, {v(181+2*i)}, 16, {v(180+2*i)}')
        for i in range(4):
            S.I(f'v_cndmask_b32 {v(WA+i)}, 0, {v(168+i)}, s[{sMASK}:{sMASK+1}]')
            S.I(f'v_cndmask_b32 {v(WB+i)}, {v(168+i)}, 0, s[{sMASK}:{sMASK+1}]')
    def kv_addr():
        S.I(f's_and_b32 s3, s{sWAVE}, 1\ns_lshl_b32 s7, s{sQUAD}, 1\ns_add_u32 s3, s3, s7\ns_lshl_b32 s3, s3, 5\ns_add_u32 s3, s3, s{sSBLK}')
        S.I(f's_lshr_b32 s5, s{sWAVE}, 1')
        S.I(f's_lshl_b32 s7, s3, 1\ns_add_u32 s7, s7, s5\ns_lshl_b32 s7, s7, 7\ns_add_u32 s{sA69}, s7, {FKV}')
        S.I(f's_mul_i32 s3, s3, {KVB}\ns_add_u32 s{sA68}, s3, {KVP}')
        S.I('s_lshl_b32 s7, s5, 8\ns_add_u32 s7, s7, 4096\nv_lshl_add_u32 v232, v1, 2, s7')
        S.I(f's_xor_b32 s3, s{sWAVE}, 2\ns_lshl_b32 s3, s3, 13\nv_add_u32 v233, s3, v5\nv_add_u32 v234, s{sMB}, v5')
    def h_poll_issue():
        S.I(f'v_lshlrev_b32 {v(vFLa)}, 7, v0\nv_add_u32 {v(vFLa)}, {FH}, {v(vFLa)}')
        S.I(f'buffer_load_dwordx2 {v(vFL,2)}, {v(vFLa)}, s[{RWS}:{RWS+3}], 0 offen sc1', tag='pollH')
    GO, GC, B2R, B1R = 208, 210, 209, 200
    def small_loads():
        S.I('v_bfe_u32 v6, v1, 3, 2\nv_lshlrev_b32 v6, 7, v6\nv_and_b32 v7, 7, v1\nv_lshl_add_u32 v6, v7, 2, v6')
        S.I(f's_lshl_b32 s3, s{sSBLK}, 1\ns_lshr_b32 s7, s{sWAVE}, 1\ns_add_u32 s3, s3, s7\ns_lshl_b32 s3, s3, 9\ns_add_u32 s3, s3, {G_}')
        S.I(f'buffer_load_dword {v(GO)}, v6, s[{RWS}:{RWS+3}], s3 offen sc1', tag='g')
        S.I(f's_lshl_b32 s3, s{sST}, 10\ns_add_u32 s3, s3, {G_}\ns_and_b32 s6, s{sWAVE}, 1\ns_lshl_b32 s7, s6, 9')
        S.I('v_add_u32 v6, s7, v6\nv_xor_b32 v7, 0x200, v6')
        S.I(f'buffer_load_dword {v(GC)}, v6, s[{RWS}:{RWS+3}], s3 offen sc1', tag='g')
        S.I(f'buffer_load_dword {v(GC+1)}, v7, s[{RWS}:{RWS+3}], s3 offen sc1', tag='g')
        S.I(f's_lshl_b32 s3, s{sST}, 7\ns_lshl_b32 s7, s6, 6\ns_add_u32 s3, s3, s7\nv_and_b32 v6, 31, v1\nv_lshl_add_u32 v6, v6, 1, s3')
        S.I(f'global_load_ushort {v(B2R)}, v6, s[{PB2}:{PB2+1}]', tag='g')
        S.I(f's_min_u32 s3, s{sFT}, 27\ns_lshl_b32 s3, s3, 7\ns_lshr_b32 s7, s{sWAVE}, 1\ns_lshl_b32 s7, s7, 6\ns_add_u32 s3, s3, s7')
        S.I('v_lshl_add_u32 v6, v9, 3, s3')
        for q in range(4):
            S.I(f'global_load_dwordx2 {v(B1R+2*q,2)}, v6, s[{PB1}:{PB1+1}] offset:{16*q}', tag='g')
    HP = opt.get('hpoll', 19); HC = opt.get('hchk', 25)
    HFS = opt.get('hfs', 2)
    extras = {1: setup1, 2: setup2, 3: setup3, 5: wphi_loads, 6: setup4, 9: setup5, 10: setup6, 13: ident(IP, 0), 14: ident(IM, 16),
              17: wphi_pack, 18: kv_addr, 29: small_loads}
    wpos = {1: [0], 2: [1], 3: [2], 4: [3]} if opt.get('wpv', 0) == 0 else {2: [0], 3: [1], 4: [2], 5: [3]}

    def a_reads(kk):
        st, ks = kk >> 2, kk & 3
        slot = st % 3
        hi = slot >> 1
        so = (slot & 1) * 32768
        b = FR_ + 16 * (kk % 3)
        R = [f'ds_read_b128 {v(b,4)}, {v(vXr+4*hi+ks)} offset:{so}']
        for seg in range(3):
            for t in range(2):
                R.append(f'ds_read_b64_tr_b16 {v(b+4+4*seg+2*t,2)}, {v(vWr+hi)} offset:{so + ks*6144 + seg*1024 + t*512}')
        return R
    def a_mfmas(kk):
        b = FR_ + 16 * (kk % 3)
        c = (lambda r: v(r, 16)) if kk else (lambda r: '0')
        return [f'{MF} {v(AQ,16)}, {v(b+4,4)}, {v(b,4)}, {c(AQ)}',
                f'{MF} {v(AK,16)}, {v(b+8,4)}, {v(b,4)}, {c(AK)}',
                f'{MF} {v(AV,16)}, {v(b,4)}, {v(b+12,4)}, {c(AV)}']
    for kk in range(34):
        st, ks = kk >> 2, kk & 3
        R = a_reads(kk) if kk < 32 else []
        M = a_mfmas(kk - 2) if kk >= 2 else []
        if M: S.wait(lg=f'R{kk-2}')
        if ks == 0:
            S.comment(f'stage {st}')
            for m in M[:2]: S.I(m)
            stamp(S, opt, f'Aw{st}')
            if st < 8: S.wait(vm=[f'S{st}'] + (['hst'] if st == HFS else []), lg='all')
            else: S.wait(lg='all')
            S.I('s_barrier')
            stamp(S, opt, f'A{st}')
            if st == 0:
                stamp(S, opt, 2)
                S.I('ds_read_b64_tr_b16 v[128:129], v189', tag='lnr')
                S.I(f'ds_read_b64_tr_b16 v[130:131], v189 offset:{4*1088}', tag='lnr')
                S.I('ds_read_b64_tr_b16 v[132:133], v189 offset:128', tag='lnr')
                S.I(f'ds_read_b64_tr_b16 v[134:135], v189 offset:{4*1088+128}', tag='lnr')
                S.I('ds_read_b32 v136, v186', tag='lnr')
            if st == 4: stamp(S, opt, 3)
            if 1 <= st <= 5: S.push(st_ops(st + 2))
            for p in wpos.get(st, []): S.push(b_ops(p))
            if st == 6: S.push(b_ops(4))
            if st == 7: S.push(b_ops(6) + h_ops(2) + b_ops(7) + h_ops(3))
            if st == 8: S.push(b_ops(8) + h_ops(4))
            for r in R[:4]: S.I(r, tag=f'R{kk}')
            if st == 0:
                S.wait(lg='lnr')
                lab = S.newlabel('L_ng')
                S.I(f's_cmp_lg_u32 s{sWAVE}, 0\ns_cbranch_scc1 {lab}')
                S.I('s_mov_b64 exec, 0xff')
                sv = list(S.vm)
                S.I(f'buffer_store_dword v136, v191, s[{RWS}:{RWS+3}], s5 offen sc1')
                S.vm = sv
                S.I('s_mov_b64 exec, -1')
                S.label(lab)
                S.I(f'buffer_store_dwordx4 v[128:131], v190, s[{RWS}:{RWS+3}], s{sA68} offen sc1', tag='hst')
                S.I(f'buffer_store_dwordx4 v[132:135], v190, s[{RWS}:{RWS+3}], s{sA69} offen sc1', tag='hst')
            npop = 3 if (len(S.bg) > 8 and st <= 5) else 2
            S.run_bg(1)
            for m in M[2:]: S.I(m)
            for r in R[4:]: S.I(r, tag=f'R{kk}')
            S.run_bg(npop - 1)
            if st == HFS: set_flag_w0(S, sA69)
        else:
            split = [R[0:3], R[3:5], R[5:7]]
            for j in range(3):
                if M: S.I(M[j])
                for r in split[j]: S.I(r, tag=f'R{kk}')
                if j == 1 and kk in extras: extras[kk]()
                if j != 1 or npop == 3: S.run_bg(1)
        if kk == HP: h_poll_issue()
        if kk == HC:
            stamp(S, opt, 'hp0')
            poll(S, vFL, vFLa, 'pollH')
            stamp(S, opt, 'hp1')
            S.push(h_ops(0) + b_ops(5) + h_ops(1))
    assert 24 <= HC < 28
    stamp(S, opt, 4)
    for p in range(5, 9): S.push(h_ops(p))
    S.bg_every = opt.get('bgA', 9)
    KB = 128; P = 136; E = 152; T = 184; PHI = 136
    cvt8(S, KB, AK)
    S.I(f'{MF} {v(P,16)}, {v(WA,4)}, {v(KB,4)}, 0')
    S.I(f'{MF} {v(P,16)}, {v(WB,4)}, {v(KB+4,4)}, {v(P,16)}')
    VBF = 32; VA = 40; VB = 48
    cvt8(S, VBF, AV)
    for i in range(8):
        S.I(f'v_cndmask_b32 {v(VA+i)}, 0, {v(VBF+i)}, s[{sMASK}:{sMASK+1}]')
        S.I(f'v_cndmask_b32 {v(VB+i)}, {v(VBF+i)}, 0, s[{sMASK}:{sMASK+1}]')
    softmax_pm(S, P, E, T, PHI)
    DA, DB = E, E + 16
    S.I(f'{MF} {v(DA,16)}, {v(PHI,4)}, {v(IP,4)}, 0')
    S.I(f'{MF} {v(DB,16)}, {v(PHI+8,4)}, {v(IP,4)}, 0')
    S.I(f'{MF} {v(DA,16)}, {v(PHI+4,4)}, {v(IM,4)}, {v(DA,16)}')
    S.I(f'{MF} {v(DB,16)}, {v(PHI+12,4)}, {v(IM,4)}, {v(DB,16)}')
    cvt8(S, QB, AQ)
    S.I(f's_cmp_eq_u32 s5, 0\ns_cselect_b64 s[{sEX}:{sEX+1}], -1, 0')
    PT = 64
    cvt8(S, PT, DA); cvt8(S, PT+8, DB)
    E1 = AK
    S.I(f'{MF} {v(E1,16)}, {v(PT,4)}, {v(VA,4)}, 0')
    S.I(f'{MF} {v(E1,16)}, {v(PT+4,4)}, {v(VA+4,4)}, {v(E1,16)}')
    S.I(f'{MF} {v(E1,16)}, {v(PT+8,4)}, {v(VB,4)}, {v(E1,16)}')
    S.I(f'{MF} {v(E1,16)}, {v(PT+12,4)}, {v(VB+4,4)}, {v(E1,16)}')
    zA, zB = T, T+1
    pk_add(S, T+2, DA, DA+2); pk_add(S, T+4, DB, DB+2)
    for i in range(4, 16, 2):
        pk_add(S, T+2, T+2, DA+i); pk_add(S, T+4, T+4, DB+i)
    S.I(f'v_add_f32 {v(zA)}, {v(T+2)}, {v(T+3)}\nv_add_f32 {v(zB)}, {v(T+4)}, {v(T+5)}')
    S.I(f'v_permlane32_swap_b32 {v(zA)}, {v(zB)}')
    S.I(f'v_add_f32 {v(zA)}, {v(zA)}, {v(zB)}')
    S.I(f'buffer_store_dword {v(zA)}, v232, s[{RWS}:{RWS+3}], s{sA68} offen sc1', tag='kvst')
    KP, SD = 128, 136
    for i in range(8):
        S.I(f'v_cndmask_b32 {v(SD+i)}, {v(E1+i)}, {v(E1+8+i)}, s[{sEX}:{sEX+1}]')
    KVX = dslot(5)
    S.I(f'ds_write_b128 v233, {v(SD,4)} offset:{KVX}', tag='kvx')
    S.I(f'ds_write_b128 v233, {v(SD+4,4)} offset:{KVX+1024}', tag='kvx')
    for i in range(8):
        S.I(f'v_cndmask_b32 {v(KP+i)}, {v(E1+8+i)}, {v(E1+i)}, s[{sEX}:{sEX+1}]')
    RW2, RWO = RX, RW
    srd(S, RW2, PW2, 1792*4096)
    srd(S, RWO, PWO, 512*1024)
    S.I(f's_lshl_b32 s3, s5, 11\ns_add_u32 s{sA68}, s{sA68}, s3')
    S.wait(lg='kvx')
    S.I('s_barrier')
    S.I(f'ds_read_b128 {v(SD,4)}, v234 offset:{KVX}', tag='kvr')
    S.I(f'ds_read_b128 {v(SD+4,4)}, v234 offset:{KVX+1024}', tag='kvr')
    S.I(f's_mul_i32 s{sB0}, s{sWAVE}, {28*16*4096}\ns_lshl_b32 s3, s{sST}, 7\ns_add_u32 s{sB0}, s{sB0}, s3')
    S.I(f's_lshl_b32 s{sB1}, s{sWAVE}, 17\ns_lshl_b32 s3, s{sDT}, 7\ns_add_u32 s{sB1}, s{sB1}, s3')
    S.I(f's_mov_b64 s[{sMX}:{sMX+1}], s[{sTC}:{sTC+1}]')
    tr_addrs(vTy, 9, 'lo')
    for q in range(4): S.I(f'v_add_u32 {v(vO+q)}, {q*(8*1024-1024)}, {v(vSW)}')
    S.wait(lg='kvr')
    for i in range(0, 8, 2): pk_add(S, KP+i, KP+i, SD+i)
    S.I(f'buffer_store_dwordx4 {v(KP,4)}, v5, s[{RWS}:{RWS+3}], s{sA68} offen sc1', tag='kvst')
    S.I(f'buffer_store_dwordx4 {v(KP+4,4)}, v5, s[{RWS}:{RWS+3}], s{sA68} offen offset:1024 sc1', tag='kvst')
    S.bg_every = 0
    stamp(S, opt, 5)

    def y_ops(d, tag): return dma_blk(tag, d, sTC, True, 32*4096, sB0, vY, RW2)
    def wo_ops(d, tag): return dma_blk(tag, d, sTO, False, 32*1024, sB1, vO, RWO)
    def tr_list(dst, base, ad, tstep):
        wdw = ad >> 16; so = ad & 0xffff
        return [f'ds_read_b64_tr_b16 {dst(4*fr+2*t)}, {v(base+2*wdw+fr)} offset:{so+t*tstep}' for fr in range(2) for t in range(2)]

    wp = opt.get('w0pos', 1)
    order = [('Y', k) for k in range(wp)] + [('W', 0)] + [('Y', k) for k in range(wp, 14)] + [('W', k) for k in range(1, 4)]
    class Plan: pass
    PL = Plan(); PL.nd = 0; PL.nt = 0; PL.slot = {}; PL.free = []; PL.pending = []; PL.log = []
    def next_D():
        if PL.nd >= len(order): return None
        kind, k = order[PL.nd]
        ok = lambda s_: not (kind == 'W' and s_ in INB)
        pre = None
        cand = [s_ for s_ in PL.free if ok(s_)]
        if cand:
            s_ = cand[0]; PL.free.remove(s_)
        else:
            cand = [e for e in PL.pending if ok(e[0])]
            if not cand: return None
            e = cand[0]; PL.pending.remove(e); s_, pre = e
        PL.nd += 1
        PL.slot[(kind, k)] = s_
        PL.log.append(('D', kind, k))
        ops = y_ops(s_, f'Y{k}') if kind == 'Y' else wo_ops(s_, f'W{k}')
        if pre:
            t0, f0 = ops[0]
            ops[0] = (t0, lambda f0=f0, tg=pre: (S.wait(lg=tg), f0()))
        return ops
    def push_D():
        ops = next_D()
        if ops: S.push(ops)
        return bool(ops)
    def push_T():
        k = PL.nt
        if k >= 14 or ('Y', k) not in PL.slot: return False
        PL.nt += 1
        PL.log.append(('T', 'Y', k))
        s_ = PL.slot[('Y', k)]
        PL.pending.append((s_, f'T{k}'))
        for h2 in range(2):
            def f(h2=h2):
                S.wait(vm=f'Y{k}')
                for r in tr_list(lambda o: a_(16*k+8*h2+o, 2), vTy, dslot(s_) + 2048*h2, 1024): S.I(r, tag=f'T{k}')
            S.push([(f'TT{k}', f)])
        return True

    S.I(f's_cmp_ge_u32 s{sIDX}, 28\ns_cbranch_scc1 L_reducer')
    vm_at_branch = list(S.vm)

    def o_poll_issue():
        S.I(f's_and_b32 s3, s{sWAVE}, 1\ns_lshl_b32 s3, s3, 9\ns_lshl_b32 s7, s{sQUAD}, 10\ns_add_u32 s3, s3, s7\ns_add_u32 s3, s3, {FR}')
        S.I(f'v_and_b32 v7, 3, v1\nv_lshl_add_u32 {v(vFLa)}, v7, 7, s3')
        S.I(f'buffer_load_dwordx2 {v(vFL,2)}, {v(vFLa)}, s[{RWS}:{RWS+3}], 0 offen sc1', tag='pollO')

    S.push(b_ops(9) + h_ops(9))
    LAST = (1, 2, 3, 0)
    G = opt.get('grp', 6)
    fbuf = [32, 40, 48, 56, 152, 160, 168, 176]
    NB = max(3, G)
    def fb_(i): return fbuf[i % NB]
    def b_R(i): return tr_list(lambda o: v(fb_(i)+o, 2), vBr, dslot(bds[i >> 1]) + 2048 * (i & 1), 512)
    def b_M(j, t):
        c = v(ACC+16*t, 16)
        return f'{MF} {c}, {v(fb_(j)+4*(t>>1),4)}, {a_(8*j+4*(t&1),4)}, {c if j else 0}'
    def kvf_loads():
        S.I(f's_and_b32 s3, s{sWAVE}, 1\ns_lshl_b32 s3, s3, 1\ns_lshl_b32 s7, s{sQUAD}, 2\ns_add_u32 s5, s3, s7\ns_lshl_b32 s3, s5, 11\ns_add_u32 s3, s3, {KVF}')
        for i in range(4):
            S.I(f'buffer_load_dwordx4 {v(32+4*i,4)}, v5, s[{RWS}:{RWS+3}], s3 offen offset:{i*1024} sc1', tag='kvf')
        S.I(f's_lshr_b32 s7, s{sWAVE}, 1')
    JN = 32 - G
    nread = 0
    freed = set()
    def release(j):
        if j & 1:
            p = j >> 1
            if p + 10 < 16: S.push(b_ops(p + 10) + h_ops(p + 10))
            elif bds[p] not in INB: PL.free.append(bds[p])
    for j in range(-2, JN):
        M = []
        if j >= 0:
            S.wait(vm=f'H{j>>1}', lg=f'R{j}')
            M = [b_M(j, t) for t in range(4)]
            release(j)
            if len(S.bg) < 2 and j >= 12 and PL.nd < opt.get('ndB', 2): push_D()
        want = j + 2
        if j >= JN - (G - 2): want = min(31, j + 2 + (j - (JN - (G - 2)) + 1))
        want = min(want, j - 1 + NB, 31)
        R = []
        while nread <= want:
            R += [(nread, r) for r in b_R(nread)]; nread += 1
        npop = 3 if ((j + 2) % opt.get('pop3', 4) == 0) else 2
        pos = {2: (0, 2), 3: (0, 1, 3), 4: (0, 1, 2, 3)}[npop]
        per = len(R) // 4
        for n in range(4):
            if M: S.I(M[n])
            for (ii, r) in R[n*per:(n+1)*per]:
                S.wait(vm=f'B{ii>>1}')
                S.I(r, tag=f'R{ii}')
            if n in pos: S.run_bg(1)
        stamp(S, opt, f'B{j}')
        if j == opt.get('kvflag', 2):
            S.wait(vm='kvst'); set_flag(S, sA69)
            stamp(S, opt, 'Bkv')
        if j == 14:
            S.wait(vm='g')
            for q in range(4):
                for h2 in range(2):
                    S.I(f'v_lshlrev_b32 {v(128+4*q+2*h2)}, 16, {v(B1R+2*q+h2)}\nv_and_b32 {v(128+4*q+2*h2+1)}, 0xffff0000, {v(B1R+2*q+h2)}')
        if j == 20:
            S.I('s_barrier')
        if j == 18: exch_addr(S)
        if j == 16:
            S.I(f's_mul_i32 s3, s{sDT}, {112*2048}\ns_lshl_b32 s7, s{sFT}, 13\ns_add_u32 s3, s3, s7\ns_lshr_b32 s7, s{sWAVE}, 1\ns_lshl_b32 s7, s7, 12\ns_add_u32 s3, s3, s7')
            S.I(f's_and_b32 s7, s{sWAVE}, 1\ns_lshl_b32 s7, s7, 10\ns_add_u32 s3, s3, s7\ns_add_u32 s{sA68}, s3, {UF}')
            S.I(f's_mul_i32 s3, s{sDT}, 28\ns_add_u32 s3, s3, s{sFT}\ns_lshl_b32 s3, s3, 7\ns_add_u32 s{sA69}, s3, {FU}')
    assert JN > 20
    while nread <= 31:
        for r in b_R(nread):
            S.wait(vm=f'B{nread>>1}'); S.I(r, tag=f'R{nread}')
        nread += 1
    W = []
    for n, t in enumerate(LAST):
        for j in range(JN, 32):
            if n == 0:
                S.wait(vm=f'H{j>>1}', lg=f'R{j}')
                release(j)
            S.I(b_M(j, t))
            if j >= JN + 2 and W: S.I(W.pop(0), tag='xw')
            elif (j - JN) % 2 == 0:
                if len(S.bg) < 1 and PL.nd < opt.get('ndB', 2): push_D()
                S.run_bg(1)
        if t: W += [xw(ACC, t, q) for q in range(4)]
    for w_ in W: S.I(w_, tag='xw')
    stamp(S, opt, 6)
    exchange_rd(S, ACC)
    stamp(S, opt, 'x2')
    def fill(n):
        for _ in range(n):
            push_D()
            if PL.nd - PL.nt >= opt.get('tlag', 5): push_T()
    fill(opt.get('ndE', 3))
    S.bg_every = opt.get('bgB', 9)
    Bf = 128
    for r in range(0, 16, 2): pk_add(S, ACC+r, ACC+r, Bf+r)
    exchange_sum(S, ACC)
    k0 = 2 * math.sqrt(2 / math.pi) * math.log2(math.e); k1 = k0 * 0.044715
    S.I(f's_mov_b32 s6, {f2u(-k1):#x}\nv_mov_b32 v2, {f2u(-k0):#x}')
    Tm = 144
    for r in range(0, 16, 2): S.I(f'v_pk_mul_f32 {v(Tm+r,2)}, {v(ACC+r,2)}, {v(ACC+r,2)}')
    for r in range(0, 16, 2): S.I(f'v_pk_fma_f32 {v(Tm+r,2)}, {v(Tm+r,2)}, s[6:7], v[2:3] op_sel_hi:[1,0,0]')
    for r in range(0, 16, 2): S.I(f'v_pk_mul_f32 {v(Tm+r,2)}, {v(Tm+r,2)}, {v(ACC+r,2)}')
    for r in range(16): S.I(f'v_exp_f32 {v(Tm+r)}, {v(Tm+r)}')
    for r in range(0, 16, 2): S.I(f'v_pk_add_f32 {v(Tm+r,2)}, {v(Tm+r,2)}, 1.0 op_sel_hi:[1,0]')
    for r in range(16): S.I(f'v_rcp_f32 {v(Tm+r)}, {v(Tm+r)}')
    for r in range(0, 16, 2): S.I(f'v_pk_mul_f32 {v(ACC+r,2)}, {v(ACC+r,2)}, {v(Tm+r,2)}')
    cvt8(S, Bf, ACC)
    S.I(f'buffer_store_dwordx4 {v(Bf,4)}, v5, s[{RWS}:{RWS+3}], s{sA68} offen sc1', tag='ust')
    S.I(f'buffer_store_dwordx4 {v(Bf+4,4)}, v5, s[{RWS}:{RWS+3}], s{sA68} offen offset:2048 sc1', tag='ust')
    stamp(S, opt, 'ust')
    S.bg_every = 0
    S.run_bg()
    lab = S.newlabel('L_noE')
    S.I(f's_lshl_b32 s3, s2, 2\ns_add_u32 s3, s3, s{sWAVE}\ns_cmp_lg_u32 s3, 0\ns_cbranch_scc1 {lab}')
    S.I('s_mov_b32 s3, 0')
    sv = list(S.vm); set_flag(S, 3); S.vm = sv
    S.label(lab)
    S.I('s_branch L_join')
    main_vm = list(S.vm); main_lg = list(S.lg)

    S.label('L_reducer')
    S.hist = []; S.vm = vm_at_branch; S.lg = []
    assert not S.bg
    sHD = sIX
    S.I(f's_lshl_b32 s{sHD}, s{sXCD}, 2\ns_add_u32 s{sHD}, s{sHD}, s{sIDX}\ns_sub_u32 s{sHD}, s{sHD}, 28')
    S.I(f's_lshr_b32 s3, s{sHD}, 1\ns_lshl_b32 s4, s3, 13\ns_lshl_b32 s5, s{sWAVE}, 11\ns_add_u32 s4, s4, s5\ns_add_u32 s4, s4, {FKV}')
    S.I(f'v_and_b32 v6, 15, v1\nv_lshl_add_u32 {v(vFLa)}, v6, 7, s4')
    S.I(f's_and_b32 s5, s{sHD}, 1')
    S.I('v_and_b32 v6, 15, v1\nv_lshl_add_u32 v6, v9, 5, v6\nv_lshlrev_b32 v6, 4, v6\ns_lshl_b32 s4, s5, 8\nv_add_u32 v6, s4, v6')
    S.I('v_bfe_u32 v7, v1, 3, 1\nv_lshlrev_b32 v7, 8, v7\nv_lshl_add_u32 v7, v9, 4, v7\ns_lshl_b32 s4, s5, 7\ns_add_u32 s4, s4, 4096\nv_add_u32 v7, s4, v7')
    for q in range(4):
        S.I(f'v_add_u32 v2, {q*1024}, v6\nv_add_u32 v3, {q*32}, v7\nv_cndmask_b32 {v(60+q)}, v3, v2, s[{sMASK}:{sMASK+1}]')
    S.I(f's_lshl_b32 s3, s3, 5\ns_lshl_b32 s4, s{sWAVE}, 3\ns_add_u32 s3, s3, s4\ns_mul_i32 s3, s3, {KVB}\ns_add_u32 s{sA68}, s3, {KVP}')
    exch_addr(S)
    S.wait(vm='all')
    set_flag(S, sA69)
    for e in PL.log:
        s_ = PL.slot[(e[1], e[2])]
        assert s_ not in INB
        if e[0] == 'D':
            S.wait(lg='all')
            run(y_ops(s_, f'rp{e[2]}') if e[1] == 'Y' else wo_ops(s_, 'rp'))
        else:
            S.wait(vm=f'rp{e[2]}')
            for h2 in range(2):
                for r in tr_list(lambda o: a_(16*e[2]+8*h2+o, 2), vTy, dslot(s_) + 2048*h2, 1024): S.I(r, tag='rt')
    RB = 64
    S.I(f's_mov_b32 s5, {SPIN_MAX}')
    S.I('s_mov_b64 vcc, -1')
    for sb in range(8):
        lp = S.newlabel('L_rp'); ok = S.newlabel('L_rok')
        S.label(lp)
        S.I(f's_and_b32 s3, vcc_lo, {3 << (2*sb)}')
        S.I(f's_cbranch_scc0 {ok}')
        S.raw(f'    buffer_load_dwordx2 {v(vFL,2)}, {v(vFLa)}, s[{RWS}:{RWS+3}], 0 offen sc1')
        S.raw('    s_waitcnt vmcnt(0)')
        S.I(f'v_cmp_ne_u64 vcc, s[{TAG}:{TAG+1}], {v(vFL,2)}')
        S.I('s_sub_u32 s5, s5, 1\ns_cmp_gt_i32 s5, 0\ns_nop 2')
        S.I(f's_cbranch_scc1 {lp}')
        S.label(ok)
        for q in range(4):
            S.I(f'buffer_load_dwordx4 {v(RB+16*sb+4*q,4)}, {v(60+q)}, s[{RWS}:{RWS+3}], s{sA68} offen sc1', tag=f'P{sb}')
        S.I(f's_add_u32 s{sA68}, s{sA68}, {KVB}')
    stamp(S, opt, 6)
    for sb in range(1, 8):
        S.wait(vm=f'P{sb}')
        for r in range(0, 16, 2): pk_add(S, RB+r, RB+r, RB+16*sb+r)
    assert dslot(2) == 0
    for q in range(4): S.I(f'ds_write_b128 {v(XA[0])}, {v(RB+4*q,4)} offset:{q*1024}', tag='rw')
    S.wait(lg='rw')
    S.I('s_barrier')
    S.I(f's_lshl_b32 s3, s{sWAVE}, 11\ns_and_b32 s3, s3, 2048\nv_add_u32 v6, s3, v5')
    for src in range(4):
        for q2 in range(2):
            S.I(f'ds_read_b128 {v(RB+8*src+4*q2,4)}, v6 offset:{src*8192+q2*1024}', tag='rr')
    S.wait(lg='rr')
    S.I('s_barrier')
    for src in range(1, 4):
        for r in range(8): S.I(f'v_add_f32 {v(RB+r)}, {v(RB+r)}, {v(RB+8*src+r)}')
    for r in range(8):
        S.I(f'v_add_f32_dpp {v(RB+r)}, {v(RB+r)}, {v(RB+r)} row_ror:8 row_mask:0xa bank_mask:0xf')
    cvt8(S, RB+8, RB, 4)
    S.I(f's_lshl_b32 s3, s{sHD}, 1\ns_and_b32 s7, s{sWAVE}, 1\ns_add_u32 s3, s3, s7\ns_lshr_b32 s7, s{sWAVE}, 1')
    S.I(f's_lshl_b32 s4, s3, 10\ns_lshl_b32 s5, s7, 16\ns_add_u32 s4, s4, s5\ns_add_u32 s4, s4, {KVF}')
    S.I(f's_lshl_b32 s3, s3, 7\ns_lshl_b32 s5, s7, 13\ns_add_u32 s3, s3, s5\ns_add_u32 s{sA69}, s3, {FR}')
    S.I(f'buffer_store_dwordx4 {v(RB+8,4)}, v5, s[{RWS}:{RWS+3}], s4 offen sc1', tag='kvf')
    S.raw('    s_waitcnt vmcnt(0) lgkmcnt(0)')
    S.vm = []
    set_flag(S, sA69)

    S.label('L_join')
    S.hist = []; S.vm = main_vm; S.lg = main_lg
    PL.free += list(INB)
    NPRE = opt.get('npre', 0)
    P = 64; E = 80; T = 112; PHIQ = 128
    S.I(f'{MF} {v(P,16)}, {v(WA,4)}, {v(QB,4)}, 0')
    S.I(f'{MF} {v(P,16)}, {v(WB,4)}, {v(QB+4,4)}, {v(P,16)}')
    fill(opt.get('ndQ', 6))
    tr_addrs(vTa, 9, 'hi')
    S.bg_every = opt.get('bgQ0', 12)
    def hook():
        S.bg_every = 0
        stamp(S, opt, 'ua')
        S.wait(vm='ust')
        S.I('s_barrier')
        set_flag_w0(S, sA69)
        stamp(S, opt, 7)
        if opt.get('opearly', 1): o_poll_issue()
        S.bg_every = opt.get('bgQ', 4)
    softmax_pm(S, P, E, T, PHIQ, hook)
    S.bg_every = 0
    stamp(S, opt, 'qs')
    if not opt.get('opearly', 1):
        S.run_bg()
        o_poll_issue()
        fill(opt.get('ndP', 2)); S.run_bg()
    poll(S, vFL, vFLa, 'pollO')
    stamp(S, opt, 'po')
    kvf_loads()
    S.I(f's_lshl_b32 s3, s{sSBLK}, 16\ns_lshl_b32 s5, s5, 11\ns_add_u32 s3, s3, s5\ns_lshl_b32 s7, s7, 10\ns_add_u32 s3, s3, s7\ns_add_u32 s{sA68}, s3, {OF}')
    S.I(f's_lshl_b32 s3, s{sSBLK}, 3\ns_add_u32 s3, s3, s{sQUAD}\ns_lshl_b32 s3, s3, 7\ns_add_u32 s{sA69}, s3, {FO}')
    S.I(f's_mul_i32 s3, s{sDT}, {28*128}\ns_mul_i32 s7, s{sWAVE}, {7*128}\ns_add_u32 s3, s3, s7\ns_add_u32 s3, s3, {FU}')
    S.I(f'v_min_u32 v6, 6, v1\nv_lshl_add_u32 {v(vFLa)}, v6, 7, s3')
    sBU, sBO = sB2, sB3
    S.I(f's_mul_i32 s{sBU}, s{sWAVE}, {28*2048}\ns_mul_i32 s3, s{sDT}, {112*2048}\ns_add_u32 s{sBU}, s{sBU}, s3\ns_add_u32 s{sBU}, s{sBU}, {UF}')
    S.I(f's_lshl_b32 s{sBO}, s{sWAVE}, 14\ns_lshl_b32 s3, s{sST}, 16\ns_add_u32 s{sBO}, s{sBO}, s3\ns_add_u32 s{sBO}, s{sBO}, {OF}')
    S.I(f's_lshr_b32 s3, s{sWAVE}, 1\ns_lshl_b32 s3, s3, 10')
    S.I(f'v_add_u32 {v(vD0)}, s3, v5\nv_xor_b32 {v(vD1)}, 0x400, {v(vD0)}')
    ROUT = RW1
    srd(S, ROUT, POUT, 2048*1024)
    S.run_bg()
    S.I(f'buffer_load_dwordx2 {v(vFL,2)}, {v(vFLa)}, s[{RWS}:{RWS+3}], 0 offen sc1', tag='pollU')
    fill(opt.get('ndK', 1)); S.run_bg()
    S.wait(vm='kvf')
    stamp(S, opt, 'kvf')
    for hb in range(2):
        O = 64 + 16*hb
        S.I(f'{MF} {v(O,16)}, {v(32+8*hb,4)}, {v(PHIQ+8*hb,4)}, 0')
        S.I(f'{MF} {v(O,16)}, {v(36+8*hb,4)}, {v(PHIQ+8*hb+4,4)}, {v(O,16)}')
    push_T(); S.run_bg()
    for hb in range(2):
        O = 64 + 16*hb
        S.I(f'v_add_f32 {v(O+8)}, {f2u(1e-6):#x}, {v(O+8)}\nv_rcp_f32 {v(O+8)}, {v(O+8)}\nv_mul_f32 {v(O+8)}, {v(GO)}, {v(O+8)}')
        for r in range(0, 8, 2): pk_mul_bc(S, O+r, O+r, O+8)
        cvt8(S, 48+4*hb, O, 4)
        S.I(f'buffer_store_dwordx4 {v(48+4*hb,4)}, v5, s[{RWS}:{RWS+3}], s{sA68} offen offset:{2048*hb} sc1', tag='ost')
    stamp(S, opt, 'ost')
    while PL.nd < NPRE:
        a = push_D(); b = push_T(); S.run_bg()
        assert a or b
    stamp(S, opt, 'dd')
    poll(S, vFL, vFLa, 'pollU')
    stamp(S, opt, 8)

    DR = 128; ND = 5
    def u_ops(p):
        r = DR + 16 * (p % ND)
        if p < 14: return dir_blk(f'U{p}', lambda o: v(r+o, 4), sMX, True, sBU, vD0, vD1, RWS)
        return dir_blk(f'U{p}', lambda o: v(r+o, 4), sTO2, False, sBO, vH0, vH1, RWS)
    PD = opt.get('pdC', 3)
    for p in range(PD):
        run(u_ops(p))
        if PL.nt < 3 and push_T(): S.run_bg()
    S.I(f's_lshl_b32 s3, s{sST}, 10\ns_lshl_b32 s7, s{sWAVE}, 8\ns_add_u32 s3, s3, s7\ns_add_u32 s3, s3, {FO}')
    S.I(f'v_and_b32 v6, 1, v1\nv_lshl_add_u32 {v(vFLa)}, v6, 7, s3')
    S.wait(vm='ost')
    S.I('s_barrier')
    set_flag_w0(S, sA69)
    barred = False
    for i in range(36):
        p = i >> 1
        r = DR + 16 * (p % ND) + 8 * (i & 1)
        if i == 2 * (14 - PD) - 5:
            S.I(f'buffer_load_dwordx2 {v(vFL,2)}, {v(vFLa)}, s[{RWS}:{RWS+3}], 0 offen sc1', tag='pollO2')
        if i < 28:
            S.flush_tag(f'TT{p}')
            assert PL.nt > p
        S.wait(vm=f'U{p}', lg=(f'R{i}' if i >= 28 else f'T{p}'))
        if i & 1 == 0:
            if p + PD == 14:
                poll(S, vFL, vFLa, 'pollO2')
            if PL.nd < len(order): push_D()
            if p + PD < 18: S.push(u_ops(p + PD))
            push_T()
        R = []
        if i >= 26 and i + 2 < 36:
            j = i + 2 - 28
            S.wait(vm=f'W{j>>1}')
            b = AF + 8 * (j % 3)
            R = tr_list(lambda o: v(b+o, 2), vTa, dslot(PL.slot[('W', j >> 1)]) + 2048 * (j & 1), 1024)
        tot = len(S.bg) if i & 1 else (len(S.bg) + 1) // 2
        for n, t in enumerate(LAST if i == 35 else range(4)):
            i1, i0 = t >> 1, t & 1
            c = v(ACC+16*t, 16)
            if i < 28:
                S.I(f'{MF} {c}, {v(r+4*i1,4)}, {a_(8*i+4*i0,4)}, {c if i else 0}')
            else:
                b = AF + 8 * ((i - 28) % 3)
                S.I(f'{MF} {c}, {v(b+4*i1,4)}, {v(r+4*i0,4)}, {c}')
            if R: S.I(R[n], tag=f'R{i+2}')
            k_ = (tot * (n + 1) + 3) // 4 - (tot * n + 3) // 4
            if k_: S.run_bg(k_)
        stamp(S, opt, f'C{i}')
        if i == 27:
            assert PL.nt == 14 and not any(o[0].startswith('TT') for o in S.bg)
            S.I('s_barrier')
        if i == 20:
            S.I(f'v_sub_f32 v14, 1.0, {v(GC)}\nv_sub_f32 v15, 1.0, {v(GC+1)}\nv_lshlrev_b32 v16, 16, {v(B2R)}\nv_mul_f32 v16, v14, v16')
            S.I(f's_lshl_b32 s3, s{sST}, 16\ns_and_b32 s7, s{sWAVE}, 1\ns_lshl_b32 s7, s7, 15\ns_add_u32 s3, s3, s7\ns_lshl_b32 s7, s{sDT}, 7\ns_add_u32 s3, s3, s7\ns_lshr_b32 s7, s{sWAVE}, 1\ns_lshl_b32 s7, s7, 6\ns_add_u32 s{sA68}, s3, s7')
            S.I('v_and_b32 v6, 31, v1\nv_lshlrev_b32 v6, 10, v6\nv_lshl_add_u32 v17, v9, 4, v6')
        if i == 27:
            for t in range(4):
                for rr in range(0, 16, 2):
                    if t == 0: S.I(f'v_pk_fma_f32 {v(ACC+rr,2)}, {v(ACC+rr,2)}, v[14:15], v[16:17] op_sel_hi:[1,0,0]')
                    else: pk_mul_bc(S, ACC+16*t+rr, ACC+16*t+rr, 14+(t&1))
    stamp(S, opt, 9)
    exchange(S, ACC)
    exchange_sum(S, ACC)
    cvt8(S, 32, ACC)
    osc = {0: '', 1: ' sc1', 2: ' nt'}[opt.get('outpol', 0)]
    for qp in range(2):
        b = 32 + 4*qp
        S.I(f'v_permlane32_swap_b32 {v(b)}, {v(b+2)}')
        S.I(f'v_permlane32_swap_b32 {v(b+1)}, {v(b+3)}')
        S.I(f'buffer_store_dwordx4 {v(b,4)}, v17, s[{ROUT}:{ROUT+3}], s{sA68} offen offset:{32*qp}{osc}', tag='out')
    stamp_out(S, opt)
    S.label('L_end')
    S.I('s_endpgm')

def build(opt):
    hdr = open(f'cdna_kernels/{NAME}.s.ref').read().split('\n')
    top = [l for l in hdr if l.startswith(';') and '@launch' not in l and 'Override launch' not in l and 'grid=ceil' not in l]
    out = '\n'.join(top) + '\n'
    out += f'; @launch grid=(256,1,1) block=(256,1,1) lds={LDS_TOTAL}\n'
    out += '.amdgcn_target "amdgcn-amd-amdhsa--gfx950"\n.text\n'
    name = NAME + '_kernel'
    S = Stream()
    gen(S, opt)
    out += f'.globl {name}\n.p2align 8\n.type {name},@function\n{name}:\n' + S.text()
    print('lines', len(S.out), 'nops', S.nnop, file=sys.stderr)
    out += '.p2align 8\nL_table:\n'
    T = tables(opt)
    for i in range(0, len(T), 8): out += '.long ' + ', '.join(f'{x:#x}' for x in T[i:i+8]) + '\n'
    out += '.fill 1024, 4, 0xbf800000\n'
    out += f'''.section .rodata,"a"
.p2align 6
.amdhsa_kernel {name}
  .amdhsa_next_free_vgpr 512
  .amdhsa_next_free_sgpr 102
  .amdhsa_accum_offset 256
  .amdhsa_group_segment_fixed_size 0
  .amdhsa_kernarg_size 104
  .amdhsa_user_sgpr_count 2
  .amdhsa_user_sgpr_kernarg_segment_ptr 1
  .amdhsa_system_sgpr_workgroup_id_x 1
.end_amdhsa_kernel
'''
    return out

if __name__ == '__main__':
    opt = {}
    for a in sys.argv[2:]:
        k, x = a.split('=')
        opt[k] = int(x)
    open(sys.argv[1], 'w').write(build(opt))
```

```python
import re

REG_RE = re.compile(r'^(-|\|)?(abs\()?([vas])(\d+)\)?\|?$')
RNG_RE = re.compile(r'^(-|\|)?([vas])\[(\d+):(\d+)\]\|?$')

def regs_of(tok):
    tok = tok.strip()
    m = REG_RE.match(tok)
    if m:
        return [(m.group(3), int(m.group(4)))]
    m = RNG_RE.match(tok)
    if m:
        return [(m.group(2), i) for i in range(int(m.group(3)), int(m.group(4)) + 1)]
    if tok == 'vcc':
        return [('vcc', 0)]
    if tok == 'exec':
        return [('exec', 0)]
    if tok == 'm0':
        return [('m0', 0)]
    return []

import os
TRANS_WS = int(os.environ.get("TRANS_WS", "1"))
PERM_WS = int(os.environ.get("PERM_WS", "2"))
PK_WS = int(os.environ.get("PK_WS", "2"))
TRANS = ('v_exp_f32', 'v_log_f32', 'v_rcp_f32', 'v_rsq_f32', 'v_sqrt_f32', 'v_sin_f32', 'v_cos_f32')

class Ins:
    __slots__ = ('text', 'op', 'cls', 'dst', 'src', 'srcC', 'srcAB', 'passes', 'trans', 'dpp', 'perm', 'wide_store', 'ws', 'ldsdma', 'lanerd')

PKMOD = re.compile(r'\s(op_sel|op_sel_hi|neg_lo|neg_hi):\[[^\]]*\]')
def parse(text):
    ins = Ins()
    ins.text = text
    t = PKMOD.sub('', text.split(';')[0].strip())
    parts = t.split(None, 1)
    op = parts[0]
    rest = parts[1] if len(parts) > 1 else ''
    ops = [o.strip() for o in rest.split(',')] if rest else []
    mods = ''
    if ops:
        last = ops[-1].split(None, 1)
        ops[-1] = last[0]
        mods = last[1] if len(last) > 1 else ''
    ins.op = op
    ins.dst = []; ins.src = []; ins.srcC = []; ins.srcAB = []
    ins.passes = 0; ins.trans = False; ins.dpp = False; ins.perm = False; ins.wide_store = False
    ins.ldsdma = False; ins.lanerd = False
    ins.ws = 1
    R = [regs_of(o) for o in ops]
    flat = lambda L: [r for x in L for r in x]
    if op.startswith('v_mfma'):
        ins.cls = 'mfma'
        ins.dst = R[0]; ins.srcAB = R[1] + R[2]; ins.srcC = R[3]; ins.src = ins.srcAB + ins.srcC
        ins.passes = 8 if '32x32x16' in op else 4
        assert '32x32x16' in op or '16x16x32' in op or '16x16x16' in op, op
    elif op.startswith('v_'):
        ins.cls = 'valu'
        base = op.replace('_e32', '').replace('_e64', '').replace('_dpp', '')
        ins.trans = base in TRANS
        ins.dpp = ('row_' in mods) or ('quad_perm' in mods) or op.endswith('_dpp')
        if base.startswith('v_permlane'):
            ins.perm = True
            ins.dst = R[0] + R[1]; ins.src = R[0] + R[1]
        elif base.startswith('v_cmp'):
            ins.dst = R[0]; ins.src = flat(R[1:])
        elif base in ('v_readfirstlane_b32', 'v_readlane_b32'):
            ins.lanerd = True
            ins.dst = R[0]; ins.src = flat(R[1:])
        elif base in ('v_fmac_f32', 'v_pk_fmac_f32'):
            ins.dst = R[0]; ins.src = flat(R)
        elif base == 'v_cndmask_b32':
            ins.dst = R[0]; ins.src = flat(R[1:])
            if len(R) == 3: ins.src += [('vcc', 0)]
        elif base == 'v_writelane_b32':
            ins.dst = R[0]; ins.src = flat(R)
        elif base == 'v_nop':
            pass
        else:
            assert '_co_' not in base, op
            ins.dst = R[0]; ins.src = flat(R[1:])
            if ins.dpp: ins.src += R[0]
    elif op.startswith('buffer_') or op.startswith('global_'):
        ins.cls = 'vmem'
        words = mods.split()
        if 'lds' in words:
            ins.ldsdma = True
            ins.src = flat(R) + [('m0', 0)]
        elif '_load' in op:
            ins.dst = R[0]; ins.src = flat(R[1:])
            if 'd16' in op: ins.src += R[0]
        else:
            ins.src = flat(R)
            if op.endswith('x4') or op.endswith('x3'):
                ins.wide_store = True
                ins.srcAB = R[0] if op.startswith('buffer_') else R[1]
    elif op.startswith('ds_'):
        ins.cls = 'ds'
        if 'read' in op:
            ins.dst = R[0]; ins.src = flat(R[1:])
        else:
            ins.src = flat(R)
    elif op.startswith('s_load') or op.startswith('s_memtime') or op.startswith('s_memrealtime'):
        ins.cls = 'smem'
        ins.dst = R[0]; ins.src = flat(R[1:])
    elif op == 's_nop':
        ins.cls = 'nop'; ins.ws = int(ops[0], 0) + 1
    elif op.startswith('s_'):
        ins.cls = 'salu'
        if not (op.startswith('s_cmp') or op.startswith('s_cbranch') or op in ('s_branch', 's_barrier', 's_waitcnt', 's_endpgm', 's_sleep', 's_setprio', 's_bitcmp1_b32', 's_bitcmp0_b32')):
            ins.dst = R[0]; ins.src = flat(R[1:])
            if 'saveexec' in op: ins.dst = ins.dst + [('exec', 0)]
        else:
            ins.src = flat(R)
    else:
        raise ValueError(text)
    return ins

def need(p, c):
    n = 0
    pd = set(p.dst)
    if p.cls == 'valu':
        vd = {r for r in pd if r[0] in 'va'}
        sd = {r for r in pd if r[0] in ('s', 'vcc')}
        if c.cls == 'mfma' and vd & set(c.src): n = max(n, 2)
        if c.cls == 'mfma' and p.op.startswith('v_pk_'): n = max(n, PK_WS)
        if c.cls == 'valu':
            if p.trans and not c.trans and vd & set(c.src): n = max(n, TRANS_WS)
            if (c.perm or c.dpp) and vd & set(c.src): n = max(n, PERM_WS)
            if c.lanerd and vd & set(c.src): n = max(n, 1)
            if sd & set(c.src): n = max(n, 4 if c.lanerd else 2)
        if c.cls == 'vmem' and sd & set(c.src): n = max(n, 5)
        if c.cls == 'salu' and sd & set(c.src): n = max(n, 1)
    if p.cls == 'mfma':
        big = {8: 12, 4: 8}[p.passes]
        ovl = {8: 10, 4: 6}[p.passes]
        war = {8: 7, 4: 3}[p.passes]
        if c.cls == 'mfma':
            if pd & set(c.srcAB): n = max(n, big)
            if pd & set(c.srcC):
                if not (c.srcC == p.dst and c.passes == p.passes): n = max(n, ovl)
            elif pd & set(c.dst): n = max(n, big)
        elif c.cls in ('valu', 'vmem', 'ds'):
            if pd & (set(c.src) | set(c.dst)): n = max(n, big)
            if c.cls == 'valu' and set(p.srcC) & set(c.dst): n = max(n, war)
    if p.cls == 'salu':
        if ('m0', 0) in pd and c.ldsdma: n = max(n, 1)
        if ('exec', 0) in pd and c.cls == 'mfma': n = max(n, 4)
    if p.cls == 'vmem' and p.wide_store:
        if set(p.srcAB) & set(c.dst): n = max(n, 2 if c.cls == 'valu' else 1)
    return n

class Stream:
    def __init__(self):
        self.out = []
        self.hist = []
        self.vm = []
        self.lg = []
        self.nnop = 0
        self.bg = []
        self.bg_every = 0
        self.bg_cnt = 0
        self.in_bg = False
        self.lab = 0
        self.alts = []
        self.fwd = {}

    def raw(self, text):
        self.out.append(text)

    def comment(self, t):
        self.out.append('    ; ' + t)

    def label(self, name):
        self.out.append(name + ':')
        for h in self.fwd.pop(name, []): self.alts.append(h)

    def newlabel(self, p='L'):
        self.lab += 1
        return f'{p}_{self.lab}'

    def _push(self, ins):
        self.out.append('    ' + ins.text)
        self.hist.append(ins)
        if len(self.hist) > 24:
            self.hist.pop(0)
        for h in self.alts:
            h.append(ins)
            h.pop(0)
        self.alts = [h for h in self.alts if h != self.hist]
        if ins.op.startswith('s_cbranch') or ins.op == 's_branch':
            tgt = ins.text.split()[-1]
            for h in [self.hist] + self.alts:
                self.fwd.setdefault(tgt, []).append(list(h))

    def I(self, text, tag=None):
        for t in text.split('\n'):
            t = t.strip()
            if not t: continue
            ins = parse(t)
            req = 0
            for hh in [self.hist] + self.alts:
                dist = 0
                for p in reversed(hh):
                    n = need(p, ins)
                    if n - dist > req: req = n - dist
                    dist += p.ws
                    if dist >= 20: break
            while req > 0:
                k = min(req, 16)
                self._push(parse(f's_nop {k-1}'))
                self.nnop += 1
                req -= k
            self._push(ins)
            if ins.cls == 'vmem': self.vm.append(tag)
            if ins.cls == 'ds': self.lg.append(tag)
            if ins.cls in ('valu', 'mfma') and not self.in_bg and self.bg and self.bg_every:
                self.bg_cnt += (8 if ins.cls == 'mfma' and ins.passes == 8 else 2 if ins.trans else 1)
                if self.bg_cnt >= self.bg_every:
                    self.bg_cnt = 0
                    self.run_bg(1)

    def run_bg(self, n=None):
        prev = self.in_bg
        self.in_bg = True
        while self.bg and (n is None or n > 0):
            f = self.bg.pop(0)
            if isinstance(f, tuple): f = f[1]
            f()
            if n is not None: n -= 1
        self.in_bg = prev

    def push(self, ops):
        self.bg.extend(ops)

    def flush_tag(self, tags):
        if not isinstance(tags, (list, tuple, set)): tags = [tags]
        last = -1
        for i, f in enumerate(self.bg):
            if isinstance(f, tuple) and (f[0] in tags or 'all' in tags): last = i
        if last >= 0: self.run_bg(last + 1)

    def _cnt(self, lst, tags):
        if not isinstance(tags, (list, tuple, set)): tags = [tags]
        idx = -1
        for i, t in enumerate(lst):
            if t in tags: idx = i
        return idx

    def wait(self, vm=None, lg=None):
        parts = []
        if vm is not None and not self.in_bg: self.flush_tag(vm)
        if vm is not None:
            idx = len(self.vm) - 1 if vm == 'all' else self._cnt(self.vm, vm)
            if idx >= 0:
                n = len(self.vm) - 1 - idx
                parts.append(f'vmcnt({min(n, 63)})')
                if n <= 63: self.vm = self.vm[idx + 1:]
                else: self.vm = self.vm[len(self.vm) - 63:]
        if lg is not None:
            idx = len(self.lg) - 1 if lg == 'all' else self._cnt(self.lg, lg)
            if idx >= 0:
                n = len(self.lg) - 1 - idx
                parts.append(f'lgkmcnt({min(n, 15)})')
                if n <= 15: self.lg = self.lg[idx + 1:]
                else: self.lg = self.lg[len(self.lg) - 15:]
        if parts:
            self.I('s_waitcnt ' + ' '.join(parts))

    def text(self):
        return '\n'.join(self.out) + '\n'
```

```python
import sys, math, struct
from asmlib import Stream

NAME = 'gated_mix__linear_kernel_hedgehog__mixer_token_mlp__prompt'
MB = 1 << 20
WS_E = 0
KVF = 0x10000
FR = 0x30000
FH = 0x40000
FKV = 0x60000
FU = 0x80000
FO = 0xA0000
G_ = 0xC0000
HF = 1 * MB
KVP = 3 * MB + 4096
OF = 6 * MB + 4096
UF = 8 * MB + 8192
STAMP_BASE = 12 * MB
WS_SIZE = 16 * MB
KVB = 4608
LOG2E = 0x3fb8aa3b
SPIN_MAX = 50000
LDS_TOTAL = 163840

def f2u(x): return struct.unpack('<I', struct.pack('<f', x))[0]
def v(a, n=1): return f'v{a}' if n == 1 else f'v[{a}:{a+n-1}]'
def a_(a, n=1): return f'a{a}' if n == 1 else f'a[{a}:{a+n-1}]'
MF = 'v_mfma_f32_32x32x16_bf16'

PX, PWQKV, PWPHI, PWO, PW1, PB1, PW2, PB2, PGW, POUT, PWS = 36, 38, 40, 42, 46, 48, 50, 52, 54, 56, 60
RX, RW, RWS, RW1 = 8, 12, 16, 20
RH = 64
sWAVE, sSBLK, sQUAD, sDT, sFT, sIDX, sXCD, sST = 24, 25, 26, 27, 28, 29, 30, 31
sB0, sB1, sIX, sTO2 = 32, 33, 34, 35
TAG = 62
sTB, sTC, sTA, sTO = 68, 70, 72, 73
sT2 = 44
sB2, sB3 = 58, 59
sC, sMB, sA68, sA69, sMX, sMW = 74, 75, 76, 77, 78, 79
sMASK, sEX = 36, 38
AREA = [2, 0, 1, 3, 4]
def slot_addr(t): return AREA[t >> 2] * 32768 + (t & 3) * 2048
def dslot(d): return slot_addr(2 * d)

def seq_of(chunks, r, c, c0=None):
    seq = [chunks[0][r % len(chunks[0])]]
    for g, ch in enumerate(chunks):
        n = len(ch)
        H = [ch[(r + 1 + k) % n] for k in range(n - 1)]
        if g + 1 < len(chunks):
            nx = chunks[g + 1]
            H.insert(min(c if (g or c0 is None) else c0, len(H)), nx[r % len(nx)])
        seq += H
    return seq
def pack(seq): return sum(b << (4 * i) for i, b in enumerate(seq))
def tables(opt):
    out = []
    for wg in range(256):
        xcd, idx = wg & 7, wg >> 3
        par = xcd & 1 if opt.get('xoff', 1) else 0
        c = idx & 3 if opt.get('desync', 1) else 3
        sl, ql = idx & 7, idx >> 3
        chA = [[0, 1, 2, 3], [4, 5, 6, 7]]
        if opt.get('xoff', 1) and ((xcd ^ (xcd >> 1)) & 1): chA = chA[::-1]
        if opt.get('rotA', 4) == 8: A = [(2 * ql + sl + k) & 7 for k in range(8)]
        else: A = seq_of(chA, (sl + ql) & 3, max(c, opt.get('cAmin', 1)))
        i, j = idx & 3, idx >> 2
        r = (i + j) & 3
        chB = [list(range(4 * g, 4 * g + 4)) for g in range(4)]
        if par: chB = [chB[1], chB[0], chB[3], chB[2]]
        B = seq_of(chB, r, c)
        chC = [[0, 1, 2, 3], [4, 5, 6, 7], [8, 9, 10, 11], [12, 13]]
        if par: chC = [[4, 5, 6, 7], [0, 1, 2, 3], [10, 11, 12, 13], [8, 9]]
        C = seq_of(chC, r, c, 3 if opt.get('c0C', 0) else None)
        cm = opt.get('cmode', 0)
        if cm:
            own = [ch[r % len(ch)] for ch in chC]
            rest = [[ch[(r + 1 + k) % len(ch)] for k in range(len(ch) - 1)] for ch in chC]
            if cm == 1: C = own + rest[0] + rest[1] + rest[2] + rest[3]
            if cm == 2:
                H = rest[0] + rest[1]
                k = min(2 * c, 6)
                C = own[:2] + H[:k] + own[2:] + H[k:] + rest[2] + rest[3]
        O = [(r + k) & 3 for k in range(4)]
        assert sorted(A) == list(range(8)) and sorted(B) == list(range(16)) and sorted(C) == list(range(14))
        fk = opt.get('fake', 0)
        if fk & 1: A = [A[0]] * 8
        if fk & 2: B = [B[0]] * 16
        if fk & 4: C = [C[0]] * 14; O = [O[0]] * 4
        tb, tc = pack(B), pack(C)
        out += [tb & 0xffffffff, tb >> 32, tc & 0xffffffff, tc >> 32, pack(A), pack(O), 0, 0]
    return out

def srd(S, d, lo, nbytes):
    S.I(f's_mov_b32 s{d}, s{lo}\ns_mov_b32 s{d+1}, s{lo+1}\ns_mov_b32 s{d+2}, {nbytes}\ns_mov_b32 s{d+3}, 0x00020000')

def poll(S, vdata, vaddr, first_tag=None):
    ok = S.newlabel('L_ok'); lp = S.newlabel('L_spin')
    S.wait(vm=first_tag)
    S.I(f'v_cmp_ne_u64 vcc, s[{TAG}:{TAG+1}], {v(vdata,2)}')
    S.I('s_nop 4')
    S.I(f's_cbranch_vccz {ok}')
    S.I(f's_mov_b32 s3, {SPIN_MAX}')
    S.label(lp)
    S.I('s_sleep 2')
    S.raw(f'    buffer_load_dwordx2 {v(vdata,2)}, {v(vaddr)}, s[{RWS}:{RWS+3}], 0 offen sc1')
    S.raw('    s_waitcnt vmcnt(0)')
    S.I(f'v_cmp_ne_u64 vcc, s[{TAG}:{TAG+1}], {v(vdata,2)}')
    S.I('s_sub_u32 s3, s3, 1')
    S.I('s_cmp_eq_u32 s3, 0')
    S.I(f's_cbranch_scc1 {ok}')
    S.I('s_nop 2')
    S.I(f's_cbranch_vccnz {lp}')
    S.label(ok)

def set_flag(S, soff, vt=2):
    S.I(f'v_mov_b32 {v(vt)}, s{TAG}\nv_mov_b32 {v(vt+1)}, s{TAG+1}\nv_mov_b32 {v(vt+2)}, 0')
    S.I('s_mov_b64 exec, 1')
    S.I(f'buffer_store_dwordx2 {v(vt,2)}, {v(vt+2)}, s[{RWS}:{RWS+3}], s{soff} offen sc1', tag='flag')
    S.I('s_mov_b64 exec, -1')

def set_flag_w0(S, soff):
    lab = S.newlabel('L_nf')
    S.I(f's_cmp_lg_u32 s{sWAVE}, 0\ns_cbranch_scc1 {lab}')
    sv = list(S.vm); be = S.bg_every; S.bg_every = 0
    set_flag(S, soff)
    S.vm = sv; S.bg_every = be
    S.label(lab)

def allreduce64(S, regs, tmp):
    for sh in (8, 4, 2, 1):
        for r in regs:
            S.I(f'v_add_f32_dpp {v(r)}, {v(r)}, {v(r)} row_ror:{sh} row_mask:0xf bank_mask:0xf')
    for op in ('v_permlane16_swap_b32', 'v_permlane32_swap_b32'):
        for r, t in zip(regs, tmp): S.I(f'v_mov_b32 {v(t)}, {v(r)}')
        for r, t in zip(regs, tmp): S.I(f'{op} {v(r)}, {v(t)}')
        for r, t in zip(regs, tmp): S.I(f'v_add_f32 {v(r)}, {v(r)}, {v(t)}')

def pair_allreduce2(S, pairs, post):
    for ra, rb, op in pairs: S.I(f'v_permlane32_swap_b32 {v(ra)}, {v(rb)}')
    for ra, rb, op in pairs: S.I(f'{op} {v(ra)}, {v(ra)}, {v(rb)}')
    for ra, rb, op in pairs: post(ra)
    for ra, rb, op in pairs: S.I(f'v_mov_b32 {v(rb)}, {v(ra)}')
    for ra, rb, op in pairs: S.I(f'v_permlane32_swap_b32 {v(ra)}, {v(rb)}')

def bc(r):
    return v(r & ~1, 2), r & 1, r & 1
def pk_add(S, d, a, b): S.I(f'v_pk_add_f32 {v(d,2)}, {v(a,2)}, {v(b,2)}')
def pk_mul_bc(S, d, a, r):
    o, lo, hi = bc(r)
    S.I(f'v_pk_mul_f32 {v(d,2)}, {v(a,2)}, {o} op_sel:[0,{lo}] op_sel_hi:[1,{hi}]')
def softmax_pm(S, P, E, T, OUT, hook=None):
    mxA, mxB, mnA, mnB = T, T+1, T+2, T+3
    q4 = ((mxA, P, 'max'), (mxB, P+8, 'max'), (mnA, P, 'min'), (mnB, P+8, 'min'))
    for m, base, o in q4: S.I(f'v_{o}3_f32 {v(m)}, {v(base)}, {v(base+1)}, {v(base+2)}')
    for k in (3, 5):
        for m, base, o in q4: S.I(f'v_{o}3_f32 {v(m)}, {v(m)}, {v(base+k)}, {v(base+k+1)}')
    for m, base, o in q4: S.I(f'v_{o}_f32 {v(m)}, {v(m)}, {v(base+7)}')
    pair_allreduce2(S, [(mxA, mxB, 'v_max_f32'), (mnA, mnB, 'v_min_f32')], lambda r: S.I(f'v_mul_f32 {v(r)}, s{sC}, {v(r)}'))
    for hb, (mx, mn) in enumerate(((mxA, mnA), (mxB, mnB))):
        ox, lx, hx = bc(mx); on, ln, hn = bc(mn)
        for i in range(0, 8, 2):
            S.I(f'v_pk_fma_f32 {v(E+16*hb+i,2)}, {v(P+8*hb+i,2)}, s[{sC}:{sC+1}], {ox} op_sel:[0,0,{lx}] op_sel_hi:[1,0,{hx}] neg_lo:[0,0,1] neg_hi:[0,0,1]')
            S.I(f'v_pk_fma_f32 {v(E+16*hb+8+i,2)}, {v(P+8*hb+i,2)}, s[{sC}:{sC+1}], {on} op_sel:[0,0,{ln}] op_sel_hi:[1,0,{hn}] neg_lo:[1,0,0] neg_hi:[1,0,0]')
        for i in range(16):
            S.I(f'v_exp_f32 {v(E+16*hb+i)}, {v(E+16*hb+i)}')
        if hook and hb == 0: hook()
    sm = [T+4, T+5, T+6, T+7]
    tp = [T+8, T+10, T+12, T+14]
    for g in range(4): pk_add(S, tp[g], E+8*g, E+8*g+2)
    for i in (4, 6):
        for g in range(4): pk_add(S, tp[g], tp[g], E+8*g+i)
    for g in range(4): S.I(f'v_add_f32 {v(sm[g])}, {v(tp[g])}, {v(tp[g]+1)}')
    pair_allreduce2(S, [(sm[0], sm[1], 'v_add_f32'), (sm[2], sm[3], 'v_add_f32')], lambda r: S.I(f'v_rcp_f32 {v(r)}, {v(r)}'))
    for g in range(4):
        for i in range(0, 8, 2): pk_mul_bc(S, E+8*g+i, E+8*g+i, sm[g])
        for i in range(4): S.I(f'v_cvt_pk_bf16_f32 {v(OUT+4*g+i)}, {v(E+8*g+2*i)}, {v(E+8*g+2*i+1)}')

def cvt8(S, dst, src, n=8):
    for i in range(n): S.I(f'v_cvt_pk_bf16_f32 {v(dst+i)}, {v(src+2*i)}, {v(src+2*i+1)}')

NSTAMP = 11
SSETS = {
 0: [0,1,2,3,4,5,6,7,8,9],
 1: [0,'Aw0','A0','Aw1','A1','Aw2','A2','Aw3','A3','Aw4'],
 2: [0,5,'B0','B4','Bkv','B8','B12','B16','B22',6],
 3: [0,6,'ust',7,'qs','dd','po',8,'kvf','ost'],
 4: [0,8,'ost','C0','C4','C12','C20','C22','C28',9],
 5: [0,'A4','Aw5','A5','Aw6','A6','hp0','hp1','A7',4],
}
def stamp(S, opt, k, early=False):
    if early or not opt.get('stamps'): return
    L = SSETS[opt.get('sset', 0)]
    if k in L:
        n = L.index(k)
        S.I(f'{"s_memtime" if opt.get("stamps") == 2 else "s_memrealtime"} s[{80+2*n}:{81+2*n}]')
def stamp_out(S, opt):
    if opt.get('stamps'):
        n = NSTAMP - 1
        S.I('s_waitcnt vmcnt(0) lgkmcnt(0)')
        S.I(f'{"s_memtime" if opt.get("stamps") == 2 else "s_memrealtime"} s[{80+2*n}:{81+2*n}]')
        S.I('s_waitcnt lgkmcnt(0)')
        S.I('v_mov_b32 v2, 0')
        for k in range(n + 1): S.I(f'v_writelane_b32 v2, s{80+2*k}, {k}')
        S.I(f's_lshl_b32 s3, s2, 2\ns_add_u32 s3, s3, s{sWAVE}\ns_lshl_b32 s3, s3, 6\ns_add_u32 s3, s3, {STAMP_BASE}')
        S.I('v_lshlrev_b32 v3, 2, v1')
        S.I('s_mov_b64 exec, 0xffff')
        S.I(f'buffer_store_dword v2, v3, s[{RWS}:{RWS+3}], s3 offen')

INB = (2, 3, 4)
XA = [233, 234, 235, 239]
def exch_addr(S):
    for i in range(1, 4):
        S.I(f's_xor_b32 s3, s{sWAVE}, {i}\ns_lshl_b32 s3, s3, 13\nv_add_u32 {v(XA[i])}, s3, v5')
    S.I(f'v_add_u32 {v(XA[0])}, s{sMB}, v5')
def xw(ACC, i, q): return f'ds_write_b128 {v(XA[i])}, {v(ACC+16*i+4*q,4)} offset:{dslot(INB[i-1])+q*1024}'
def exchange_rd(S, ACC):
    S.wait(lg='xw')
    S.I('s_barrier')
    for i in range(1, 4):
        for q in range(4):
            S.I(f'ds_read_b128 {v(ACC+16*i+4*q,4)}, {v(XA[0])} offset:{dslot(INB[i-1])+q*1024}', tag=f'xr{i}')
def exchange(S, ACC):
    for i in range(1, 4):
        for q in range(4): S.I(xw(ACC, i, q), tag='xw')
    exchange_rd(S, ACC)
def exchange_sum(S, ACC):
    for i in range(1, 4):
        S.wait(lg=f'xr{i}')
        for r in range(0, 16, 2): pk_add(S, ACC+r, ACC+r, ACC+16*i+r)

def gen(S, opt):
    vXa, vXb, vW, vW2 = 10, 11, 12, 13
    vO = 10
    vW1, vY = 14, 18
    vH0, vH1, vD0, vD1 = 22, 23, 30, 31
    vXr = 24; vTy = 24
    vWr = 224
    vBr = 226; vTa = 226
    vLP = 8
    FR_ = 32
    AQ, AK, AV = 80, 96, 112
    IP, IM = 216, 220
    QB, WA, WB = 240, 248, 252
    vFL, vFLa = 236, 238
    vSW = 239
    ACC = 64; AF = 32

    def multi_ops(tag, pre, loads):
        ops = []
        for n, l in enumerate(loads):
            def f(n=n, l=l):
                if n == 0: S.I(pre)
                S.I(l, tag=tag)
            ops.append((tag, f))
        return ops
    def run(ops):
        for o in ops: (o[1] if isinstance(o, tuple) else o)()
    def finish_group():
        if S.bg and S.vm and isinstance(S.bg[0], tuple) and S.bg[0][0] in S.vm and not S.bg[0][0].startswith('S'):
            t = S.bg[0][0]
            while S.bg and S.bg[0][0] == t: S.run_bg(1)

    S.I('s_cmp_ge_u32 s2, 256\ns_cbranch_scc1 L_end')
    stamp(S, opt, 0)
    S.I('s_load_dwordx16 s[36:51], s[0:1], 0')
    S.I('s_load_dwordx8 s[52:59], s[0:1], 64')
    S.I('s_load_dwordx2 s[60:61], s[0:1], 96')
    S.I('s_getpc_b64 s[66:67]')
    S.label('L_pc')
    S.I('s_lshl_b32 s3, s2, 5\ns_add_u32 s3, s3, L_table-L_pc')
    S.I(f's_load_dwordx4 s[{sTB}:{sTB+3}], s[66:67], s3')
    S.I('s_add_u32 s3, s3, 16')
    S.I(f's_load_dwordx2 s[{sTA}:{sTA+1}], s[66:67], s3')
    S.I(f's_and_b32 s{sXCD}, s2, 7\ns_lshr_b32 s{sIDX}, s2, 3')
    S.I(f's_and_b32 s4, s{sIDX}, 7\ns_lshl_b32 s3, s4, 12')
    S.I('v_lshl_add_u32 v7, v0, 4, s3')
    S.I('global_load_dwordx4 v[232:235], v7, s[66:67]', tag='cpf')
    S.I('v_and_b32 v1, 63, v0\nv_lshrrev_b32 v2, 6, v0')
    S.I(f's_lshr_b32 s3, s{sXCD}, 1\ns_lshl_b32 s3, s3, 3\ns_add_u32 s{sSBLK}, s3, s4')
    S.I(f'v_readfirstlane_b32 s{sWAVE}, v2')
    S.I('v_lshrrev_b32 v2, 3, v1\nv_and_b32 v3, 7, v1\nv_lshrrev_b32 v4, 4, v1')
    S.I(f's_and_b32 s3, s{sXCD}, 1\ns_lshl_b32 s3, s3, 2\ns_lshr_b32 s7, s{sIDX}, 3\ns_add_u32 s{sQUAD}, s3, s7')
    S.I(f's_lshl_b32 s5, s{sSBLK}, 16\ns_lshl_b32 s6, s{sQUAD}, 13\ns_add_u32 s6, s6, s5\ns_lshl_b32 s{sMX}, s{sWAVE}, 11\ns_add_u32 s6, s6, s{sMX}')
    S.I('v_lshlrev_b32 v5, 4, v1')
    S.I(f'v_xor_b32 v6, v3, v4\nv_lshlrev_b32 v6, 4, v6\nv_lshl_add_u32 {v(vXa)}, v2, 10, v6')
    S.I(f'v_xor_b32 {v(vXb)}, 64, {v(vXa)}\nv_add_u32 {v(vXb)}, 7168, {v(vXb)}')
    S.I('v_and_b32 v6, 1, v4\nv_lshlrev_b32 v6, 2, v6\nv_xor_b32 v6, v3, v6\nv_lshlrev_b32 v6, 4, v6')
    S.I(f'v_mul_u32_u24 v7, 3072, v2\nv_add_u32 {v(vW)}, v7, v6\nv_add_u32 {v(vW2)}, 24576, {v(vW)}')
    S.I(f's_lshl_b32 s7, s{sWAVE}, 14\ns_add_u32 s{sB0}, s5, s7')
    S.I(f's_mul_i32 s{sB1}, s{sWAVE}, {16*3072}\ns_lshl_b32 s7, s{sQUAD}, 7\ns_add_u32 s{sB1}, s{sB1}, s7')
    S.I(f's_mul_i32 s{sMW}, s{sWAVE}, 6144\ns_add_u32 s{sMW}, s{sMW}, 8192')
    S.I('v_mov_b32 v9, 0')
    S.I(f's_mov_b32 s{RX+2}, {2048*1024}\ns_mov_b32 s{RX+3}, 0x00020000\ns_mov_b32 s{RW+2}, {512*3072}\ns_mov_b32 s{RW+3}, 0x00020000\ns_mov_b32 s{RWS+2}, {WS_SIZE}\ns_mov_b32 s{RWS+3}, 0x00020000')
    S.I('s_waitcnt lgkmcnt(0)')
    S.I(f's_mov_b64 s[{RX}:{RX+1}], s[{PX}:{PX+1}]')
    S.I(f'buffer_load_dwordx4 v[128:131], v5, s[{RX}:{RX+3}], s6 offen', tag='lnx')
    S.I(f'buffer_load_dwordx4 v[132:135], v5, s[{RX}:{RX+3}], s6 offen offset:1024', tag='lnx')
    S.I(f'global_load_dwordx4 v[136:139], v5, s[{PGW}:{PGW+1}]', tag='lnx')
    S.I(f's_mov_b64 s[{RWS}:{RWS+1}], s[{PWS}:{PWS+1}]\ns_mov_b64 s[{RW}:{RW+1}], s[{PWQKV}:{PWQKV+1}]')
    S.I(f'buffer_load_dwordx2 v[164:165], v9, s[{RWS}:{RWS+3}], 0 offen sc1', tag='lnx')

    def st_ops(st):
        slot = (st % 3) * 32768
        tg = f'S{st}'
        ops = multi_ops(tg, f's_and_b32 s{sIX}, s{sTA}, 7\ns_add_u32 m0, s{sMX}, {slot}\ns_lshl_b32 s4, s{sIX}, 7\ns_add_u32 s4, s4, s{sB0}',
            [f'buffer_load_dwordx4 {v(vXa)}, s[{RX}:{RX+3}], s4 offen lds', f'buffer_load_dwordx4 {v(vXb)}, s[{RX}:{RX+3}], s4 offen offset:1024 lds'])
        ops += multi_ops(tg, f's_add_u32 m0, s{sMW}, {slot}\ns_mul_i32 s4, s{sIX}, {64*3072}\ns_add_u32 s4, s4, s{sB1}',
            [f'buffer_load_dwordx4 {v(vW)}, s[{RW}:{RW+3}], s4 offen offset:{seg*1024} lds' for seg in range(3)])
        ops += multi_ops(tg, f's_add_u32 m0, s{sMW}, {slot+3072}\ns_lshr_b32 s{sTA}, s{sTA}, 4',
            [f'buffer_load_dwordx4 {v(vW2)}, s[{RW}:{RW+3}], s4 offen offset:{seg*1024} lds' for seg in range(3)])
        return ops
    o0 = st_ops(0)
    run(o0[:5])
    S.I(f'v_mul_u32_u24 v7, 3584, v2\nv_add_u32 {v(vW1)}, v7, v6')
    S.I(f'v_lshl_add_u32 {v(vY)}, v2, 12, v6\nv_lshl_add_u32 {v(vSW)}, v2, 10, v6')
    S.I('v_lshrrev_b32 v9, 5, v1')
    S.I(f's_mov_b32 s{sC}, {LOG2E}')
    S.I(f's_lshr_b32 s3, s{sWAVE}, 1\ns_lshl_b32 s3, s3, 12')
    S.I('v_and_b32 v6, 31, v1\nv_lshlrev_b32 v6, 7, v6\nv_bfe_u32 v7, v1, 1, 3\nv_xor_b32 v7, v7, v9\nv_lshl_add_u32 v6, v7, 4, v6')
    S.I(f'v_add_u32 {v(vXr)}, s3, v6')
    run(o0[5:6])
    for ks in range(1, 4): S.I(f'v_xor_b32 {v(vXr+ks)}, {32*ks}, {v(vXr)}')
    S.I(f'v_bfe_u32 {v(vLP)}, v1, 2, 2\nv_lshlrev_b32 {v(vLP)}, 7, {v(vLP)}')
    S.I(f'v_bfe_u32 v7, v1, 4, 1\nv_lshl_add_u32 {v(vLP)}, v7, 5, {v(vLP)}')
    S.I(f'v_and_b32 v7, 3, v1\nv_lshl_add_u32 {v(vLP)}, v7, 3, {v(vLP)}')
    S.I(f'v_bfe_u32 v7, v1, 3, 1\nv_lshl_add_u32 {v(vLP)}, v7, 6, {v(vLP)}')
    run(o0[6:7])
    S.I(f's_and_b32 s3, s{sWAVE}, 1\ns_lshl_b32 s3, s3, 6')
    S.I(f'v_xor_b32 v7, s3, {v(vLP)}')
    S.I(f'v_mul_u32_u24 {v(vWr)}, 3072, v9\nv_add_u32 {v(vWr)}, {v(vWr)}, v7\nv_add_u32 {v(vWr)}, 8192, {v(vWr)}')
    run(o0[7:8])
    LDS_SCR = 4 * 32768
    S.I(f's_mul_i32 s3, s{sWAVE}, 2176\ns_add_u32 s3, s3, {LDS_SCR}\nv_add_u32 v188, s3, v5')
    S.I('v_bfe_u32 v6, v1, 2, 2\nv_mul_u32_u24 v6, 1088, v6\nv_lshl_add_u32 v6, v4, 5, v6\nv_and_b32 v7, 3, v1\nv_lshl_add_u32 v6, v7, 3, v6')
    S.I(f's_lshl_b32 s3, s{sWAVE}, 8\ns_add_u32 s3, s3, {LDS_SCR}\nv_add_u32 v189, s3, v6')
    S.I(f's_lshl_b32 s3, s{sSBLK}, 2\ns_lshr_b32 s7, s{sQUAD}, 1\ns_add_u32 s3, s3, s7\ns_lshl_b32 s3, s3, 11\ns_lshl_b32 s7, s{sWAVE}, 19\ns_add_u32 s3, s3, s7')
    S.I(f's_and_b32 s7, s{sQUAD}, 1\ns_lshl_b32 s7, s7, 9\ns_add_u32 s3, s3, s7\ns_add_u32 s{sA68}, s3, {HF}\ns_add_u32 s{sA69}, s{sA68}, 262144')
    S.I('v_and_b32 v7, 31, v1\nv_lshlrev_b32 v7, 4, v7\nv_lshl_add_u32 v190, v9, 10, v7')
    S.I(f's_lshr_b32 s5, s6, 13\ns_lshl_b32 s5, s5, 7\ns_add_u32 s5, s5, {G_}\nv_lshlrev_b32 v191, 2, v1')
    S.I(f's_lshl_b32 s3, s{sWAVE}, 3\ns_add_u32 s3, s3, {LDS_SCR + 8704}\nv_add_u32 v187, s3, v191\nv_add_u32 v186, {LDS_SCR + 8704}, v191')

    def wphi_loads():
        S.I(f's_and_b32 s3, s{sWAVE}, 1\ns_lshl_b32 s3, s3, 1\ns_lshl_b32 s7, s{sQUAD}, 2\ns_add_u32 s3, s3, s7\ns_lshl_b32 s3, s3, 9')
        S.I('v_bfe_u32 v6, v1, 4, 1\nv_lshlrev_b32 v6, 9, v6\nv_and_b32 v7, 15, v1\nv_lshl_add_u32 v6, v7, 1, v6\nv_lshl_add_u32 v6, v9, 7, v6\nv_add_u32 v6, s3, v6')
        for j in range(8):
            d = (j & 3) + 8 * (j >> 2)
            S.I(f'global_load_ushort {v(200 + j)}, v6, s[{PWPHI}:{PWPHI+1}] offset:{d*32}', tag='wphi')
    if opt.get('wphi0', 1): wphi_loads()
    S.wait(vm='lnx')
    stamp(S, opt, 1)
    S.push(st_ops(1) + st_ops(2))
    S.bg_every = opt.get('bgLN', 30)
    fa, fb, fg = 140, 148, 156
    for dst, src in ((fa, 128), (fb, 132), (fg, 136)):
        for i in range(4):
            S.I(f'v_lshlrev_b32 {v(dst+2*i)}, 16, {v(src+i)}\nv_and_b32 {v(dst+2*i+1)}, 0xffff0000, {v(src+i)}')
    S.I(f'v_readfirstlane_b32 s{TAG}, v164\nv_readfirstlane_b32 s{TAG+1}, v165')
    sA, sB_, gA, gB = 172, 173, 174, 175
    S.I(f'v_add_f32 {v(sA)}, {v(fa)}, {v(fa+1)}\nv_add_f32 {v(sB_)}, {v(fb)}, {v(fb+1)}')
    S.I(f'v_mul_f32 {v(gA)}, {v(fa)}, {v(fg)}\nv_mul_f32 {v(gB)}, {v(fb)}, {v(fg)}')
    S.I(f's_mul_i32 s{TAG}, s{TAG}, 1664525\ns_add_u32 s{TAG}, s{TAG}, 1013904223')
    S.I(f's_mul_i32 s{TAG+1}, s{TAG+1}, 22695477\ns_add_u32 s{TAG+1}, s{TAG+1}, 1')
    for i in range(1, 8):
        if i >= 2: S.I(f'v_add_f32 {v(sA)}, {v(sA)}, {v(fa+i)}\nv_add_f32 {v(sB_)}, {v(sB_)}, {v(fb+i)}')
        S.I(f'v_fmac_f32 {v(gA)}, {v(fa+i)}, {v(fg+i)}\nv_fmac_f32 {v(gB)}, {v(fb+i)}, {v(fg+i)}')
    allreduce64(S, [sA, sB_, gA, gB], [176, 177, 178, 179])
    S.I(f'v_mul_f32 {v(sA)}, {f2u(1/512):#x}, {v(sA)}\nv_mul_f32 {v(sB_)}, {f2u(1/512):#x}, {v(sB_)}')
    for i in range(8):
        S.I(f'v_sub_f32 {v(fa+i)}, {v(fa+i)}, {v(sA)}\nv_sub_f32 {v(fb+i)}, {v(fb+i)}, {v(sB_)}')
    S.I(f'v_mul_f32 {v(sA)}, {v(fa)}, {v(fa)}\nv_mul_f32 {v(sB_)}, {v(fb)}, {v(fb)}')
    for i in range(1, 8):
        S.I(f'v_fmac_f32 {v(sA)}, {v(fa+i)}, {v(fa+i)}\nv_fmac_f32 {v(sB_)}, {v(fb+i)}, {v(fb+i)}')
    S.I(f'v_cmp_eq_u32 vcc, 0, v1\nv_cndmask_b32 {v(gA)}, {v(gB)}, {v(gA)}, vcc')
    S.I(f'v_mul_f32 {v(gA)}, s{sC}, {v(gA)}\nv_exp_f32 {v(gA)}, -{v(gA)}\nv_add_f32 {v(gA)}, 1.0, {v(gA)}\nv_rcp_f32 {v(gA)}, {v(gA)}')
    allreduce64(S, [sA, sB_], [176, 177])
    S.I(f'v_mov_b32 v176, {f2u(1e-5):#x}')
    S.I(f'v_fmamk_f32 {v(sA)}, {v(sA)}, {f2u(1/512):#x}, v176\nv_fmamk_f32 {v(sB_)}, {v(sB_)}, {f2u(1/512):#x}, v176')
    S.I(f'v_rsq_f32 {v(sA)}, {v(sA)}\nv_rsq_f32 {v(sB_)}, {v(sB_)}')
    for i in range(8):
        S.I(f'v_mul_f32 {v(fa+i)}, {v(sA)}, {v(fa+i)}\nv_mul_f32 {v(fb+i)}, {v(sB_)}, {v(fb+i)}')
    cvt8(S, 128, fa, 4); cvt8(S, 132, fb, 4)
    S.bg_every = 0
    S.I('ds_write_b128 v188, v[128:131]', tag='lnw')
    S.I('ds_write_b128 v188, v[132:135] offset:1088', tag='lnw')
    S.I('s_mov_b64 exec, 3')
    S.I(f'ds_write_b32 v187, {v(gA)}', tag='lnw')
    S.I('s_mov_b64 exec, -1')

    def nib(t, wide=True):
        return f's_and_b32 s4, s{t}, 15\n' + (f's_lshr_b64 s[{t}:{t+1}], s[{t}:{t+1}], 4' if wide else f's_lshr_b32 s{t}, s{t}, 4')
    def dma_blk(tag, d, t, wide, scale, base, vreg, R):
        sc = f's_lshl_b32 s4, s4, {scale.bit_length()-1}' if scale & (scale - 1) == 0 else f's_mul_i32 s4, s4, {scale}'
        return multi_ops(tag, f'{nib(t, wide)}\ns_add_u32 m0, s{sMB}, {dslot(d)}\n{sc}\ns_add_u32 s4, s4, s{base}',
            [f'buffer_load_dwordx4 {v(vreg+q)}, s[{R}:{R+3}], s4 offen offset:{q*1024} lds' for q in range(4)])
    def dir_blk(tag, dst, t, wide, base, v0_, v1_, R):
        return multi_ops(tag, f'{nib(t, wide)}\ns_lshl_b32 s4, s4, 12\ns_add_u32 s4, s4, s{base}',
            [f'buffer_load_dwordx4 {dst(4*q)}, {v(v1_ if q & 1 else v0_)}, s[{R}:{R+3}], s4 offen offset:{(q>>1)*2048} sc1' for q in range(4)])
    bds = {0: 6, 1: 7, 2: 8, 3: 9, 4: 0, 5: 1, 6: 2, 7: 3, 8: 4, 9: 5, 10: 6, 11: 7, 12: 8, 13: 9, 14: 0, 15: 1}
    def b_ops(p): return dma_blk(f'B{p}', bds[p], sTB, True, 32*3584, sB2, vW1, RW1)
    def h_ops(p): return dir_blk(f'H{p}', lambda o: a_(16*p+o, 4), sT2, True, sB3, vH0, vH1, RH)
    def tr_addrs(base, gshift, wsel):
        if wsel == 'hi': S.I(f's_lshr_b32 s3, s{sWAVE}, 1\ns_lshl_b32 s3, s3, 6')
        else: S.I(f's_and_b32 s3, s{sWAVE}, 1\ns_lshl_b32 s3, s3, 6')
        S.I(f'v_xor_b32 v7, s3, {v(vLP)}\nv_lshl_add_u32 v7, v9, {gshift}, v7\nv_add_u32 {v(base)}, s{sMB}, v7')
        S.I(f'v_xor_b32 {v(base+1)}, 64, {v(base)}')
        for wdw in (1, 2):
            S.I(f'v_add_u32 {v(base+2*wdw)}, {wdw*0x10000:#x}, {v(base)}\nv_add_u32 {v(base+2*wdw+1)}, {wdw*0x10000:#x}, {v(base+1)}')

    def setup1():
        S.I(f's_and_b32 s3, s{sXCD}, 1\ns_lshl_b32 s3, s3, 2\ns_and_b32 s7, s{sIDX}, 3\ns_add_u32 s{sDT}, s3, s7')
        S.I(f's_lshr_b32 s3, s{sXCD}, 1\ns_mul_i32 s7, s3, 7\ns_lshr_b32 s5, s{sIDX}, 2\ns_add_u32 s{sFT}, s7, s5')
        S.I(f's_lshl_b32 s3, s3, 3\ns_add_u32 s{sST}, s3, s5')
        S.I(f's_mov_b64 s[{sT2}:{sT2+1}], s[{sTB}:{sTB+1}]\ns_mov_b32 s{sTO2}, s{sTO}')
        for q in range(1, 4): S.I(f'v_add_u32 {v(vW1+q)}, {q*(8*3584-1024)}, {v(vW1)}')
    def setup2():
        S.I(f's_mul_i32 s{sB2}, s{sWAVE}, {512*3584}\ns_lshl_b32 s3, s{sFT}, 7\ns_add_u32 s{sB2}, s{sB2}, s3')
        S.I(f's_lshl_b32 s{sMB}, s{sWAVE}, 13')
        srd(S, RW1, PW1, 2048*3584)
        S.I(f's_cmp_ge_u32 s{sIDX}, 28\ns_cselect_b32 s{RW1+2}, 0, s{RW1+2}')
        S.I(f's_lshl_b32 s3, s{sSBLK}, 3\ns_add_u32 s3, s3, s{sQUAD}\ns_lshl_b32 s3, s3, 7\ns_add_u32 s{sA69}, s3, {FH}')
    def setup3():
        for ks in range(4): S.I(f'v_add_u32 {v(vXr+4+ks)}, 0x10000, {v(vXr+ks)}')
        S.I(f'v_add_u32 {v(vWr+1)}, 0x10000, {v(vWr)}')
    def setup4():
        S.I(f's_lshl_b32 s{sB3}, s{sWAVE}, 16\ns_lshl_b32 s3, s{sDT}, 18\ns_add_u32 s{sB3}, s{sB3}, s3\ns_add_u32 s{sB3}, s{sB3}, {HF}')
        srd(S, RH, PWS, WS_SIZE)
        S.I(f's_cmp_ge_u32 s{sIDX}, 28\ns_cselect_b32 s{RH+2}, 0, s{RH+2}')
        S.I(f's_mov_b32 s{sMASK}, 0x0000ffff\ns_mov_b32 s{sMASK+1}, 0x0000ffff')
        S.I(f's_and_b32 s3, s{sWAVE}, 1\ns_lshl_b32 s3, s3, 10')
        S.I(f'v_add_u32 {v(vH0)}, s3, v5\nv_xor_b32 {v(vH1)}, 0x400, {v(vH0)}')
    def setup5(): tr_addrs(vBr, 10, 'hi')
    def setup6():
        for q in range(1, 4): S.I(f'v_add_u32 {v(vY+q)}, {q*(8*4096-1024)}, {v(vY)}')
        S.I('v_and_b32 v6, 31, v1\nv_lshlrev_b32 v7, 2, v9\nv_sub_u32 v192, v6, v7')
        S.I('v_mov_b32 v193, 0x3f80\nv_mov_b32 v194, 0x3f800000')
    def ident(base, off):
        def f():
            for jj in range(4):
                f0 = ((2*jj) & 3) + 8*(jj >> 1) + off
                S.I(f'v_cmp_eq_u32 vcc, {f0}, v192\nv_cmp_eq_u32 s[{sEX}:{sEX+1}], {f0+1}, v192\nv_cndmask_b32 {v(base+jj)}, 0, v193, vcc')
                S.I(f'v_cndmask_b32 {v(base+jj)}, {v(base+jj)}, v194, s[{sEX}:{sEX+1}]')
        return f
    def wphi_pack():
        S.wait(vm='wphi')
        for i in range(4): S.I(f'v_lshl_or_b32 {v(168+i)}, {v(201+2*i)}, 16, {v(200+2*i)}')
        for i in range(4):
            S.I(f'v_cndmask_b32 {v(WA+i)}, 0, {v(168+i)}, s[{sMASK}:{sMASK+1}]')
            S.I(f'v_cndmask_b32 {v(WB+i)}, {v(168+i)}, 0, s[{sMASK}:{sMASK+1}]')
    def kv_addr():
        S.I(f's_and_b32 s3, s{sWAVE}, 1\ns_lshl_b32 s7, s{sQUAD}, 1\ns_add_u32 s3, s3, s7\ns_lshl_b32 s3, s3, 5\ns_add_u32 s3, s3, s{sSBLK}')
        S.I(f's_lshr_b32 s5, s{sWAVE}, 1')
        S.I(f's_lshl_b32 s7, s3, 1\ns_add_u32 s7, s7, s5\ns_lshl_b32 s7, s7, 7\ns_add_u32 s{sA69}, s7, {FKV}')
        S.I(f's_mul_i32 s3, s3, {KVB}\ns_add_u32 s{sA68}, s3, {KVP}')
        S.I('s_lshl_b32 s7, s5, 8\ns_add_u32 s7, s7, 4096\nv_lshl_add_u32 v232, v1, 2, s7')
        S.I(f's_xor_b32 s3, s{sWAVE}, 2\ns_lshl_b32 s3, s3, 13\nv_add_u32 v233, s3, v5\nv_add_u32 v234, s{sMB}, v5')
    def h_poll_issue():
        S.I(f'v_lshlrev_b32 {v(vFLa)}, 7, v0\nv_add_u32 {v(vFLa)}, {FH}, {v(vFLa)}')
        S.I(f'buffer_load_dwordx2 {v(vFL,2)}, {v(vFLa)}, s[{RWS}:{RWS+3}], 0 offen sc1', tag='pollH')
    GO, GC, B2R, B1R = 208, 210, 209, 200
    def small_loads():
        S.I('v_bfe_u32 v6, v1, 3, 2\nv_lshlrev_b32 v6, 7, v6\nv_and_b32 v7, 7, v1\nv_lshl_add_u32 v6, v7, 2, v6')
        S.I(f's_lshl_b32 s3, s{sSBLK}, 1\ns_lshr_b32 s7, s{sWAVE}, 1\ns_add_u32 s3, s3, s7\ns_lshl_b32 s3, s3, 9\ns_add_u32 s3, s3, {G_}')
        S.I(f'buffer_load_dword {v(GO)}, v6, s[{RWS}:{RWS+3}], s3 offen sc1', tag='g')
        S.I(f's_lshl_b32 s3, s{sST}, 10\ns_add_u32 s3, s3, {G_}\ns_and_b32 s6, s{sWAVE}, 1\ns_lshl_b32 s7, s6, 9')
        S.I('v_add_u32 v6, s7, v6\nv_xor_b32 v7, 0x200, v6')
        S.I(f'buffer_load_dword {v(GC)}, v6, s[{RWS}:{RWS+3}], s3 offen sc1', tag='g')
        S.I(f'buffer_load_dword {v(GC+1)}, v7, s[{RWS}:{RWS+3}], s3 offen sc1', tag='g')
        S.I(f's_lshl_b32 s3, s{sST}, 7\ns_lshl_b32 s7, s6, 6\ns_add_u32 s3, s3, s7\nv_and_b32 v6, 31, v1\nv_lshl_add_u32 v6, v6, 1, s3')
        S.I(f'global_load_ushort {v(B2R)}, v6, s[{PB2}:{PB2+1}]', tag='g')
        S.I(f's_min_u32 s3, s{sFT}, 27\ns_lshl_b32 s3, s3, 7\ns_lshr_b32 s7, s{sWAVE}, 1\ns_lshl_b32 s7, s7, 6\ns_add_u32 s3, s3, s7')
        S.I('v_lshl_add_u32 v6, v9, 3, s3')
        for q in range(4):
            S.I(f'global_load_dwordx2 {v(B1R+2*q,2)}, v6, s[{PB1}:{PB1+1}] offset:{16*q}', tag='g')
    HP = opt.get('hpoll', 19); HC = opt.get('hchk', 25)
    HFS = opt.get('hfs', 2)
    extras = {1: setup1, 2: setup2, 3: setup3, 6: setup4, 9: setup5, 10: setup6, 13: ident(IP, 0), 14: ident(IM, 16),
              17: wphi_pack, 18: kv_addr, 29: small_loads}
    if not opt.get('wphi0', 1): extras[5] = wphi_loads
    wpos = {1: [0], 2: [1], 3: [2], 4: [3]} if opt.get('wpv', 0) == 0 else {2: [0], 3: [1], 4: [2], 5: [3]}

    def a_reads(kk):
        st, ks = kk >> 2, kk & 3
        slot = st % 3
        hi = slot >> 1
        so = (slot & 1) * 32768
        b = FR_ + 16 * (kk % 3)
        R = [f'ds_read_b128 {v(b,4)}, {v(vXr+4*hi+ks)} offset:{so}']
        for seg in range(3):
            for t in range(2):
                R.append(f'ds_read_b64_tr_b16 {v(b+4+4*seg+2*t,2)}, {v(vWr+hi)} offset:{so + ks*6144 + seg*1024 + t*512}')
        return R
    def a_mfmas(kk):
        b = FR_ + 16 * (kk % 3)
        c = (lambda r: v(r, 16)) if kk else (lambda r: '0')
        return [f'{MF} {v(AQ,16)}, {v(b+4,4)}, {v(b,4)}, {c(AQ)}',
                f'{MF} {v(AK,16)}, {v(b+8,4)}, {v(b,4)}, {c(AK)}',
                f'{MF} {v(AV,16)}, {v(b,4)}, {v(b+12,4)}, {c(AV)}']
    for kk in range(34):
        st, ks = kk >> 2, kk & 3
        R = a_reads(kk) if kk < 32 else []
        M = a_mfmas(kk - 2) if kk >= 2 else []
        if M: S.wait(lg=f'R{kk-2}')
        if ks == 0:
            S.comment(f'stage {st}')
            for m in M[:2]: S.I(m)
            stamp(S, opt, f'Aw{st}')
            if st < 8: S.wait(vm=[f'S{st}'] + (['hst'] if st == HFS else []), lg='all')
            else: S.wait(lg='all')
            S.I('s_barrier')
            stamp(S, opt, f'A{st}')
            if st == 0:
                stamp(S, opt, 2)
                S.I('ds_read_b64_tr_b16 v[128:129], v189', tag='lnr')
                S.I(f'ds_read_b64_tr_b16 v[130:131], v189 offset:{4*1088}', tag='lnr')
                S.I('ds_read_b64_tr_b16 v[132:133], v189 offset:128', tag='lnr')
                S.I(f'ds_read_b64_tr_b16 v[134:135], v189 offset:{4*1088+128}', tag='lnr')
                S.I('ds_read_b32 v136, v186', tag='lnr')
            if st == 4: stamp(S, opt, 3)
            if 1 <= st <= 5: S.push(st_ops(st + 2))
            for p in wpos.get(st, []): S.push(b_ops(p))
            if st == 6: S.push(b_ops(4))
            if st == 7: S.push(b_ops(6) + h_ops(2) + b_ops(7) + h_ops(3))
            if st == 8: S.push(b_ops(8) + h_ops(4))
            for r in R[:4]: S.I(r, tag=f'R{kk}')
            if st == 0:
                S.wait(lg='lnr')
                lab = S.newlabel('L_ng')
                S.I(f's_cmp_lg_u32 s{sWAVE}, 0\ns_cbranch_scc1 {lab}')
                S.I('s_mov_b64 exec, 0xff')
                sv = list(S.vm)
                S.I(f'buffer_store_dword v136, v191, s[{RWS}:{RWS+3}], s5 offen sc1')
                S.vm = sv
                S.I('s_mov_b64 exec, -1')
                S.label(lab)
                S.I(f'buffer_store_dwordx4 v[128:131], v190, s[{RWS}:{RWS+3}], s{sA68} offen sc1', tag='hst')
                S.I(f'buffer_store_dwordx4 v[132:135], v190, s[{RWS}:{RWS+3}], s{sA69} offen sc1', tag='hst')
            npop = 3 if (len(S.bg) > 8 and st <= 5) else 2
            S.run_bg(1)
            for m in M[2:]: S.I(m)
            for r in R[4:]: S.I(r, tag=f'R{kk}')
            S.run_bg(npop - 1)
            if st == HFS: set_flag_w0(S, sA69)
        else:
            split = [R[0:3], R[3:5], R[5:7]]
            for j in range(3):
                if M: S.I(M[j])
                for r in split[j]: S.I(r, tag=f'R{kk}')
                if j == 1 and kk in extras: extras[kk]()
                if j != 1 or npop == 3: S.run_bg(1)
        if kk == HP: h_poll_issue()
        if kk == HC:
            stamp(S, opt, 'hp0')
            poll(S, vFL, vFLa, 'pollH')
            stamp(S, opt, 'hp1')
            S.push(h_ops(0) + b_ops(5) + h_ops(1))
    assert 24 <= HC < 28
    stamp(S, opt, 4)
    for p in range(5, 9): S.push(h_ops(p))
    S.bg_every = opt.get('bgA', 9)
    KB = 128; P = 136; E = 152; T = 184; PHI = 136
    cvt8(S, KB, AK)
    S.I(f'{MF} {v(P,16)}, {v(WA,4)}, {v(KB,4)}, 0')
    S.I(f'{MF} {v(P,16)}, {v(WB,4)}, {v(KB+4,4)}, {v(P,16)}')
    VBF = 32; VA = 40; VB = 48
    cvt8(S, VBF, AV)
    for i in range(8):
        S.I(f'v_cndmask_b32 {v(VA+i)}, 0, {v(VBF+i)}, s[{sMASK}:{sMASK+1}]')
        S.I(f'v_cndmask_b32 {v(VB+i)}, {v(VBF+i)}, 0, s[{sMASK}:{sMASK+1}]')
    softmax_pm(S, P, E, T, PHI)
    DA, DB = E, E + 16
    S.I(f'{MF} {v(DA,16)}, {v(PHI,4)}, {v(IP,4)}, 0')
    S.I(f'{MF} {v(DB,16)}, {v(PHI+8,4)}, {v(IP,4)}, 0')
    S.I(f'{MF} {v(DA,16)}, {v(PHI+4,4)}, {v(IM,4)}, {v(DA,16)}')
    S.I(f'{MF} {v(DB,16)}, {v(PHI+12,4)}, {v(IM,4)}, {v(DB,16)}')
    cvt8(S, QB, AQ)
    S.I(f's_cmp_eq_u32 s5, 0\ns_cselect_b64 s[{sEX}:{sEX+1}], -1, 0')
    PT = 64
    cvt8(S, PT, DA); cvt8(S, PT+8, DB)
    E1 = AK
    S.I(f'{MF} {v(E1,16)}, {v(PT,4)}, {v(VA,4)}, 0')
    S.I(f'{MF} {v(E1,16)}, {v(PT+4,4)}, {v(VA+4,4)}, {v(E1,16)}')
    S.I(f'{MF} {v(E1,16)}, {v(PT+8,4)}, {v(VB,4)}, {v(E1,16)}')
    S.I(f'{MF} {v(E1,16)}, {v(PT+12,4)}, {v(VB+4,4)}, {v(E1,16)}')
    zA, zB = T, T+1
    pk_add(S, T+2, DA, DA+2); pk_add(S, T+4, DB, DB+2)
    for i in range(4, 16, 2):
        pk_add(S, T+2, T+2, DA+i); pk_add(S, T+4, T+4, DB+i)
    S.I(f'v_add_f32 {v(zA)}, {v(T+2)}, {v(T+3)}\nv_add_f32 {v(zB)}, {v(T+4)}, {v(T+5)}')
    S.I(f'v_permlane32_swap_b32 {v(zA)}, {v(zB)}')
    S.I(f'v_add_f32 {v(zA)}, {v(zA)}, {v(zB)}')
    S.I(f'buffer_store_dword {v(zA)}, v232, s[{RWS}:{RWS+3}], s{sA68} offen sc1', tag='kvst')
    KP, SD = 128, 136
    for i in range(8):
        S.I(f'v_cndmask_b32 {v(SD+i)}, {v(E1+i)}, {v(E1+8+i)}, s[{sEX}:{sEX+1}]')
    KVX = dslot(5)
    S.I(f'ds_write_b128 v233, {v(SD,4)} offset:{KVX}', tag='kvx')
    S.I(f'ds_write_b128 v233, {v(SD+4,4)} offset:{KVX+1024}', tag='kvx')
    for i in range(8):
        S.I(f'v_cndmask_b32 {v(KP+i)}, {v(E1+8+i)}, {v(E1+i)}, s[{sEX}:{sEX+1}]')
    RW2, RWO = RX, RW
    srd(S, RW2, PW2, 1792*4096)
    srd(S, RWO, PWO, 512*1024)
    S.I(f's_lshl_b32 s3, s5, 11\ns_add_u32 s{sA68}, s{sA68}, s3')
    S.wait(lg='kvx')
    S.I('s_barrier')
    S.I(f'ds_read_b128 {v(SD,4)}, v234 offset:{KVX}', tag='kvr')
    S.I(f'ds_read_b128 {v(SD+4,4)}, v234 offset:{KVX+1024}', tag='kvr')
    S.I(f's_mul_i32 s{sB0}, s{sWAVE}, {28*16*4096}\ns_lshl_b32 s3, s{sST}, 7\ns_add_u32 s{sB0}, s{sB0}, s3')
    S.I(f's_lshl_b32 s{sB1}, s{sWAVE}, 17\ns_lshl_b32 s3, s{sDT}, 7\ns_add_u32 s{sB1}, s{sB1}, s3')
    S.I(f's_mov_b64 s[{sMX}:{sMX+1}], s[{sTC}:{sTC+1}]')
    tr_addrs(vTy, 9, 'lo')
    for q in range(4): S.I(f'v_add_u32 {v(vO+q)}, {q*(8*1024-1024)}, {v(vSW)}')
    S.wait(lg='kvr')
    for i in range(0, 8, 2): pk_add(S, KP+i, KP+i, SD+i)
    S.I(f'buffer_store_dwordx4 {v(KP,4)}, v5, s[{RWS}:{RWS+3}], s{sA68} offen sc1', tag='kvst')
    S.I(f'buffer_store_dwordx4 {v(KP+4,4)}, v5, s[{RWS}:{RWS+3}], s{sA68} offen offset:1024 sc1', tag='kvst')
    S.bg_every = 0
    stamp(S, opt, 5)

    def y_ops(d, tag): return dma_blk(tag, d, sTC, True, 32*4096, sB0, vY, RW2)
    def wo_ops(d, tag): return dma_blk(tag, d, sTO, False, 32*1024, sB1, vO, RWO)
    def tr_list(dst, base, ad, tstep):
        wdw = ad >> 16; so = ad & 0xffff
        return [f'ds_read_b64_tr_b16 {dst(4*fr+2*t)}, {v(base+2*wdw+fr)} offset:{so+t*tstep}' for fr in range(2) for t in range(2)]

    wp = opt.get('w0pos', 1)
    order = [('Y', k) for k in range(wp)] + [('W', 0)] + [('Y', k) for k in range(wp, 14)] + [('W', k) for k in range(1, 4)]
    class Plan: pass
    PL = Plan(); PL.nd = 0; PL.nt = 0; PL.slot = {}; PL.free = []; PL.pending = []; PL.log = []
    def next_D():
        if PL.nd >= len(order): return None
        kind, k = order[PL.nd]
        ok = lambda s_: not (kind == 'W' and s_ in INB)
        pre = None
        cand = [s_ for s_ in PL.free if ok(s_)]
        if cand:
            s_ = cand[0]; PL.free.remove(s_)
        else:
            cand = [e for e in PL.pending if ok(e[0])]
            if not cand: return None
            e = cand[0]; PL.pending.remove(e); s_, pre = e
        PL.nd += 1
        PL.slot[(kind, k)] = s_
        PL.log.append(('D', kind, k))
        ops = y_ops(s_, f'Y{k}') if kind == 'Y' else wo_ops(s_, f'W{k}')
        if pre:
            t0, f0 = ops[0]
            ops[0] = (t0, lambda f0=f0, tg=pre: (S.wait(lg=tg), f0()))
        return ops
    def push_D():
        ops = next_D()
        if ops: S.push(ops)
        return bool(ops)
    def push_T():
        k = PL.nt
        if k >= 14 or ('Y', k) not in PL.slot: return False
        PL.nt += 1
        PL.log.append(('T', 'Y', k))
        s_ = PL.slot[('Y', k)]
        PL.pending.append((s_, f'T{k}'))
        for h2 in range(2):
            def f(h2=h2):
                S.wait(vm=f'Y{k}')
                for r in tr_list(lambda o: a_(16*k+8*h2+o, 2), vTy, dslot(s_) + 2048*h2, 1024): S.I(r, tag=f'T{k}')
            S.push([(f'TT{k}', f)])
        return True

    S.I(f's_cmp_ge_u32 s{sIDX}, 28\ns_cbranch_scc1 L_reducer')
    vm_at_branch = list(S.vm)

    def o_poll_issue():
        S.I(f's_and_b32 s3, s{sWAVE}, 1\ns_lshl_b32 s3, s3, 9\ns_lshl_b32 s7, s{sQUAD}, 10\ns_add_u32 s3, s3, s7\ns_add_u32 s3, s3, {FR}')
        S.I(f'v_and_b32 v7, 3, v1\nv_lshl_add_u32 {v(vFLa)}, v7, 7, s3')
        S.I(f'buffer_load_dwordx2 {v(vFL,2)}, {v(vFLa)}, s[{RWS}:{RWS+3}], 0 offen sc1', tag='pollO')

    S.push(b_ops(9) + h_ops(9))
    LAST = (1, 2, 3, 0)
    G = opt.get('grp', 6)
    fbuf = [32, 40, 48, 56, 152, 160, 168, 176]
    NB = max(3, G)
    def fb_(i): return fbuf[i % NB]
    def b_R(i): return tr_list(lambda o: v(fb_(i)+o, 2), vBr, dslot(bds[i >> 1]) + 2048 * (i & 1), 512)
    def b_M(j, t):
        c = v(ACC+16*t, 16)
        return f'{MF} {c}, {v(fb_(j)+4*(t>>1),4)}, {a_(8*j+4*(t&1),4)}, {c if j else 0}'
    def kvf_loads():
        S.I(f's_and_b32 s3, s{sWAVE}, 1\ns_lshl_b32 s3, s3, 1\ns_lshl_b32 s7, s{sQUAD}, 2\ns_add_u32 s5, s3, s7\ns_lshl_b32 s3, s5, 11\ns_add_u32 s3, s3, {KVF}')
        for i in range(4):
            S.I(f'buffer_load_dwordx4 {v(32+4*i,4)}, v5, s[{RWS}:{RWS+3}], s3 offen offset:{i*1024} sc1', tag='kvf')
        S.I(f's_lshr_b32 s7, s{sWAVE}, 1')
    JN = 32 - G
    nread = 0
    freed = set()
    def release(j):
        if j & 1:
            p = j >> 1
            if p + 10 < 16: S.push(b_ops(p + 10) + h_ops(p + 10))
            elif bds[p] not in INB: PL.free.append(bds[p])
    for j in range(-2, JN):
        M = []
        if j >= 0:
            S.wait(vm=f'H{j>>1}', lg=f'R{j}')
            M = [b_M(j, t) for t in range(4)]
            release(j)
            if len(S.bg) < 2 and j >= 12 and PL.nd < opt.get('ndB', 2): push_D()
        want = j + 2
        if j >= JN - (G - 2): want = min(31, j + 2 + (j - (JN - (G - 2)) + 1))
        want = min(want, j - 1 + NB, 31)
        R = []
        while nread <= want:
            R += [(nread, r) for r in b_R(nread)]; nread += 1
        npop = 3 if ((j + 2) % opt.get('pop3', 4) == 0) else 2
        pos = {2: (0, 2), 3: (0, 1, 3), 4: (0, 1, 2, 3)}[npop]
        per = len(R) // 4
        for n in range(4):
            if M: S.I(M[n])
            for (ii, r) in R[n*per:(n+1)*per]:
                S.wait(vm=f'B{ii>>1}')
                S.I(r, tag=f'R{ii}')
            if n in pos: S.run_bg(1)
        stamp(S, opt, f'B{j}')
        if j == opt.get('kvflag', 2):
            S.wait(vm='kvst'); set_flag(S, sA69)
            stamp(S, opt, 'Bkv')
        if j == 14:
            S.wait(vm='g')
            for q in range(4):
                for h2 in range(2):
                    S.I(f'v_lshlrev_b32 {v(128+4*q+2*h2)}, 16, {v(B1R+2*q+h2)}\nv_and_b32 {v(128+4*q+2*h2+1)}, 0xffff0000, {v(B1R+2*q+h2)}')
        if j == 20:
            S.I('s_barrier')
        if j == 18: exch_addr(S)
        if j == 16:
            S.I(f's_mul_i32 s3, s{sDT}, {112*2048}\ns_lshl_b32 s7, s{sFT}, 13\ns_add_u32 s3, s3, s7\ns_lshr_b32 s7, s{sWAVE}, 1\ns_lshl_b32 s7, s7, 12\ns_add_u32 s3, s3, s7')
            S.I(f's_and_b32 s7, s{sWAVE}, 1\ns_lshl_b32 s7, s7, 10\ns_add_u32 s3, s3, s7\ns_add_u32 s{sA68}, s3, {UF}')
            S.I(f's_mul_i32 s3, s{sDT}, 28\ns_add_u32 s3, s3, s{sFT}\ns_lshl_b32 s3, s3, 7\ns_add_u32 s{sA69}, s3, {FU}')
    assert JN > 20
    while nread <= 31:
        for r in b_R(nread):
            S.wait(vm=f'B{nread>>1}'); S.I(r, tag=f'R{nread}')
        nread += 1
    W = []
    for n, t in enumerate(LAST):
        for j in range(JN, 32):
            if n == 0:
                S.wait(vm=f'H{j>>1}', lg=f'R{j}')
                release(j)
            S.I(b_M(j, t))
            if j >= JN + 2 and W: S.I(W.pop(0), tag='xw')
            elif (j - JN) % 2 == 0:
                if len(S.bg) < 1 and PL.nd < opt.get('ndB', 2): push_D()
                S.run_bg(1)
        if t: W += [xw(ACC, t, q) for q in range(4)]
    for w_ in W: S.I(w_, tag='xw')
    stamp(S, opt, 6)
    exchange_rd(S, ACC)
    stamp(S, opt, 'x2')
    def fill(n):
        for _ in range(n):
            push_D()
            if PL.nd - PL.nt >= opt.get('tlag', 5): push_T()
    fill(opt.get('ndE', 3))
    S.bg_every = opt.get('bgB', 9)
    Bf = 128
    for r in range(0, 16, 2): pk_add(S, ACC+r, ACC+r, Bf+r)
    exchange_sum(S, ACC)
    k0 = 2 * math.sqrt(2 / math.pi) * math.log2(math.e); k1 = k0 * 0.044715
    S.I(f's_mov_b32 s6, {f2u(-k1):#x}\nv_mov_b32 v2, {f2u(-k0):#x}')
    Tm = 144
    for r in range(0, 16, 2): S.I(f'v_pk_mul_f32 {v(Tm+r,2)}, {v(ACC+r,2)}, {v(ACC+r,2)}')
    for r in range(0, 16, 2): S.I(f'v_pk_fma_f32 {v(Tm+r,2)}, {v(Tm+r,2)}, s[6:7], v[2:3] op_sel_hi:[1,0,0]')
    for r in range(0, 16, 2): S.I(f'v_pk_mul_f32 {v(Tm+r,2)}, {v(Tm+r,2)}, {v(ACC+r,2)}')
    for r in range(16): S.I(f'v_exp_f32 {v(Tm+r)}, {v(Tm+r)}')
    for r in range(0, 16, 2): S.I(f'v_pk_add_f32 {v(Tm+r,2)}, {v(Tm+r,2)}, 1.0 op_sel_hi:[1,0]')
    for r in range(16): S.I(f'v_rcp_f32 {v(Tm+r)}, {v(Tm+r)}')
    for r in range(0, 16, 2): S.I(f'v_pk_mul_f32 {v(ACC+r,2)}, {v(ACC+r,2)}, {v(Tm+r,2)}')
    cvt8(S, Bf, ACC)
    S.I(f'buffer_store_dwordx4 {v(Bf,4)}, v5, s[{RWS}:{RWS+3}], s{sA68} offen sc1', tag='ust')
    S.I(f'buffer_store_dwordx4 {v(Bf+4,4)}, v5, s[{RWS}:{RWS+3}], s{sA68} offen offset:2048 sc1', tag='ust')
    stamp(S, opt, 'ust')
    S.bg_every = 0
    S.run_bg()
    lab = S.newlabel('L_noE')
    S.I(f's_lshl_b32 s3, s2, 2\ns_add_u32 s3, s3, s{sWAVE}\ns_cmp_lg_u32 s3, 0\ns_cbranch_scc1 {lab}')
    S.I('s_mov_b32 s3, 0')
    sv = list(S.vm); set_flag(S, 3); S.vm = sv
    S.label(lab)
    S.I('s_branch L_join')
    main_vm = list(S.vm); main_lg = list(S.lg)

    S.hist = []; S.alts = []
    S.label('L_reducer')
    S.vm = vm_at_branch; S.lg = []
    assert not S.bg
    sHD = sIX
    S.I(f's_lshl_b32 s{sHD}, s{sXCD}, 2\ns_add_u32 s{sHD}, s{sHD}, s{sIDX}\ns_sub_u32 s{sHD}, s{sHD}, 28')
    S.I(f's_lshr_b32 s3, s{sHD}, 1\ns_lshl_b32 s4, s3, 13\ns_lshl_b32 s5, s{sWAVE}, 11\ns_add_u32 s4, s4, s5\ns_add_u32 s4, s4, {FKV}')
    S.I(f'v_and_b32 v6, 15, v1\nv_lshl_add_u32 {v(vFLa)}, v6, 7, s4')
    S.I(f's_and_b32 s5, s{sHD}, 1')
    S.I('v_and_b32 v6, 15, v1\nv_lshl_add_u32 v6, v9, 5, v6\nv_lshlrev_b32 v6, 4, v6\ns_lshl_b32 s4, s5, 8\nv_add_u32 v6, s4, v6')
    S.I('v_bfe_u32 v7, v1, 3, 1\nv_lshlrev_b32 v7, 8, v7\nv_lshl_add_u32 v7, v9, 4, v7\ns_lshl_b32 s4, s5, 7\ns_add_u32 s4, s4, 4096\nv_add_u32 v7, s4, v7')
    for q in range(4):
        S.I(f'v_add_u32 v2, {q*1024}, v6\nv_add_u32 v3, {q*32}, v7\nv_cndmask_b32 {v(60+q)}, v3, v2, s[{sMASK}:{sMASK+1}]')
    S.I(f's_lshl_b32 s3, s3, 5\ns_lshl_b32 s4, s{sWAVE}, 3\ns_add_u32 s3, s3, s4\ns_mul_i32 s3, s3, {KVB}\ns_add_u32 s{sA68}, s3, {KVP}')
    exch_addr(S)
    S.wait(vm='all')
    set_flag(S, sA69)
    for e in PL.log:
        s_ = PL.slot[(e[1], e[2])]
        assert s_ not in INB
        if e[0] == 'D':
            S.wait(lg='all')
            run(y_ops(s_, f'rp{e[2]}') if e[1] == 'Y' else wo_ops(s_, 'rp'))
        else:
            S.wait(vm=f'rp{e[2]}')
            for h2 in range(2):
                for r in tr_list(lambda o: a_(16*e[2]+8*h2+o, 2), vTy, dslot(s_) + 2048*h2, 1024): S.I(r, tag='rt')
    RB = 64
    S.I(f's_mov_b32 s5, {SPIN_MAX}')
    S.I('s_mov_b64 vcc, -1')
    for sb in range(8):
        lp = S.newlabel('L_rp'); ok = S.newlabel('L_rok')
        S.label(lp)
        S.I(f's_and_b32 s3, vcc_lo, {3 << (2*sb)}')
        S.I(f's_cbranch_scc0 {ok}')
        S.raw(f'    buffer_load_dwordx2 {v(vFL,2)}, {v(vFLa)}, s[{RWS}:{RWS+3}], 0 offen sc1')
        S.raw('    s_waitcnt vmcnt(0)')
        S.I(f'v_cmp_ne_u64 vcc, s[{TAG}:{TAG+1}], {v(vFL,2)}')
        S.I('s_sub_u32 s5, s5, 1\ns_cmp_gt_i32 s5, 0\ns_nop 2')
        S.I(f's_cbranch_scc1 {lp}')
        S.label(ok)
        for q in range(4):
            S.I(f'buffer_load_dwordx4 {v(RB+16*sb+4*q,4)}, {v(60+q)}, s[{RWS}:{RWS+3}], s{sA68} offen sc1', tag=f'P{sb}')
        S.I(f's_add_u32 s{sA68}, s{sA68}, {KVB}')
    stamp(S, opt, 6)
    for sb in range(1, 8):
        S.wait(vm=f'P{sb}')
        for r in range(0, 16, 2): pk_add(S, RB+r, RB+r, RB+16*sb+r)
    assert dslot(2) == 0
    for q in range(4): S.I(f'ds_write_b128 {v(XA[0])}, {v(RB+4*q,4)} offset:{q*1024}', tag='rw')
    S.wait(lg='rw')
    S.I('s_barrier')
    S.I(f's_lshl_b32 s3, s{sWAVE}, 11\ns_and_b32 s3, s3, 2048\nv_add_u32 v6, s3, v5')
    for src in range(4):
        for q2 in range(2):
            S.I(f'ds_read_b128 {v(RB+8*src+4*q2,4)}, v6 offset:{src*8192+q2*1024}', tag='rr')
    S.wait(lg='rr')
    S.I('s_barrier')
    for src in range(1, 4):
        for r in range(8): S.I(f'v_add_f32 {v(RB+r)}, {v(RB+r)}, {v(RB+8*src+r)}')
    for r in range(8):
        S.I(f'v_add_f32_dpp {v(RB+r)}, {v(RB+r)}, {v(RB+r)} row_ror:8 row_mask:0xa bank_mask:0xf')
    cvt8(S, RB+8, RB, 4)
    S.I(f's_lshl_b32 s3, s{sHD}, 1\ns_and_b32 s7, s{sWAVE}, 1\ns_add_u32 s3, s3, s7\ns_lshr_b32 s7, s{sWAVE}, 1')
    S.I(f's_lshl_b32 s4, s3, 10\ns_lshl_b32 s5, s7, 16\ns_add_u32 s4, s4, s5\ns_add_u32 s4, s4, {KVF}')
    S.I(f's_lshl_b32 s3, s3, 7\ns_lshl_b32 s5, s7, 13\ns_add_u32 s3, s3, s5\ns_add_u32 s{sA69}, s3, {FR}')
    S.I(f'buffer_store_dwordx4 {v(RB+8,4)}, v5, s[{RWS}:{RWS+3}], s4 offen sc1', tag='kvf')
    S.raw('    s_waitcnt vmcnt(0) lgkmcnt(0)')
    S.vm = []
    set_flag(S, sA69)

    S.label('L_join')
    S.vm = main_vm; S.lg = main_lg
    PL.free += list(INB)
    NPRE = opt.get('npre', 0)
    P = 64; E = 80; T = 112; PHIQ = 48
    vF2, vF2a = 212, 214
    S.I(f'{MF} {v(P,16)}, {v(WA,4)}, {v(QB,4)}, 0')
    S.I(f'{MF} {v(P,16)}, {v(WB,4)}, {v(QB+4,4)}, {v(P,16)}')
    fill(opt.get('ndQ', 5))
    tr_addrs(vTa, 9, 'hi')
    S.bg_every = opt.get('bgQ0', 12)
    def hook():
        S.bg_every = 0
        stamp(S, opt, 'ua')
        S.wait(vm='ust')
        S.I('s_barrier')
        set_flag_w0(S, sA69)
        stamp(S, opt, 7)
        S.bg_every = opt.get('bgQ', 5)
    softmax_pm(S, P, E, T, PHIQ, hook)
    S.I(f's_and_b32 s3, s{sWAVE}, 1\ns_lshl_b32 s3, s3, 9\ns_lshl_b32 s7, s{sQUAD}, 10\ns_add_u32 s3, s3, s7\ns_add_u32 s3, s3, {FR}')
    S.I(f'v_and_b32 v7, 3, v1\nv_lshl_add_u32 {v(vF2a)}, v7, 7, s3')
    S.I(f's_mul_i32 s3, s{sDT}, {28*128}\ns_mul_i32 s7, s{sWAVE}, {7*128}\ns_add_u32 s3, s3, s7\ns_add_u32 s3, s3, {FU}')
    S.I(f'v_min_u32 v6, 6, v1\nv_lshl_add_u32 {v(vFLa)}, v6, 7, s3')
    sBU, sBO = sB2, sB3
    S.I(f's_mul_i32 s{sBU}, s{sWAVE}, {28*2048}\ns_mul_i32 s3, s{sDT}, {112*2048}\ns_add_u32 s{sBU}, s{sBU}, s3\ns_add_u32 s{sBU}, s{sBU}, {UF}')
    S.I(f's_lshl_b32 s{sBO}, s{sWAVE}, 14\ns_lshl_b32 s3, s{sST}, 16\ns_add_u32 s{sBO}, s{sBO}, s3\ns_add_u32 s{sBO}, s{sBO}, {OF}')
    S.I(f's_lshr_b32 s3, s{sWAVE}, 1\ns_lshl_b32 s3, s3, 10')
    S.I(f'v_add_u32 {v(vD0)}, s3, v5\nv_xor_b32 {v(vD1)}, 0x400, {v(vD0)}')
    ROUT = RW1
    srd(S, ROUT, POUT, 2048*1024)
    S.bg_every = 0
    S.run_bg()
    stamp(S, opt, 'qs')
    while PL.nd < NPRE:
        a = push_D(); b = push_T(); S.run_bg()
        assert a or b
    S.I(f'buffer_load_dwordx2 {v(vF2,2)}, {v(vF2a)}, s[{RWS}:{RWS+3}], 0 offen sc1', tag='pollO')
    S.I(f'buffer_load_dwordx2 {v(vFL,2)}, {v(vFLa)}, s[{RWS}:{RWS+3}], 0 offen sc1', tag='pollU')
    fill(opt.get('ndK', 2)); S.run_bg()
    stamp(S, opt, 'dd')
    poll(S, vF2, vF2a, 'pollO')
    stamp(S, opt, 'po')
    kvf_loads()
    S.I(f's_lshl_b32 s3, s{sSBLK}, 16\ns_lshl_b32 s5, s5, 11\ns_add_u32 s3, s3, s5\ns_lshl_b32 s7, s7, 10\ns_add_u32 s3, s3, s7\ns_add_u32 s{sA68}, s3, {OF}')
    S.I(f's_lshl_b32 s3, s{sSBLK}, 3\ns_add_u32 s3, s3, s{sQUAD}\ns_lshl_b32 s3, s3, 7\ns_add_u32 s{sA69}, s3, {FO}')
    poll(S, vFL, vFLa, 'pollU')
    stamp(S, opt, 8)

    DR = 128; ND = 5
    def ureg(p): return DR + 16 * (p % ND) if p < 16 else 32 + 16 * (p - 16)
    def u_ops(p):
        r = ureg(p)
        if p < 14: return dir_blk(f'U{p}', lambda o: v(r+o, 4), sMX, True, sBU, vD0, vD1, RWS)
        return dir_blk(f'U{p}', lambda o: v(r+o, 4), sTO2, False, sBO, vH0, vH1, RWS)
    PD = opt.get('pdC', 3)
    for p in range(PD):
        run(u_ops(p))
        if PL.nt < 3 and push_T(): S.run_bg()
    S.I(f's_lshl_b32 s3, s{sST}, 10\ns_lshl_b32 s7, s{sWAVE}, 8\ns_add_u32 s3, s3, s7\ns_add_u32 s3, s3, {FO}')
    S.I(f'v_and_b32 v6, 1, v1\nv_lshl_add_u32 {v(vFLa)}, v6, 7, s3')
    S.wait(vm='kvf')
    stamp(S, opt, 'kvf')
    for hb in range(2):
        O = 64 + 16*hb
        S.I(f'{MF} {v(O,16)}, {v(32+8*hb,4)}, {v(PHIQ+8*hb,4)}, 0')
        S.I(f'{MF} {v(O,16)}, {v(36+8*hb,4)}, {v(PHIQ+8*hb+4,4)}, {v(O,16)}')
    for hb in range(2):
        O = 64 + 16*hb
        S.I(f'v_add_f32 {v(O+8)}, {f2u(1e-6):#x}, {v(O+8)}\nv_rcp_f32 {v(O+8)}, {v(O+8)}\nv_mul_f32 {v(O+8)}, {v(GO)}, {v(O+8)}')
        for r in range(0, 8, 2): pk_mul_bc(S, O+r, O+r, O+8)
        cvt8(S, 216+4*hb, O, 4)
        S.I(f'buffer_store_dwordx4 {v(216+4*hb,4)}, v5, s[{RWS}:{RWS+3}], s{sA68} offen offset:{2048*hb} sc1', tag='ost')
    stamp(S, opt, 'ost')
    nW = 0
    WT0 = opt.get('wt0', 18)
    for i in range(28):
        p = i >> 1
        r = ureg(p) + 8 * (i & 1)
        if i == 2 * (14 - PD) - 5:
            S.I(f'buffer_load_dwordx2 {v(vFL,2)}, {v(vFLa)}, s[{RWS}:{RWS+3}], 0 offen sc1', tag='pollO2')
        S.flush_tag(f'TT{p}')
        assert PL.nt > p
        S.wait(vm=f'U{p}', lg=f'T{p}')
        if i & 1 == 0:
            if p + PD == 14:
                poll(S, vFL, vFLa, 'pollO2')
            if PL.nd < len(order): push_D()
            if p + PD < 14: S.push(u_ops(p + PD))
            push_T()
        q = i - 2 * (14 - PD)
        if 0 <= q < 4:
            assert q >= 2 or (14 + q) - ND < p
            S.push(u_ops(14 + q))
        R = []
        if i >= WT0 and nW < 8:
            assert ('W', nW >> 1) in PL.slot
            S.wait(vm=f'W{nW>>1}')
            R = tr_list(lambda o: a_(8*nW+o, 2), vTa, dslot(PL.slot[('W', nW >> 1)]) + 2048 * (nW & 1), 1024)
            nW += 1
        tot = len(S.bg) if (i & 1 or q >= 0) else (len(S.bg) + 1) // 2
        for n, t in enumerate(LAST if i == 27 else range(4)):
            i1, i0 = t >> 1, t & 1
            c = v(ACC+16*t, 16)
            S.I(f'{MF} {c}, {v(r+4*i1,4)}, {a_(8*i+4*i0,4)}, {c if i else 0}')
            if R: S.I(R[n], tag='RW')
            k_ = (tot * (n + 1) + 3) // 4 - (tot * n + 3) // 4
            if k_: S.run_bg(k_)
        stamp(S, opt, f'C{i}')
        if i == opt.get('oflag', 3):
            S.wait(vm='ost')
            S.I('s_barrier')
            set_flag_w0(S, sA69)
        if i == 26:
            assert PL.nt == 14 and not any(o[0].startswith('TT') for o in S.bg)
            S.I('s_barrier')
        if i == 16:
            S.I(f'v_sub_f32 v14, 1.0, {v(GC)}\nv_sub_f32 v15, 1.0, {v(GC+1)}\nv_lshlrev_b32 v16, 16, {v(B2R)}\nv_mul_f32 v16, v14, v16')
            S.I(f's_lshl_b32 s3, s{sST}, 16\ns_and_b32 s7, s{sWAVE}, 1\ns_lshl_b32 s7, s7, 15\ns_add_u32 s3, s3, s7\ns_lshl_b32 s7, s{sDT}, 7\ns_add_u32 s3, s3, s7\ns_lshr_b32 s7, s{sWAVE}, 1\ns_lshl_b32 s7, s7, 6\ns_add_u32 s{sA68}, s3, s7')
            S.I('v_and_b32 v6, 31, v1\nv_lshlrev_b32 v6, 10, v6\nv_lshl_add_u32 v17, v9, 4, v6')
    assert nW == 8 and not S.bg
    def scale(t):
        if t == 0: return [f'v_fma_f32 {v(ACC+rr)}, {v(ACC+rr)}, v14, v16' for rr in range(16)]
        return [f'v_mul_f32 {v(ACC+16*t+rr)}, {v(14+(t&1))}, {v(ACC+16*t+rr)}' for rr in range(16)]
    for x in scale(LAST[0]): S.I(x)
    S.wait(lg='RW')
    W = []
    for n, t in enumerate(LAST):
        V = scale(LAST[n+1]) if n < 3 else []
        for j in range(8):
            if n == 0: S.wait(vm=f'U{14 + (j >> 1)}')
            r = ureg(14 + (j >> 1)) + 8 * (j & 1)
            c = v(ACC+16*t, 16)
            S.I(f'{MF} {c}, {a_(8*j+4*(t>>1),4)}, {v(r+4*(t&1),4)}, {c}')
            if j < 4:
                for x in V[4*j:4*j+4]: S.I(x)
            if W and (j >= 4 or (n == 3 and j >= 1)): S.I(W.pop(0), tag='xw')
        if t: W += [xw(ACC, t, q) for q in range(4)]
    stamp(S, opt, 9)
    exchange_rd(S, ACC)
    exchange_sum(S, ACC)
    cvt8(S, 32, ACC)
    osc = {0: '', 1: ' sc1', 2: ' nt'}[opt.get('outpol', 0)]
    for qp in range(2):
        b = 32 + 4*qp
        S.I(f'v_permlane32_swap_b32 {v(b)}, {v(b+2)}')
        S.I(f'v_permlane32_swap_b32 {v(b+1)}, {v(b+3)}')
        S.I(f'buffer_store_dwordx4 {v(b,4)}, v17, s[{ROUT}:{ROUT+3}], s{sA68} offen offset:{32*qp}{osc}', tag='out')
    stamp_out(S, opt)
    S.label('L_end')
    S.I('s_endpgm')

def build(opt):
    hdr = open(f'cdna_kernels/{NAME}.s.ref').read().split('\n')
    top = [l for l in hdr if l.startswith(';') and '@launch' not in l and 'Override launch' not in l and 'grid=ceil' not in l]
    out = '\n'.join(top) + '\n'
    out += f'; @launch grid=(256,1,1) block=(256,1,1) lds={LDS_TOTAL}\n'
    out += '.amdgcn_target "amdgcn-amd-amdhsa--gfx950"\n.text\n'
    name = NAME + '_kernel'
    S = Stream()
    gen(S, opt)
    out += f'.globl {name}\n.p2align 8\n.type {name},@function\n{name}:\n' + S.text()
    print('lines', len(S.out), 'nops', S.nnop, file=sys.stderr)
    out += '.p2align 8\nL_table:\n'
    T = tables(opt)
    for i in range(0, len(T), 8): out += '.long ' + ', '.join(f'{x:#x}' for x in T[i:i+8]) + '\n'
    out += '.fill 1024, 4, 0xbf800000\n'
    out += f'''.section .rodata,"a"
.p2align 6
.amdhsa_kernel {name}
  .amdhsa_next_free_vgpr 512
  .amdhsa_next_free_sgpr 102
  .amdhsa_accum_offset 256
  .amdhsa_group_segment_fixed_size 0
  .amdhsa_kernarg_size 104
  .amdhsa_user_sgpr_count 2
  .amdhsa_user_sgpr_kernarg_segment_ptr 1
  .amdhsa_system_sgpr_workgroup_id_x 1
.end_amdhsa_kernel
'''
    return out

if __name__ == '__main__':
    opt = {}
    for a in sys.argv[2:]:
        k, x = a.split('=')
        opt[k] = int(x)
    open(sys.argv[1], 'w').write(build(opt))
```

```python
import sys, math, struct
from asmlib import Stream

NAME = 'gated_mix__linear_kernel_hedgehog__mixer_token_mlp__prompt'
MB = 1 << 20
WS_E = 0
KVF = 0x10000
FR = 0x30000
FH = 0x40000
FKV = 0x60000
FU = 0x80000
FO = 0xA0000
G_ = 0xC0000
HF = 1 * MB
KVP = 3 * MB + 4096
OF = 6 * MB + 4096
UF = 8 * MB + 8192
STAMP_BASE = 12 * MB
WS_SIZE = 16 * MB
KVB = 4608
LOG2E = 0x3fb8aa3b
SPIN_MAX = 50000
LDS_TOTAL = 163840

def f2u(x): return struct.unpack('<I', struct.pack('<f', x))[0]
def v(a, n=1): return f'v{a}' if n == 1 else f'v[{a}:{a+n-1}]'
def a_(a, n=1): return f'a{a}' if n == 1 else f'a[{a}:{a+n-1}]'
MF = 'v_mfma_f32_32x32x16_bf16'

PX, PWQKV, PWPHI, PWO, PW1, PB1, PW2, PB2, PGW, POUT, PWS = 36, 38, 40, 42, 46, 48, 50, 52, 54, 56, 60
RX, RW, RWS, RW1 = 8, 12, 16, 20
RH = 64
sWAVE, sSBLK, sQUAD, sDT, sFT, sIDX, sXCD, sST = 24, 25, 26, 27, 28, 29, 30, 31
sB0, sB1, sIX, sTO2 = 32, 33, 34, 35
TAG = 62
sTB, sTC, sTA, sTO = 68, 70, 72, 73
sT2 = 44
sB2, sB3 = 58, 59
sC, sMB, sA68, sA69, sMX, sMW = 74, 75, 76, 77, 78, 79
sMASK, sEX = 36, 38
AREA = [2, 0, 1, 3, 4]
def slot_addr(t): return AREA[t >> 2] * 32768 + (t & 3) * 2048
def dslot(d): return slot_addr(2 * d)

def seq_of(chunks, r, c, c0=None):
    seq = [chunks[0][r % len(chunks[0])]]
    for g, ch in enumerate(chunks):
        n = len(ch)
        H = [ch[(r + 1 + k) % n] for k in range(n - 1)]
        if g + 1 < len(chunks):
            nx = chunks[g + 1]
            H.insert(min(c if (g or c0 is None) else c0, len(H)), nx[r % len(nx)])
        seq += H
    return seq
def pack(seq): return sum(b << (4 * i) for i, b in enumerate(seq))
def tables(opt):
    out = []
    for wg in range(256):
        xcd, idx = wg & 7, wg >> 3
        par = xcd & 1 if opt.get('xoff', 1) else 0
        c = idx & 3 if opt.get('desync', 1) else 3
        sl, ql = idx & 7, idx >> 3
        chA = [[0, 1, 2, 3], [4, 5, 6, 7]]
        if opt.get('xoff', 1) and ((xcd ^ (xcd >> 1)) & 1): chA = chA[::-1]
        if opt.get('rotA', 4) == 8: A = [(2 * ql + sl + k) & 7 for k in range(8)]
        else: A = seq_of(chA, (sl + ql) & 3, max(c, opt.get('cAmin', 1)))
        i, j = idx & 3, idx >> 2
        r = (i + j) & 3
        chB = [list(range(4 * g, 4 * g + 4)) for g in range(4)]
        if par: chB = [chB[1], chB[0], chB[3], chB[2]]
        B = seq_of(chB, r, c)
        chC = [[0, 1, 2, 3], [4, 5, 6, 7], [8, 9, 10, 11], [12, 13]]
        if par: chC = [[4, 5, 6, 7], [0, 1, 2, 3], [10, 11, 12, 13], [8, 9]]
        C = seq_of(chC, r, c, 3 if opt.get('c0C', 0) else None)
        cm = opt.get('cmode', 0)
        if cm:
            own = [ch[r % len(ch)] for ch in chC]
            rest = [[ch[(r + 1 + k) % len(ch)] for k in range(len(ch) - 1)] for ch in chC]
            if cm == 1: C = own + rest[0] + rest[1] + rest[2] + rest[3]
            if cm == 2:
                H = rest[0] + rest[1]
                k = min(2 * c, 6)
                C = own[:2] + H[:k] + own[2:] + H[k:] + rest[2] + rest[3]
        O = [(r + k) & 3 for k in range(4)]
        assert sorted(A) == list(range(8)) and sorted(B) == list(range(16)) and sorted(C) == list(range(14))
        fk = opt.get('fake', 0)
        if fk & 1: A = [A[0]] * 8
        if fk & 2: B = [B[0]] * 16
        if fk & 4: C = [C[0]] * 14; O = [O[0]] * 4
        tb, tc = pack(B), pack(C)
        out += [tb & 0xffffffff, tb >> 32, tc & 0xffffffff, tc >> 32, pack(A), pack(O), 0, 0]
    return out

def srd(S, d, lo, nbytes):
    S.I(f's_mov_b32 s{d}, s{lo}\ns_mov_b32 s{d+1}, s{lo+1}\ns_mov_b32 s{d+2}, {nbytes}\ns_mov_b32 s{d+3}, 0x00020000')

def poll(S, vdata, vaddr, first_tag=None):
    ok = S.newlabel('L_ok'); lp = S.newlabel('L_spin')
    S.wait(vm=first_tag)
    S.I(f'v_cmp_ne_u64 vcc, s[{TAG}:{TAG+1}], {v(vdata,2)}')
    S.I('s_nop 4')
    S.I(f's_cbranch_vccz {ok}')
    S.I(f's_mov_b32 s3, {SPIN_MAX}')
    S.label(lp)
    S.I('s_sleep 2')
    S.raw(f'    buffer_load_dwordx2 {v(vdata,2)}, {v(vaddr)}, s[{RWS}:{RWS+3}], 0 offen sc1')
    S.raw('    s_waitcnt vmcnt(0)')
    S.I(f'v_cmp_ne_u64 vcc, s[{TAG}:{TAG+1}], {v(vdata,2)}')
    S.I('s_sub_u32 s3, s3, 1')
    S.I('s_cmp_eq_u32 s3, 0')
    S.I(f's_cbranch_scc1 {ok}')
    S.I('s_nop 2')
    S.I(f's_cbranch_vccnz {lp}')
    S.label(ok)

def set_flag(S, soff, vt=2):
    S.I(f'v_mov_b32 {v(vt)}, s{TAG}\nv_mov_b32 {v(vt+1)}, s{TAG+1}\nv_mov_b32 {v(vt+2)}, 0')
    S.I('s_mov_b64 exec, 1')
    S.I(f'buffer_store_dwordx2 {v(vt,2)}, {v(vt+2)}, s[{RWS}:{RWS+3}], s{soff} offen sc1', tag='flag')
    S.I('s_mov_b64 exec, -1')

def set_flag_w0(S, soff):
    lab = S.newlabel('L_nf')
    S.I(f's_cmp_lg_u32 s{sWAVE}, 0\ns_cbranch_scc1 {lab}')
    sv = list(S.vm); be = S.bg_every; S.bg_every = 0
    set_flag(S, soff)
    S.vm = sv; S.bg_every = be
    S.label(lab)

def allreduce64(S, regs, tmp):
    for sh in (8, 4, 2, 1):
        for r in regs:
            S.I(f'v_add_f32_dpp {v(r)}, {v(r)}, {v(r)} row_ror:{sh} row_mask:0xf bank_mask:0xf')
    for op in ('v_permlane16_swap_b32', 'v_permlane32_swap_b32'):
        for r, t in zip(regs, tmp): S.I(f'v_mov_b32 {v(t)}, {v(r)}')
        for r, t in zip(regs, tmp): S.I(f'{op} {v(r)}, {v(t)}')
        for r, t in zip(regs, tmp): S.I(f'v_add_f32 {v(r)}, {v(r)}, {v(t)}')

def pair_allreduce2(S, pairs, post):
    for ra, rb, op in pairs: S.I(f'v_permlane32_swap_b32 {v(ra)}, {v(rb)}')
    for ra, rb, op in pairs: S.I(f'{op} {v(ra)}, {v(ra)}, {v(rb)}')
    for ra, rb, op in pairs: post(ra)
    for ra, rb, op in pairs: S.I(f'v_mov_b32 {v(rb)}, {v(ra)}')
    for ra, rb, op in pairs: S.I(f'v_permlane32_swap_b32 {v(ra)}, {v(rb)}')

def bc(r):
    return v(r & ~1, 2), r & 1, r & 1
def pk_add(S, d, a, b): S.I(f'v_pk_add_f32 {v(d,2)}, {v(a,2)}, {v(b,2)}')
def pk_mul_bc(S, d, a, r):
    o, lo, hi = bc(r)
    S.I(f'v_pk_mul_f32 {v(d,2)}, {v(a,2)}, {o} op_sel:[0,{lo}] op_sel_hi:[1,{hi}]')
def softmax_pm(S, P, E, T, OUT, hook=None):
    mxA, mxB, mnA, mnB = T, T+1, T+2, T+3
    q4 = ((mxA, P, 'max'), (mxB, P+8, 'max'), (mnA, P, 'min'), (mnB, P+8, 'min'))
    for m, base, o in q4: S.I(f'v_{o}3_f32 {v(m)}, {v(base)}, {v(base+1)}, {v(base+2)}')
    for k in (3, 5):
        for m, base, o in q4: S.I(f'v_{o}3_f32 {v(m)}, {v(m)}, {v(base+k)}, {v(base+k+1)}')
    for m, base, o in q4: S.I(f'v_{o}_f32 {v(m)}, {v(m)}, {v(base+7)}')
    pair_allreduce2(S, [(mxA, mxB, 'v_max_f32'), (mnA, mnB, 'v_min_f32')], lambda r: S.I(f'v_mul_f32 {v(r)}, s{sC}, {v(r)}'))
    for hb, (mx, mn) in enumerate(((mxA, mnA), (mxB, mnB))):
        ox, lx, hx = bc(mx); on, ln, hn = bc(mn)
        for i in range(0, 8, 2):
            S.I(f'v_pk_fma_f32 {v(E+16*hb+i,2)}, {v(P+8*hb+i,2)}, s[{sC}:{sC+1}], {ox} op_sel:[0,0,{lx}] op_sel_hi:[1,0,{hx}] neg_lo:[0,0,1] neg_hi:[0,0,1]')
            S.I(f'v_pk_fma_f32 {v(E+16*hb+8+i,2)}, {v(P+8*hb+i,2)}, s[{sC}:{sC+1}], {on} op_sel:[0,0,{ln}] op_sel_hi:[1,0,{hn}] neg_lo:[1,0,0] neg_hi:[1,0,0]')
        for i in range(16):
            S.I(f'v_exp_f32 {v(E+16*hb+i)}, {v(E+16*hb+i)}')
        if hook and hb == 0: hook()
    sm = [T+4, T+5, T+6, T+7]
    tp = [T+8, T+10, T+12, T+14]
    for g in range(4): pk_add(S, tp[g], E+8*g, E+8*g+2)
    for i in (4, 6):
        for g in range(4): pk_add(S, tp[g], tp[g], E+8*g+i)
    for g in range(4): S.I(f'v_add_f32 {v(sm[g])}, {v(tp[g])}, {v(tp[g]+1)}')
    pair_allreduce2(S, [(sm[0], sm[1], 'v_add_f32'), (sm[2], sm[3], 'v_add_f32')], lambda r: S.I(f'v_rcp_f32 {v(r)}, {v(r)}'))
    for g in range(4):
        for i in range(0, 8, 2): pk_mul_bc(S, E+8*g+i, E+8*g+i, sm[g])
        for i in range(4): S.I(f'v_cvt_pk_bf16_f32 {v(OUT+4*g+i)}, {v(E+8*g+2*i)}, {v(E+8*g+2*i+1)}')

def cvt8(S, dst, src, n=8):
    for i in range(n): S.I(f'v_cvt_pk_bf16_f32 {v(dst+i)}, {v(src+2*i)}, {v(src+2*i+1)}')

NSTAMP = 11
SSETS = {
 0: [0,1,2,3,4,5,6,7,8,9],
 1: [0,'Aw0','A0','Aw1','A1','Aw2','A2','Aw3','A3','Aw4'],
 2: [0,5,'B0','B4','Bkv','B8','B12','B16','B22',6],
 3: [0,6,'ust',7,'qs','dd','po',8,'kvf','ost'],
 4: [0,8,'ost','C0','C4','C12','C20','C22','C28',9],
 5: [0,'A4','Aw5','A5','Aw6','A6','hp0','hp1','A7',4],
}
def stamp(S, opt, k, early=False):
    if early or not opt.get('stamps'): return
    L = SSETS[opt.get('sset', 0)]
    if k in L:
        n = L.index(k)
        S.I(f'{"s_memtime" if opt.get("stamps") == 2 else "s_memrealtime"} s[{80+2*n}:{81+2*n}]')
def stamp_out(S, opt):
    if opt.get('stamps'):
        n = NSTAMP - 1
        S.I('s_waitcnt vmcnt(0) lgkmcnt(0)')
        S.I(f'{"s_memtime" if opt.get("stamps") == 2 else "s_memrealtime"} s[{80+2*n}:{81+2*n}]')
        S.I('s_waitcnt lgkmcnt(0)')
        S.I('v_mov_b32 v2, 0')
        for k in range(n + 1): S.I(f'v_writelane_b32 v2, s{80+2*k}, {k}')
        S.I(f's_lshl_b32 s3, s2, 2\ns_add_u32 s3, s3, s{sWAVE}\ns_lshl_b32 s3, s3, 6\ns_add_u32 s3, s3, {STAMP_BASE}')
        S.I('v_lshlrev_b32 v3, 2, v1')
        S.I('s_mov_b64 exec, 0xffff')
        S.I(f'buffer_store_dword v2, v3, s[{RWS}:{RWS+3}], s3 offen')

INB = (2, 3, 4)
XA = [233, 234, 235, 239]
def exch_addr(S):
    for i in range(1, 4):
        S.I(f's_xor_b32 s3, s{sWAVE}, {i}\ns_lshl_b32 s3, s3, 13\nv_add_u32 {v(XA[i])}, s3, v5')
    S.I(f'v_add_u32 {v(XA[0])}, s{sMB}, v5')
def xw(ACC, i, q): return f'ds_write_b128 {v(XA[i])}, {v(ACC+16*i+4*q,4)} offset:{dslot(INB[i-1])+q*1024}'
def exchange_rd(S, ACC):
    S.wait(lg='xw')
    S.I('s_barrier')
    for i in range(1, 4):
        for q in range(4):
            S.I(f'ds_read_b128 {v(ACC+16*i+4*q,4)}, {v(XA[0])} offset:{dslot(INB[i-1])+q*1024}', tag=f'xr{i}')
def exchange(S, ACC):
    for i in range(1, 4):
        for q in range(4): S.I(xw(ACC, i, q), tag='xw')
    exchange_rd(S, ACC)
def exchange_sum(S, ACC):
    for i in range(1, 4):
        S.wait(lg=f'xr{i}')
        for r in range(0, 16, 2): pk_add(S, ACC+r, ACC+r, ACC+16*i+r)

def gen(S, opt):
    vXa, vXb, vW, vW2 = 10, 11, 12, 13
    vO = 10
    vW1, vY = 14, 18
    vH0, vH1, vD0, vD1 = 22, 23, 30, 31
    vXr = 24; vTy = 24
    vWr = 224
    vBr = 226; vTa = 226
    vLP = 8
    FR_ = 32
    AQ, AK, AV = 80, 96, 112
    IP, IM = 216, 220
    QB, WA, WB = 240, 248, 252
    vFL, vFLa = 236, 238
    vSW = 239
    ACC = 64; AF = 32

    def multi_ops(tag, pre, loads):
        ops = []
        for n, l in enumerate(loads):
            def f(n=n, l=l):
                if n == 0: S.I(pre)
                S.I(l, tag=tag)
            ops.append((tag, f))
        return ops
    def run(ops):
        for o in ops: (o[1] if isinstance(o, tuple) else o)()
    def finish_group():
        if S.bg and S.vm and isinstance(S.bg[0], tuple) and S.bg[0][0] in S.vm and not S.bg[0][0].startswith('S'):
            t = S.bg[0][0]
            while S.bg and S.bg[0][0] == t: S.run_bg(1)

    S.I('s_cmp_ge_u32 s2, 256\ns_cbranch_scc1 L_end')
    stamp(S, opt, 0)
    if opt.get('dbgt'): S.I('s_memrealtime s[96:97]\ns_load_dwordx2 s[98:99], s[0:1], 88')
    S.I('s_load_dwordx16 s[36:51], s[0:1], 0')
    S.I('s_load_dwordx8 s[52:59], s[0:1], 64')
    S.I('s_load_dwordx2 s[60:61], s[0:1], 96')
    S.I('s_getpc_b64 s[66:67]')
    S.label('L_pc')
    S.I('s_lshl_b32 s3, s2, 5\ns_add_u32 s3, s3, L_table-L_pc')
    S.I(f's_load_dwordx4 s[{sTB}:{sTB+3}], s[66:67], s3')
    S.I('s_add_u32 s3, s3, 16')
    S.I(f's_load_dwordx2 s[{sTA}:{sTA+1}], s[66:67], s3')
    S.I(f's_and_b32 s{sXCD}, s2, 7\ns_lshr_b32 s{sIDX}, s2, 3')
    S.I(f's_and_b32 s4, s{sIDX}, 7\ns_lshl_b32 s3, s4, 12')
    S.I('v_lshl_add_u32 v7, v0, 4, s3')
    S.I('global_load_dwordx4 v[232:235], v7, s[66:67]', tag='cpf')
    S.I('v_and_b32 v1, 63, v0\nv_lshrrev_b32 v2, 6, v0')
    S.I(f's_lshr_b32 s3, s{sXCD}, 1\ns_lshl_b32 s3, s3, 3\ns_add_u32 s{sSBLK}, s3, s4')
    S.I(f'v_readfirstlane_b32 s{sWAVE}, v2')
    S.I('v_lshrrev_b32 v2, 3, v1\nv_and_b32 v3, 7, v1\nv_lshrrev_b32 v4, 4, v1')
    S.I(f's_and_b32 s3, s{sXCD}, 1\ns_lshl_b32 s3, s3, 2\ns_lshr_b32 s7, s{sIDX}, 3\ns_add_u32 s{sQUAD}, s3, s7')
    S.I(f's_lshl_b32 s5, s{sSBLK}, 16\ns_lshl_b32 s6, s{sQUAD}, 13\ns_add_u32 s6, s6, s5\ns_lshl_b32 s{sMX}, s{sWAVE}, 11\ns_add_u32 s6, s6, s{sMX}')
    S.I('v_lshlrev_b32 v5, 4, v1')
    S.I(f'v_xor_b32 v6, v3, v4\nv_lshlrev_b32 v6, 4, v6\nv_lshl_add_u32 {v(vXa)}, v2, 10, v6')
    S.I(f'v_xor_b32 {v(vXb)}, 64, {v(vXa)}\nv_add_u32 {v(vXb)}, 7168, {v(vXb)}')
    S.I('v_and_b32 v6, 1, v4\nv_lshlrev_b32 v6, 2, v6\nv_xor_b32 v6, v3, v6\nv_lshlrev_b32 v6, 4, v6')
    S.I(f'v_mul_u32_u24 v7, 3072, v2\nv_add_u32 {v(vW)}, v7, v6\nv_add_u32 {v(vW2)}, 24576, {v(vW)}')
    S.I(f's_lshl_b32 s7, s{sWAVE}, 14\ns_add_u32 s{sB0}, s5, s7')
    S.I(f's_mul_i32 s{sB1}, s{sWAVE}, {16*3072}\ns_lshl_b32 s7, s{sQUAD}, 7\ns_add_u32 s{sB1}, s{sB1}, s7')
    S.I(f's_mul_i32 s{sMW}, s{sWAVE}, 6144\ns_add_u32 s{sMW}, s{sMW}, 8192')
    S.I('v_mov_b32 v9, 0')
    S.I(f's_mov_b32 s{RX+2}, {2048*1024}\ns_mov_b32 s{RX+3}, 0x00020000\ns_mov_b32 s{RW+2}, {512*3072}\ns_mov_b32 s{RW+3}, 0x00020000\ns_mov_b32 s{RWS+2}, {WS_SIZE}\ns_mov_b32 s{RWS+3}, 0x00020000')
    S.I('s_waitcnt lgkmcnt(0)')
    S.I(f's_mov_b64 s[{RX}:{RX+1}], s[{PX}:{PX+1}]')
    S.I(f'buffer_load_dwordx4 v[128:131], v5, s[{RX}:{RX+3}], s6 offen', tag='lnx')
    S.I(f'buffer_load_dwordx4 v[132:135], v5, s[{RX}:{RX+3}], s6 offen offset:1024', tag='lnx')
    S.I(f'global_load_dwordx4 v[136:139], v5, s[{PGW}:{PGW+1}]', tag='lnx')
    S.I(f's_mov_b64 s[{RWS}:{RWS+1}], s[{PWS}:{PWS+1}]\ns_mov_b64 s[{RW}:{RW+1}], s[{PWQKV}:{PWQKV+1}]')
    S.I(f'buffer_load_dwordx2 v[164:165], v9, s[{RWS}:{RWS+3}], 0 offen sc1', tag='lnx')

    def st_ops(st):
        slot = (st % 3) * 32768
        tg = f'S{st}'
        ops = multi_ops(tg, f's_and_b32 s{sIX}, s{sTA}, 7\ns_add_u32 m0, s{sMX}, {slot}\ns_lshl_b32 s4, s{sIX}, 7\ns_add_u32 s4, s4, s{sB0}',
            [f'buffer_load_dwordx4 {v(vXa)}, s[{RX}:{RX+3}], s4 offen lds', f'buffer_load_dwordx4 {v(vXb)}, s[{RX}:{RX+3}], s4 offen offset:1024 lds'])
        ops += multi_ops(tg, f's_add_u32 m0, s{sMW}, {slot}\ns_mul_i32 s4, s{sIX}, {64*3072}\ns_add_u32 s4, s4, s{sB1}',
            [f'buffer_load_dwordx4 {v(vW)}, s[{RW}:{RW+3}], s4 offen offset:{seg*1024} lds' for seg in range(3)])
        ops += multi_ops(tg, f's_add_u32 m0, s{sMW}, {slot+3072}\ns_lshr_b32 s{sTA}, s{sTA}, 4',
            [f'buffer_load_dwordx4 {v(vW2)}, s[{RW}:{RW+3}], s4 offen offset:{seg*1024} lds' for seg in range(3)])
        return ops
    o0 = st_ops(0)
    run(o0[:5])
    S.I(f'v_mul_u32_u24 v7, 3584, v2\nv_add_u32 {v(vW1)}, v7, v6')
    S.I(f'v_lshl_add_u32 {v(vY)}, v2, 12, v6\nv_lshl_add_u32 {v(vSW)}, v2, 10, v6')
    S.I('v_lshrrev_b32 v9, 5, v1')
    S.I(f's_mov_b32 s{sC}, {LOG2E}')
    S.I(f's_lshr_b32 s3, s{sWAVE}, 1\ns_lshl_b32 s3, s3, 12')
    S.I('v_and_b32 v6, 31, v1\nv_lshlrev_b32 v6, 7, v6\nv_bfe_u32 v7, v1, 1, 3\nv_xor_b32 v7, v7, v9\nv_lshl_add_u32 v6, v7, 4, v6')
    S.I(f'v_add_u32 {v(vXr)}, s3, v6')
    run(o0[5:6])
    for ks in range(1, 4): S.I(f'v_xor_b32 {v(vXr+ks)}, {32*ks}, {v(vXr)}')
    S.I(f'v_bfe_u32 {v(vLP)}, v1, 2, 2\nv_lshlrev_b32 {v(vLP)}, 7, {v(vLP)}')
    S.I(f'v_bfe_u32 v7, v1, 4, 1\nv_lshl_add_u32 {v(vLP)}, v7, 5, {v(vLP)}')
    S.I(f'v_and_b32 v7, 3, v1\nv_lshl_add_u32 {v(vLP)}, v7, 3, {v(vLP)}')
    S.I(f'v_bfe_u32 v7, v1, 3, 1\nv_lshl_add_u32 {v(vLP)}, v7, 6, {v(vLP)}')
    run(o0[6:7])
    S.I(f's_and_b32 s3, s{sWAVE}, 1\ns_lshl_b32 s3, s3, 6')
    S.I(f'v_xor_b32 v7, s3, {v(vLP)}')
    S.I(f'v_mul_u32_u24 {v(vWr)}, 3072, v9\nv_add_u32 {v(vWr)}, {v(vWr)}, v7\nv_add_u32 {v(vWr)}, 8192, {v(vWr)}')
    run(o0[7:8])
    LDS_SCR = 4 * 32768
    S.I(f's_mul_i32 s3, s{sWAVE}, 2176\ns_add_u32 s3, s3, {LDS_SCR}\nv_add_u32 v188, s3, v5')
    S.I('v_bfe_u32 v6, v1, 2, 2\nv_mul_u32_u24 v6, 1088, v6\nv_lshl_add_u32 v6, v4, 5, v6\nv_and_b32 v7, 3, v1\nv_lshl_add_u32 v6, v7, 3, v6')
    S.I(f's_lshl_b32 s3, s{sWAVE}, 8\ns_add_u32 s3, s3, {LDS_SCR}\nv_add_u32 v189, s3, v6')
    S.I(f's_lshl_b32 s3, s{sSBLK}, 2\ns_lshr_b32 s7, s{sQUAD}, 1\ns_add_u32 s3, s3, s7\ns_lshl_b32 s3, s3, 11\ns_lshl_b32 s7, s{sWAVE}, 19\ns_add_u32 s3, s3, s7')
    S.I(f's_and_b32 s7, s{sQUAD}, 1\ns_lshl_b32 s7, s7, 9\ns_add_u32 s3, s3, s7\ns_add_u32 s{sA68}, s3, {HF}\ns_add_u32 s{sA69}, s{sA68}, 262144')
    S.I('v_and_b32 v7, 31, v1\nv_lshlrev_b32 v7, 4, v7\nv_lshl_add_u32 v190, v9, 10, v7')
    S.I(f's_lshr_b32 s5, s6, 13\ns_lshl_b32 s5, s5, 7\ns_add_u32 s5, s5, {G_}\nv_lshlrev_b32 v191, 2, v1')
    S.I(f's_lshl_b32 s3, s{sWAVE}, 3\ns_add_u32 s3, s3, {LDS_SCR + 8704}\nv_add_u32 v187, s3, v191\nv_add_u32 v186, {LDS_SCR + 8704}, v191')

    def wphi_loads():
        S.I(f's_and_b32 s3, s{sWAVE}, 1\ns_lshl_b32 s3, s3, 1\ns_lshl_b32 s7, s{sQUAD}, 2\ns_add_u32 s3, s3, s7\ns_lshl_b32 s3, s3, 9')
        S.I('v_bfe_u32 v6, v1, 4, 1\nv_lshlrev_b32 v6, 9, v6\nv_and_b32 v7, 15, v1\nv_lshl_add_u32 v6, v7, 1, v6\nv_lshl_add_u32 v6, v9, 7, v6\nv_add_u32 v6, s3, v6')
        for j in range(8):
            d = (j & 3) + 8 * (j >> 2)
            S.I(f'global_load_ushort {v(200 + j)}, v6, s[{PWPHI}:{PWPHI+1}] offset:{d*32}', tag='wphi')
    if opt.get('wphi0', 1): wphi_loads()
    S.wait(vm='lnx')
    stamp(S, opt, 1)
    S.push(st_ops(1) + st_ops(2))
    S.bg_every = opt.get('bgLN', 30)
    fa, fb, fg = 140, 148, 156
    for dst, src in ((fa, 128), (fb, 132), (fg, 136)):
        for i in range(4):
            S.I(f'v_lshlrev_b32 {v(dst+2*i)}, 16, {v(src+i)}\nv_and_b32 {v(dst+2*i+1)}, 0xffff0000, {v(src+i)}')
    S.I(f'v_readfirstlane_b32 s{TAG}, v164\nv_readfirstlane_b32 s{TAG+1}, v165')
    sA, sB_, gA, gB = 172, 173, 174, 175
    S.I(f'v_add_f32 {v(sA)}, {v(fa)}, {v(fa+1)}\nv_add_f32 {v(sB_)}, {v(fb)}, {v(fb+1)}')
    S.I(f'v_mul_f32 {v(gA)}, {v(fa)}, {v(fg)}\nv_mul_f32 {v(gB)}, {v(fb)}, {v(fg)}')
    S.I(f's_mul_i32 s{TAG}, s{TAG}, 1664525\ns_add_u32 s{TAG}, s{TAG}, 1013904223')
    S.I(f's_mul_i32 s{TAG+1}, s{TAG+1}, 22695477\ns_add_u32 s{TAG+1}, s{TAG+1}, 1')
    for i in range(1, 8):
        if i >= 2: S.I(f'v_add_f32 {v(sA)}, {v(sA)}, {v(fa+i)}\nv_add_f32 {v(sB_)}, {v(sB_)}, {v(fb+i)}')
        S.I(f'v_fmac_f32 {v(gA)}, {v(fa+i)}, {v(fg+i)}\nv_fmac_f32 {v(gB)}, {v(fb+i)}, {v(fg+i)}')
    allreduce64(S, [sA, sB_, gA, gB], [176, 177, 178, 179])
    S.I(f'v_mul_f32 {v(sA)}, {f2u(1/512):#x}, {v(sA)}\nv_mul_f32 {v(sB_)}, {f2u(1/512):#x}, {v(sB_)}')
    for i in range(8):
        S.I(f'v_sub_f32 {v(fa+i)}, {v(fa+i)}, {v(sA)}\nv_sub_f32 {v(fb+i)}, {v(fb+i)}, {v(sB_)}')
    S.I(f'v_mul_f32 {v(sA)}, {v(fa)}, {v(fa)}\nv_mul_f32 {v(sB_)}, {v(fb)}, {v(fb)}')
    for i in range(1, 8):
        S.I(f'v_fmac_f32 {v(sA)}, {v(fa+i)}, {v(fa+i)}\nv_fmac_f32 {v(sB_)}, {v(fb+i)}, {v(fb+i)}')
    S.I(f'v_cmp_eq_u32 vcc, 0, v1\nv_cndmask_b32 {v(gA)}, {v(gB)}, {v(gA)}, vcc')
    S.I(f'v_mul_f32 {v(gA)}, s{sC}, {v(gA)}\nv_exp_f32 {v(gA)}, -{v(gA)}\nv_add_f32 {v(gA)}, 1.0, {v(gA)}\nv_rcp_f32 {v(gA)}, {v(gA)}')
    allreduce64(S, [sA, sB_], [176, 177])
    S.I(f'v_mov_b32 v176, {f2u(1e-5):#x}')
    S.I(f'v_fmamk_f32 {v(sA)}, {v(sA)}, {f2u(1/512):#x}, v176\nv_fmamk_f32 {v(sB_)}, {v(sB_)}, {f2u(1/512):#x}, v176')
    S.I(f'v_rsq_f32 {v(sA)}, {v(sA)}\nv_rsq_f32 {v(sB_)}, {v(sB_)}')
    for i in range(8):
        S.I(f'v_mul_f32 {v(fa+i)}, {v(sA)}, {v(fa+i)}\nv_mul_f32 {v(fb+i)}, {v(sB_)}, {v(fb+i)}')
    cvt8(S, 128, fa, 4); cvt8(S, 132, fb, 4)
    S.bg_every = 0
    S.I('ds_write_b128 v188, v[128:131]', tag='lnw')
    S.I('ds_write_b128 v188, v[132:135] offset:1088', tag='lnw')
    S.I('s_mov_b64 exec, 3')
    S.I(f'ds_write_b32 v187, {v(gA)}', tag='lnw')
    S.I('s_mov_b64 exec, -1')

    def nib(t, wide=True):
        return f's_and_b32 s4, s{t}, 15\n' + (f's_lshr_b64 s[{t}:{t+1}], s[{t}:{t+1}], 4' if wide else f's_lshr_b32 s{t}, s{t}, 4')
    def dma_blk(tag, d, t, wide, scale, base, vreg, R):
        sc = f's_lshl_b32 s4, s4, {scale.bit_length()-1}' if scale & (scale - 1) == 0 else f's_mul_i32 s4, s4, {scale}'
        return multi_ops(tag, f'{nib(t, wide)}\ns_add_u32 m0, s{sMB}, {dslot(d)}\n{sc}\ns_add_u32 s4, s4, s{base}',
            [f'buffer_load_dwordx4 {v(vreg+q)}, s[{R}:{R+3}], s4 offen offset:{q*1024} lds' for q in range(4)])
    def dir_blk(tag, dst, t, wide, base, v0_, v1_, R):
        return multi_ops(tag, f'{nib(t, wide)}\ns_lshl_b32 s4, s4, 12\ns_add_u32 s4, s4, s{base}',
            [f'buffer_load_dwordx4 {dst(4*q)}, {v(v1_ if q & 1 else v0_)}, s[{R}:{R+3}], s4 offen offset:{(q>>1)*2048} sc1' for q in range(4)])
    bds = {0: 6, 1: 7, 2: 8, 3: 9, 4: 0, 5: 1, 6: 2, 7: 3, 8: 4, 9: 5, 10: 6, 11: 7, 12: 8, 13: 9, 14: 0, 15: 1}
    def b_ops(p): return dma_blk(f'B{p}', bds[p], sTB, True, 32*3584, sB2, vW1, RW1)
    def h_ops(p): return dir_blk(f'H{p}', lambda o: a_(16*p+o, 4), sT2, True, sB3, vH0, vH1, RH)
    def tr_addrs(base, gshift, wsel):
        if wsel == 'hi': S.I(f's_lshr_b32 s3, s{sWAVE}, 1\ns_lshl_b32 s3, s3, 6')
        else: S.I(f's_and_b32 s3, s{sWAVE}, 1\ns_lshl_b32 s3, s3, 6')
        S.I(f'v_xor_b32 v7, s3, {v(vLP)}\nv_lshl_add_u32 v7, v9, {gshift}, v7\nv_add_u32 {v(base)}, s{sMB}, v7')
        S.I(f'v_xor_b32 {v(base+1)}, 64, {v(base)}')
        for wdw in (1, 2):
            S.I(f'v_add_u32 {v(base+2*wdw)}, {wdw*0x10000:#x}, {v(base)}\nv_add_u32 {v(base+2*wdw+1)}, {wdw*0x10000:#x}, {v(base+1)}')

    def setup1():
        S.I(f's_and_b32 s3, s{sXCD}, 1\ns_lshl_b32 s3, s3, 2\ns_and_b32 s7, s{sIDX}, 3\ns_add_u32 s{sDT}, s3, s7')
        S.I(f's_lshr_b32 s3, s{sXCD}, 1\ns_mul_i32 s7, s3, 7\ns_lshr_b32 s5, s{sIDX}, 2\ns_add_u32 s{sFT}, s7, s5')
        S.I(f's_lshl_b32 s3, s3, 3\ns_add_u32 s{sST}, s3, s5')
        S.I(f's_mov_b64 s[{sT2}:{sT2+1}], s[{sTB}:{sTB+1}]\ns_mov_b32 s{sTO2}, s{sTO}')
        for q in range(1, 4): S.I(f'v_add_u32 {v(vW1+q)}, {q*(8*3584-1024)}, {v(vW1)}')
    def setup2():
        S.I(f's_mul_i32 s{sB2}, s{sWAVE}, {512*3584}\ns_lshl_b32 s3, s{sFT}, 7\ns_add_u32 s{sB2}, s{sB2}, s3')
        S.I(f's_lshl_b32 s{sMB}, s{sWAVE}, 13')
        srd(S, RW1, PW1, 2048*3584)
        S.I(f's_cmp_ge_u32 s{sIDX}, 28\ns_cselect_b32 s{RW1+2}, 0, s{RW1+2}')
        S.I(f's_lshl_b32 s3, s{sSBLK}, 3\ns_add_u32 s3, s3, s{sQUAD}\ns_lshl_b32 s3, s3, 7\ns_add_u32 s{sA69}, s3, {FH}')
    def setup3():
        for ks in range(4): S.I(f'v_add_u32 {v(vXr+4+ks)}, 0x10000, {v(vXr+ks)}')
        S.I(f'v_add_u32 {v(vWr+1)}, 0x10000, {v(vWr)}')
    def setup4():
        S.I(f's_lshl_b32 s{sB3}, s{sWAVE}, 16\ns_lshl_b32 s3, s{sDT}, 18\ns_add_u32 s{sB3}, s{sB3}, s3\ns_add_u32 s{sB3}, s{sB3}, {HF}')
        srd(S, RH, PWS, WS_SIZE)
        S.I(f's_cmp_ge_u32 s{sIDX}, 28\ns_cselect_b32 s{RH+2}, 0, s{RH+2}')
        S.I(f's_mov_b32 s{sMASK}, 0x0000ffff\ns_mov_b32 s{sMASK+1}, 0x0000ffff')
        S.I(f's_and_b32 s3, s{sWAVE}, 1\ns_lshl_b32 s3, s3, 10')
        S.I(f'v_add_u32 {v(vH0)}, s3, v5\nv_xor_b32 {v(vH1)}, 0x400, {v(vH0)}')
    def setup5(): tr_addrs(vBr, 10, 'hi')
    def setup6():
        for q in range(1, 4): S.I(f'v_add_u32 {v(vY+q)}, {q*(8*4096-1024)}, {v(vY)}')
        S.I('v_and_b32 v6, 31, v1\nv_lshlrev_b32 v7, 2, v9\nv_sub_u32 v192, v6, v7')
        S.I('v_mov_b32 v193, 0x3f80\nv_mov_b32 v194, 0x3f800000')
    def ident(base, off):
        def f():
            for jj in range(4):
                f0 = ((2*jj) & 3) + 8*(jj >> 1) + off
                S.I(f'v_cmp_eq_u32 vcc, {f0}, v192\nv_cmp_eq_u32 s[{sEX}:{sEX+1}], {f0+1}, v192\nv_cndmask_b32 {v(base+jj)}, 0, v193, vcc')
                S.I(f'v_cndmask_b32 {v(base+jj)}, {v(base+jj)}, v194, s[{sEX}:{sEX+1}]')
        return f
    def wphi_pack():
        S.wait(vm='wphi')
        for i in range(4): S.I(f'v_lshl_or_b32 {v(168+i)}, {v(201+2*i)}, 16, {v(200+2*i)}')
        for i in range(4):
            S.I(f'v_cndmask_b32 {v(WA+i)}, 0, {v(168+i)}, s[{sMASK}:{sMASK+1}]')
            S.I(f'v_cndmask_b32 {v(WB+i)}, {v(168+i)}, 0, s[{sMASK}:{sMASK+1}]')
    def kv_addr():
        S.I(f's_and_b32 s3, s{sWAVE}, 1\ns_lshl_b32 s7, s{sQUAD}, 1\ns_add_u32 s3, s3, s7\ns_lshl_b32 s3, s3, 5\ns_add_u32 s3, s3, s{sSBLK}')
        S.I(f's_lshr_b32 s5, s{sWAVE}, 1')
        S.I(f's_lshl_b32 s7, s3, 1\ns_add_u32 s7, s7, s5\ns_lshl_b32 s7, s7, 7\ns_add_u32 s{sA69}, s7, {FKV}')
        S.I(f's_mul_i32 s3, s3, {KVB}\ns_add_u32 s{sA68}, s3, {KVP}')
        S.I('s_lshl_b32 s7, s5, 8\ns_add_u32 s7, s7, 4096\nv_lshl_add_u32 v232, v1, 2, s7')
        S.I(f's_xor_b32 s3, s{sWAVE}, 2\ns_lshl_b32 s3, s3, 13\nv_add_u32 v233, s3, v5\nv_add_u32 v234, s{sMB}, v5')
    def h_poll_issue():
        S.I(f'v_lshlrev_b32 {v(vFLa)}, 7, v0\nv_add_u32 {v(vFLa)}, {FH}, {v(vFLa)}')
        S.I(f'buffer_load_dwordx2 {v(vFL,2)}, {v(vFLa)}, s[{RWS}:{RWS+3}], 0 offen sc1', tag='pollH')
    GO, GC, B2R, B1R = 208, 210, 209, 200
    def small_loads():
        S.I('v_bfe_u32 v6, v1, 3, 2\nv_lshlrev_b32 v6, 7, v6\nv_and_b32 v7, 7, v1\nv_lshl_add_u32 v6, v7, 2, v6')
        S.I(f's_lshl_b32 s3, s{sSBLK}, 1\ns_lshr_b32 s7, s{sWAVE}, 1\ns_add_u32 s3, s3, s7\ns_lshl_b32 s3, s3, 9\ns_add_u32 s3, s3, {G_}')
        S.I(f'buffer_load_dword {v(GO)}, v6, s[{RWS}:{RWS+3}], s3 offen sc1', tag='g')
        S.I(f's_lshl_b32 s3, s{sST}, 10\ns_add_u32 s3, s3, {G_}\ns_and_b32 s6, s{sWAVE}, 1\ns_lshl_b32 s7, s6, 9')
        S.I('v_add_u32 v6, s7, v6\nv_xor_b32 v7, 0x200, v6')
        S.I(f'buffer_load_dword {v(GC)}, v6, s[{RWS}:{RWS+3}], s3 offen sc1', tag='g')
        S.I(f'buffer_load_dword {v(GC+1)}, v7, s[{RWS}:{RWS+3}], s3 offen sc1', tag='g')
        S.I(f's_lshl_b32 s3, s{sST}, 7\ns_lshl_b32 s7, s6, 6\ns_add_u32 s3, s3, s7\nv_and_b32 v6, 31, v1\nv_lshl_add_u32 v6, v6, 1, s3')
        S.I(f'global_load_ushort {v(B2R)}, v6, s[{PB2}:{PB2+1}]', tag='g')
        S.I(f's_min_u32 s3, s{sFT}, 27\ns_lshl_b32 s3, s3, 7\ns_lshr_b32 s7, s{sWAVE}, 1\ns_lshl_b32 s7, s7, 6\ns_add_u32 s3, s3, s7')
        S.I('v_lshl_add_u32 v6, v9, 3, s3')
        for q in range(4):
            S.I(f'global_load_dwordx2 {v(B1R+2*q,2)}, v6, s[{PB1}:{PB1+1}] offset:{16*q}', tag='g')
    HP = opt.get('hpoll', 19); HC = opt.get('hchk', 25)
    HFS = opt.get('hfs', 2)
    extras = {1: setup1, 2: setup2, 3: setup3, 6: setup4, 9: setup5, 10: setup6, 13: ident(IP, 0), 14: ident(IM, 16),
              17: wphi_pack, 18: kv_addr, 29: small_loads}
    if not opt.get('wphi0', 1): extras[5] = wphi_loads
    wpos = {1: [0], 2: [1], 3: [2], 4: [3]} if opt.get('wpv', 0) == 0 else {2: [0], 3: [1], 4: [2], 5: [3]}

    def a_reads(kk):
        st, ks = kk >> 2, kk & 3
        slot = st % 3
        hi = slot >> 1
        so = (slot & 1) * 32768
        b = FR_ + 16 * (kk % 3)
        R = [f'ds_read_b128 {v(b,4)}, {v(vXr+4*hi+ks)} offset:{so}']
        for seg in range(3):
            for t in range(2):
                R.append(f'ds_read_b64_tr_b16 {v(b+4+4*seg+2*t,2)}, {v(vWr+hi)} offset:{so + ks*6144 + seg*1024 + t*512}')
        return R
    def a_mfmas(kk):
        b = FR_ + 16 * (kk % 3)
        c = (lambda r: v(r, 16)) if kk else (lambda r: '0')
        return [f'{MF} {v(AQ,16)}, {v(b+4,4)}, {v(b,4)}, {c(AQ)}',
                f'{MF} {v(AK,16)}, {v(b+8,4)}, {v(b,4)}, {c(AK)}',
                f'{MF} {v(AV,16)}, {v(b,4)}, {v(b+12,4)}, {c(AV)}']
    for kk in range(34):
        st, ks = kk >> 2, kk & 3
        R = a_reads(kk) if kk < 32 else []
        M = a_mfmas(kk - 2) if kk >= 2 else []
        if M: S.wait(lg=f'R{kk-2}')
        if ks == 0:
            S.comment(f'stage {st}')
            for m in M[:2]: S.I(m)
            stamp(S, opt, f'Aw{st}')
            if st < 8: S.wait(vm=[f'S{st}'] + (['hst'] if st == HFS else []), lg='all')
            else: S.wait(lg='all')
            S.I('s_barrier')
            stamp(S, opt, f'A{st}')
            if st == 0:
                stamp(S, opt, 2)
                S.I('ds_read_b64_tr_b16 v[128:129], v189', tag='lnr')
                S.I(f'ds_read_b64_tr_b16 v[130:131], v189 offset:{4*1088}', tag='lnr')
                S.I('ds_read_b64_tr_b16 v[132:133], v189 offset:128', tag='lnr')
                S.I(f'ds_read_b64_tr_b16 v[134:135], v189 offset:{4*1088+128}', tag='lnr')
                S.I('ds_read_b32 v136, v186', tag='lnr')
            if st == 4: stamp(S, opt, 3)
            if 1 <= st <= 5: S.push(st_ops(st + 2))
            for p in wpos.get(st, []): S.push(b_ops(p))
            if st == 6: S.push(b_ops(4))
            if st == 7: S.push(b_ops(6) + h_ops(2) + b_ops(7) + h_ops(3))
            if st == 8: S.push(b_ops(8) + h_ops(4))
            for r in R[:4]: S.I(r, tag=f'R{kk}')
            if st == 0:
                S.wait(lg='lnr')
                lab = S.newlabel('L_ng')
                S.I(f's_cmp_lg_u32 s{sWAVE}, 0\ns_cbranch_scc1 {lab}')
                S.I('s_mov_b64 exec, 0xff')
                sv = list(S.vm)
                S.I(f'buffer_store_dword v136, v191, s[{RWS}:{RWS+3}], s5 offen sc1')
                S.vm = sv
                S.I('s_mov_b64 exec, -1')
                S.label(lab)
                S.I(f'buffer_store_dwordx4 v[128:131], v190, s[{RWS}:{RWS+3}], s{sA68} offen sc1', tag='hst')
                S.I(f'buffer_store_dwordx4 v[132:135], v190, s[{RWS}:{RWS+3}], s{sA69} offen sc1', tag='hst')
            npop = 3 if (len(S.bg) > 8 and st <= 5) else 2
            S.run_bg(1)
            for m in M[2:]: S.I(m)
            for r in R[4:]: S.I(r, tag=f'R{kk}')
            S.run_bg(npop - 1)
            if st == HFS: set_flag_w0(S, sA69)
        else:
            split = [R[0:3], R[3:5], R[5:7]]
            for j in range(3):
                if M: S.I(M[j])
                for r in split[j]: S.I(r, tag=f'R{kk}')
                if j == 1 and kk in extras: extras[kk]()
                if j != 1 or npop == 3: S.run_bg(1)
        if kk == HP: h_poll_issue()
        if kk == HC:
            stamp(S, opt, 'hp0')
            poll(S, vFL, vFLa, 'pollH')
            stamp(S, opt, 'hp1')
            S.push(h_ops(0) + b_ops(5) + h_ops(1))
    assert 24 <= HC < 28
    stamp(S, opt, 4)
    for p in range(5, 9): S.push(h_ops(p))
    S.bg_every = opt.get('bgA', 9)
    KB = 128; P = 136; E = 152; T = 184; PHI = 136
    cvt8(S, KB, AK)
    S.I(f'{MF} {v(P,16)}, {v(WA,4)}, {v(KB,4)}, 0')
    S.I(f'{MF} {v(P,16)}, {v(WB,4)}, {v(KB+4,4)}, {v(P,16)}')
    VBF = 32; VA = 40; VB = 48
    cvt8(S, VBF, AV)
    for i in range(8):
        S.I(f'v_cndmask_b32 {v(VA+i)}, 0, {v(VBF+i)}, s[{sMASK}:{sMASK+1}]')
        S.I(f'v_cndmask_b32 {v(VB+i)}, {v(VBF+i)}, 0, s[{sMASK}:{sMASK+1}]')
    softmax_pm(S, P, E, T, PHI)
    DA, DB = E, E + 16
    S.I(f'{MF} {v(DA,16)}, {v(PHI,4)}, {v(IP,4)}, 0')
    S.I(f'{MF} {v(DB,16)}, {v(PHI+8,4)}, {v(IP,4)}, 0')
    S.I(f'{MF} {v(DA,16)}, {v(PHI+4,4)}, {v(IM,4)}, {v(DA,16)}')
    S.I(f'{MF} {v(DB,16)}, {v(PHI+12,4)}, {v(IM,4)}, {v(DB,16)}')
    cvt8(S, QB, AQ)
    S.I(f's_cmp_eq_u32 s5, 0\ns_cselect_b64 s[{sEX}:{sEX+1}], -1, 0')
    PT = 64
    cvt8(S, PT, DA); cvt8(S, PT+8, DB)
    E1 = AK
    S.I(f'{MF} {v(E1,16)}, {v(PT,4)}, {v(VA,4)}, 0')
    S.I(f'{MF} {v(E1,16)}, {v(PT+4,4)}, {v(VA+4,4)}, {v(E1,16)}')
    S.I(f'{MF} {v(E1,16)}, {v(PT+8,4)}, {v(VB,4)}, {v(E1,16)}')
    S.I(f'{MF} {v(E1,16)}, {v(PT+12,4)}, {v(VB+4,4)}, {v(E1,16)}')
    zA, zB = T, T+1
    pk_add(S, T+2, DA, DA+2); pk_add(S, T+4, DB, DB+2)
    for i in range(4, 16, 2):
        pk_add(S, T+2, T+2, DA+i); pk_add(S, T+4, T+4, DB+i)
    S.I(f'v_add_f32 {v(zA)}, {v(T+2)}, {v(T+3)}\nv_add_f32 {v(zB)}, {v(T+4)}, {v(T+5)}')
    S.I(f'v_permlane32_swap_b32 {v(zA)}, {v(zB)}')
    S.I(f'v_add_f32 {v(zA)}, {v(zA)}, {v(zB)}')
    S.I(f'buffer_store_dword {v(zA)}, v232, s[{RWS}:{RWS+3}], s{sA68} offen sc1', tag='kvst')
    KP, SD = 128, 136
    for i in range(8):
        S.I(f'v_cndmask_b32 {v(SD+i)}, {v(E1+i)}, {v(E1+8+i)}, s[{sEX}:{sEX+1}]')
    KVX = dslot(5)
    S.I(f'ds_write_b128 v233, {v(SD,4)} offset:{KVX}', tag='kvx')
    S.I(f'ds_write_b128 v233, {v(SD+4,4)} offset:{KVX+1024}', tag='kvx')
    for i in range(8):
        S.I(f'v_cndmask_b32 {v(KP+i)}, {v(E1+8+i)}, {v(E1+i)}, s[{sEX}:{sEX+1}]')
    RW2, RWO = RX, RW
    srd(S, RW2, PW2, 1792*4096)
    srd(S, RWO, PWO, 512*1024)
    S.I(f's_lshl_b32 s3, s5, 11\ns_add_u32 s{sA68}, s{sA68}, s3')
    S.wait(lg='kvx')
    S.I('s_barrier')
    S.I(f'ds_read_b128 {v(SD,4)}, v234 offset:{KVX}', tag='kvr')
    S.I(f'ds_read_b128 {v(SD+4,4)}, v234 offset:{KVX+1024}', tag='kvr')
    S.I(f's_mul_i32 s{sB0}, s{sWAVE}, {28*16*4096}\ns_lshl_b32 s3, s{sST}, 7\ns_add_u32 s{sB0}, s{sB0}, s3')
    S.I(f's_lshl_b32 s{sB1}, s{sWAVE}, 17\ns_lshl_b32 s3, s{sDT}, 7\ns_add_u32 s{sB1}, s{sB1}, s3')
    S.I(f's_mov_b64 s[{sMX}:{sMX+1}], s[{sTC}:{sTC+1}]')
    tr_addrs(vTy, 9, 'lo')
    for q in range(4): S.I(f'v_add_u32 {v(vO+q)}, {q*(8*1024-1024)}, {v(vSW)}')
    S.wait(lg='kvr')
    for i in range(0, 8, 2): pk_add(S, KP+i, KP+i, SD+i)
    S.I(f'buffer_store_dwordx4 {v(KP,4)}, v5, s[{RWS}:{RWS+3}], s{sA68} offen sc1', tag='kvst')
    S.I(f'buffer_store_dwordx4 {v(KP+4,4)}, v5, s[{RWS}:{RWS+3}], s{sA68} offen offset:1024 sc1', tag='kvst')
    S.bg_every = 0
    stamp(S, opt, 5)

    def y_ops(d, tag): return dma_blk(tag, d, sTC, True, 32*4096, sB0, vY, RW2)
    def wo_ops(d, tag): return dma_blk(tag, d, sTO, False, 32*1024, sB1, vO, RWO)
    def tr_list(dst, base, ad, tstep):
        wdw = ad >> 16; so = ad & 0xffff
        return [f'ds_read_b64_tr_b16 {dst(4*fr+2*t)}, {v(base+2*wdw+fr)} offset:{so+t*tstep}' for fr in range(2) for t in range(2)]

    wp = opt.get('w0pos', 1)
    order = [('Y', k) for k in range(wp)] + [('W', 0)] + [('Y', k) for k in range(wp, 14)] + [('W', k) for k in range(1, 4)]
    class Plan: pass
    PL = Plan(); PL.nd = 0; PL.nt = 0; PL.slot = {}; PL.free = []; PL.pending = []; PL.log = []
    def next_D():
        if PL.nd >= len(order): return None
        kind, k = order[PL.nd]
        ok = lambda s_: not (kind == 'W' and s_ in INB)
        pre = None
        cand = [s_ for s_ in PL.free if ok(s_)]
        if cand:
            s_ = cand[0]; PL.free.remove(s_)
        else:
            cand = [e for e in PL.pending if ok(e[0])]
            if not cand: return None
            e = cand[0]; PL.pending.remove(e); s_, pre = e
        PL.nd += 1
        PL.slot[(kind, k)] = s_
        PL.log.append(('D', kind, k))
        ops = y_ops(s_, f'Y{k}') if kind == 'Y' else wo_ops(s_, f'W{k}')
        if pre:
            t0, f0 = ops[0]
            ops[0] = (t0, lambda f0=f0, tg=pre: (S.wait(lg=tg), f0()))
        return ops
    def push_D():
        ops = next_D()
        if ops: S.push(ops)
        return bool(ops)
    def push_T():
        k = PL.nt
        if k >= 14 or ('Y', k) not in PL.slot: return False
        PL.nt += 1
        PL.log.append(('T', 'Y', k))
        s_ = PL.slot[('Y', k)]
        PL.pending.append((s_, f'T{k}'))
        for h2 in range(2):
            def f(h2=h2):
                S.wait(vm=f'Y{k}')
                for r in tr_list(lambda o: a_(16*k+8*h2+o, 2), vTy, dslot(s_) + 2048*h2, 1024): S.I(r, tag=f'T{k}')
            S.push([(f'TT{k}', f)])
        return True

    S.I(f's_cmp_ge_u32 s{sIDX}, 28\ns_cbranch_scc1 L_reducer')
    vm_at_branch = list(S.vm)

    def o_poll_issue():
        S.I(f's_and_b32 s3, s{sWAVE}, 1\ns_lshl_b32 s3, s3, 9\ns_lshl_b32 s7, s{sQUAD}, 10\ns_add_u32 s3, s3, s7\ns_add_u32 s3, s3, {FR}')
        S.I(f'v_and_b32 v7, 3, v1\nv_lshl_add_u32 {v(vFLa)}, v7, 7, s3')
        S.I(f'buffer_load_dwordx2 {v(vFL,2)}, {v(vFLa)}, s[{RWS}:{RWS+3}], 0 offen sc1', tag='pollO')

    S.push(b_ops(9) + h_ops(9))
    LAST = (1, 2, 3, 0)
    G = opt.get('grp', 6)
    fbuf = [32, 40, 48, 56, 152, 160, 168, 176]
    NB = max(3, G)
    def fb_(i): return fbuf[i % NB]
    def b_R(i): return tr_list(lambda o: v(fb_(i)+o, 2), vBr, dslot(bds[i >> 1]) + 2048 * (i & 1), 512)
    def b_M(j, t):
        c = v(ACC+16*t, 16)
        return f'{MF} {c}, {v(fb_(j)+4*(t>>1),4)}, {a_(8*j+4*(t&1),4)}, {c if j else 0}'
    def kvf_loads():
        S.I(f's_and_b32 s3, s{sWAVE}, 1\ns_lshl_b32 s3, s3, 1\ns_lshl_b32 s7, s{sQUAD}, 2\ns_add_u32 s5, s3, s7\ns_lshl_b32 s3, s5, 11\ns_add_u32 s3, s3, {KVF}')
        for i in range(4):
            S.I(f'buffer_load_dwordx4 {v(32+4*i,4)}, v5, s[{RWS}:{RWS+3}], s3 offen offset:{i*1024} sc1', tag='kvf')
        S.I(f's_lshr_b32 s7, s{sWAVE}, 1')
    JN = 32 - G
    nread = 0
    freed = set()
    def release(j):
        if j & 1:
            p = j >> 1
            if p + 10 < 16: S.push(b_ops(p + 10) + h_ops(p + 10))
            elif bds[p] not in INB: PL.free.append(bds[p])
    for j in range(-2, JN):
        M = []
        if j >= 0:
            S.wait(vm=f'H{j>>1}', lg=f'R{j}')
            M = [b_M(j, t) for t in range(4)]
            release(j)
            if len(S.bg) < 2 and j >= 12 and PL.nd < opt.get('ndB', 2): push_D()
        want = j + 2
        if j >= JN - (G - 2): want = min(31, j + 2 + (j - (JN - (G - 2)) + 1))
        want = min(want, j - 1 + NB, 31)
        R = []
        while nread <= want:
            R += [(nread, r) for r in b_R(nread)]; nread += 1
        npop = 3 if ((j + 2) % opt.get('pop3', 4) == 0) else 2
        pos = {2: (0, 2), 3: (0, 1, 3), 4: (0, 1, 2, 3)}[npop]
        per = len(R) // 4
        for n in range(4):
            if M: S.I(M[n])
            for (ii, r) in R[n*per:(n+1)*per]:
                S.wait(vm=f'B{ii>>1}')
                S.I(r, tag=f'R{ii}')
            if n in pos: S.run_bg(1)
        stamp(S, opt, f'B{j}')
        if j == opt.get('kvflag', 2):
            S.wait(vm='kvst'); set_flag(S, sA69)
            stamp(S, opt, 'Bkv')
        if j == 14:
            S.wait(vm='g')
            for q in range(4):
                for h2 in range(2):
                    S.I(f'v_lshlrev_b32 {v(128+4*q+2*h2)}, 16, {v(B1R+2*q+h2)}\nv_and_b32 {v(128+4*q+2*h2+1)}, 0xffff0000, {v(B1R+2*q+h2)}')
        if j == 20:
            S.I('s_barrier')
        if j == 18: exch_addr(S)
        if j == 16:
            S.I(f's_mul_i32 s3, s{sDT}, {112*2048}\ns_lshl_b32 s7, s{sFT}, 13\ns_add_u32 s3, s3, s7\ns_lshr_b32 s7, s{sWAVE}, 1\ns_lshl_b32 s7, s7, 12\ns_add_u32 s3, s3, s7')
            S.I(f's_and_b32 s7, s{sWAVE}, 1\ns_lshl_b32 s7, s7, 10\ns_add_u32 s3, s3, s7\ns_add_u32 s{sA68}, s3, {UF}')
            S.I(f's_mul_i32 s3, s{sDT}, 28\ns_add_u32 s3, s3, s{sFT}\ns_lshl_b32 s3, s3, 7\ns_add_u32 s{sA69}, s3, {FU}')
    assert JN > 20
    while nread <= 31:
        for r in b_R(nread):
            S.wait(vm=f'B{nread>>1}'); S.I(r, tag=f'R{nread}')
        nread += 1
    W = []
    for n, t in enumerate(LAST):
        for j in range(JN, 32):
            if n == 0:
                S.wait(vm=f'H{j>>1}', lg=f'R{j}')
                release(j)
            S.I(b_M(j, t))
            if j >= JN + 2 and W: S.I(W.pop(0), tag='xw')
            elif (j - JN) % 2 == 0:
                if len(S.bg) < 1 and PL.nd < opt.get('ndB', 2): push_D()
                S.run_bg(1)
        if t: W += [xw(ACC, t, q) for q in range(4)]
    for w_ in W: S.I(w_, tag='xw')
    stamp(S, opt, 6)
    exchange_rd(S, ACC)
    stamp(S, opt, 'x2')
    def fill(n):
        for _ in range(n):
            push_D()
            if PL.nd - PL.nt >= opt.get('tlag', 5): push_T()
    fill(opt.get('ndE', 3))
    S.bg_every = opt.get('bgB', 9)
    Bf = 128
    for r in range(0, 16, 2): pk_add(S, ACC+r, ACC+r, Bf+r)
    exchange_sum(S, ACC)
    k0 = 2 * math.sqrt(2 / math.pi) * math.log2(math.e); k1 = k0 * 0.044715
    S.I(f's_mov_b32 s6, {f2u(-k1):#x}\nv_mov_b32 v2, {f2u(-k0):#x}')
    Tm = 144
    for r in range(0, 16, 2): S.I(f'v_pk_mul_f32 {v(Tm+r,2)}, {v(ACC+r,2)}, {v(ACC+r,2)}')
    for r in range(0, 16, 2): S.I(f'v_pk_fma_f32 {v(Tm+r,2)}, {v(Tm+r,2)}, s[6:7], v[2:3] op_sel_hi:[1,0,0]')
    for r in range(0, 16, 2): S.I(f'v_pk_mul_f32 {v(Tm+r,2)}, {v(Tm+r,2)}, {v(ACC+r,2)}')
    for r in range(16): S.I(f'v_exp_f32 {v(Tm+r)}, {v(Tm+r)}')
    for r in range(0, 16, 2): S.I(f'v_pk_add_f32 {v(Tm+r,2)}, {v(Tm+r,2)}, 1.0 op_sel_hi:[1,0]')
    for r in range(16): S.I(f'v_rcp_f32 {v(Tm+r)}, {v(Tm+r)}')
    for r in range(0, 16, 2): S.I(f'v_pk_mul_f32 {v(ACC+r,2)}, {v(ACC+r,2)}, {v(Tm+r,2)}')
    cvt8(S, Bf, ACC)
    S.I(f'buffer_store_dwordx4 {v(Bf,4)}, v5, s[{RWS}:{RWS+3}], s{sA68} offen sc1', tag='ust')
    S.I(f'buffer_store_dwordx4 {v(Bf+4,4)}, v5, s[{RWS}:{RWS+3}], s{sA68} offen offset:2048 sc1', tag='ust')
    stamp(S, opt, 'ust')
    S.bg_every = 0
    S.run_bg()
    lab = S.newlabel('L_noE')
    S.I(f's_lshl_b32 s3, s2, 2\ns_add_u32 s3, s3, s{sWAVE}\ns_cmp_lg_u32 s3, 0\ns_cbranch_scc1 {lab}')
    S.I('s_mov_b32 s3, 0')
    sv = list(S.vm); set_flag(S, 3); S.vm = sv
    S.label(lab)
    S.I('s_branch L_join')
    main_vm = list(S.vm); main_lg = list(S.lg)

    S.hist = []; S.alts = []
    S.label('L_reducer')
    S.vm = vm_at_branch; S.lg = []
    assert not S.bg
    sHD = sIX
    S.I(f's_lshl_b32 s{sHD}, s{sXCD}, 2\ns_add_u32 s{sHD}, s{sHD}, s{sIDX}\ns_sub_u32 s{sHD}, s{sHD}, 28')
    S.I(f's_lshr_b32 s3, s{sHD}, 1\ns_lshl_b32 s4, s3, 13\ns_lshl_b32 s5, s{sWAVE}, 11\ns_add_u32 s4, s4, s5\ns_add_u32 s4, s4, {FKV}')
    S.I(f'v_and_b32 v6, 15, v1\nv_lshl_add_u32 {v(vFLa)}, v6, 7, s4')
    S.I(f's_and_b32 s5, s{sHD}, 1')
    S.I('v_and_b32 v6, 15, v1\nv_lshl_add_u32 v6, v9, 5, v6\nv_lshlrev_b32 v6, 4, v6\ns_lshl_b32 s4, s5, 8\nv_add_u32 v6, s4, v6')
    S.I('v_bfe_u32 v7, v1, 3, 1\nv_lshlrev_b32 v7, 8, v7\nv_lshl_add_u32 v7, v9, 4, v7\ns_lshl_b32 s4, s5, 7\ns_add_u32 s4, s4, 4096\nv_add_u32 v7, s4, v7')
    for q in range(4):
        S.I(f'v_add_u32 v2, {q*1024}, v6\nv_add_u32 v3, {q*32}, v7\nv_cndmask_b32 {v(60+q)}, v3, v2, s[{sMASK}:{sMASK+1}]')
    S.I(f's_lshl_b32 s3, s3, 5\ns_lshl_b32 s4, s{sWAVE}, 3\ns_add_u32 s3, s3, s4\ns_mul_i32 s3, s3, {KVB}\ns_add_u32 s{sA68}, s3, {KVP}')
    exch_addr(S)
    S.wait(vm='all')
    set_flag(S, sA69)
    for e in PL.log:
        s_ = PL.slot[(e[1], e[2])]
        assert s_ not in INB
        if e[0] == 'D':
            S.wait(lg='all')
            run(y_ops(s_, f'rp{e[2]}') if e[1] == 'Y' else wo_ops(s_, 'rp'))
        else:
            S.wait(vm=f'rp{e[2]}')
            for h2 in range(2):
                for r in tr_list(lambda o: a_(16*e[2]+8*h2+o, 2), vTy, dslot(s_) + 2048*h2, 1024): S.I(r, tag='rt')
    RB = 64
    S.I(f's_mov_b32 s5, {SPIN_MAX}')
    S.I('s_mov_b64 vcc, -1')
    for sb in range(8):
        lp = S.newlabel('L_rp'); ok = S.newlabel('L_rok')
        S.label(lp)
        S.I(f's_and_b32 s3, vcc_lo, {3 << (2*sb)}')
        S.I(f's_cbranch_scc0 {ok}')
        S.raw(f'    buffer_load_dwordx2 {v(vFL,2)}, {v(vFLa)}, s[{RWS}:{RWS+3}], 0 offen sc1')
        S.raw('    s_waitcnt vmcnt(0)')
        S.I(f'v_cmp_ne_u64 vcc, s[{TAG}:{TAG+1}], {v(vFL,2)}')
        S.I('s_sub_u32 s5, s5, 1\ns_cmp_gt_i32 s5, 0\ns_nop 2')
        S.I(f's_cbranch_scc1 {lp}')
        S.label(ok)
        for q in range(4):
            S.I(f'buffer_load_dwordx4 {v(RB+16*sb+4*q,4)}, {v(60+q)}, s[{RWS}:{RWS+3}], s{sA68} offen sc1', tag=f'P{sb}')
        S.I(f's_add_u32 s{sA68}, s{sA68}, {KVB}')
    stamp(S, opt, 6)
    for sb in range(1, 8):
        S.wait(vm=f'P{sb}')
        for r in range(0, 16, 2): pk_add(S, RB+r, RB+r, RB+16*sb+r)
    assert dslot(2) == 0
    for q in range(4): S.I(f'ds_write_b128 {v(XA[0])}, {v(RB+4*q,4)} offset:{q*1024}', tag='rw')
    S.wait(lg='rw')
    S.I('s_barrier')
    S.I(f's_lshl_b32 s3, s{sWAVE}, 11\ns_and_b32 s3, s3, 2048\nv_add_u32 v6, s3, v5')
    for src in range(4):
        for q2 in range(2):
            S.I(f'ds_read_b128 {v(RB+8*src+4*q2,4)}, v6 offset:{src*8192+q2*1024}', tag='rr')
    S.wait(lg='rr')
    S.I('s_barrier')
    for src in range(1, 4):
        for r in range(8): S.I(f'v_add_f32 {v(RB+r)}, {v(RB+r)}, {v(RB+8*src+r)}')
    for r in range(8):
        S.I(f'v_add_f32_dpp {v(RB+r)}, {v(RB+r)}, {v(RB+r)} row_ror:8 row_mask:0xa bank_mask:0xf')
    cvt8(S, RB+8, RB, 4)
    S.I(f's_lshl_b32 s3, s{sHD}, 1\ns_and_b32 s7, s{sWAVE}, 1\ns_add_u32 s3, s3, s7\ns_lshr_b32 s7, s{sWAVE}, 1')
    S.I(f's_lshl_b32 s4, s3, 10\ns_lshl_b32 s5, s7, 16\ns_add_u32 s4, s4, s5\ns_add_u32 s4, s4, {KVF}')
    S.I(f's_lshl_b32 s3, s3, 7\ns_lshl_b32 s5, s7, 13\ns_add_u32 s3, s3, s5\ns_add_u32 s{sA69}, s3, {FR}')
    S.I(f'buffer_store_dwordx4 {v(RB+8,4)}, v5, s[{RWS}:{RWS+3}], s4 offen sc1', tag='kvf')
    S.raw('    s_waitcnt vmcnt(0) lgkmcnt(0)')
    S.vm = []
    set_flag(S, sA69)

    S.label('L_join')
    S.vm = main_vm; S.lg = main_lg
    PL.free += list(INB)
    NPRE = opt.get('npre', 0)
    P = 64; E = 80; T = 112; PHIQ = 48
    vF2, vF2a = 212, 214
    S.I(f'{MF} {v(P,16)}, {v(WA,4)}, {v(QB,4)}, 0')
    S.I(f'{MF} {v(P,16)}, {v(WB,4)}, {v(QB+4,4)}, {v(P,16)}')
    fill(opt.get('ndQ', 5))
    tr_addrs(vTa, 9, 'hi')
    S.bg_every = opt.get('bgQ0', 12)
    def hook():
        S.bg_every = 0
        stamp(S, opt, 'ua')
        S.wait(vm='ust')
        S.I('s_barrier')
        set_flag_w0(S, sA69)
        stamp(S, opt, 7)
        S.bg_every = opt.get('bgQ', 5)
    softmax_pm(S, P, E, T, PHIQ, hook)
    S.I(f's_and_b32 s3, s{sWAVE}, 1\ns_lshl_b32 s3, s3, 9\ns_lshl_b32 s7, s{sQUAD}, 10\ns_add_u32 s3, s3, s7\ns_add_u32 s3, s3, {FR}')
    S.I(f'v_and_b32 v7, 3, v1\nv_lshl_add_u32 {v(vF2a)}, v7, 7, s3')
    S.I(f's_mul_i32 s3, s{sDT}, {28*128}\ns_mul_i32 s7, s{sWAVE}, {7*128}\ns_add_u32 s3, s3, s7\ns_add_u32 s3, s3, {FU}')
    S.I(f'v_min_u32 v6, 6, v1\nv_lshl_add_u32 {v(vFLa)}, v6, 7, s3')
    sBU, sBO = sB2, sB3
    S.I(f's_mul_i32 s{sBU}, s{sWAVE}, {28*2048}\ns_mul_i32 s3, s{sDT}, {112*2048}\ns_add_u32 s{sBU}, s{sBU}, s3\ns_add_u32 s{sBU}, s{sBU}, {UF}')
    S.I(f's_lshl_b32 s{sBO}, s{sWAVE}, 14\ns_lshl_b32 s3, s{sST}, 16\ns_add_u32 s{sBO}, s{sBO}, s3\ns_add_u32 s{sBO}, s{sBO}, {OF}')
    S.I(f's_lshr_b32 s3, s{sWAVE}, 1\ns_lshl_b32 s3, s3, 10')
    S.I(f'v_add_u32 {v(vD0)}, s3, v5\nv_xor_b32 {v(vD1)}, 0x400, {v(vD0)}')
    ROUT = RW1
    srd(S, ROUT, POUT, 2048*1024)
    S.bg_every = 0
    S.run_bg()
    stamp(S, opt, 'qs')
    while PL.nd < NPRE:
        a = push_D(); b = push_T(); S.run_bg()
        assert a or b
    S.I(f'buffer_load_dwordx2 {v(vF2,2)}, {v(vF2a)}, s[{RWS}:{RWS+3}], 0 offen sc1', tag='pollO')
    S.I(f'buffer_load_dwordx2 {v(vFL,2)}, {v(vFLa)}, s[{RWS}:{RWS+3}], 0 offen sc1', tag='pollU')
    fill(opt.get('ndK', 2)); S.run_bg()
    stamp(S, opt, 'dd')
    poll(S, vF2, vF2a, 'pollO')
    stamp(S, opt, 'po')
    kvf_loads()
    S.I(f's_lshl_b32 s3, s{sSBLK}, 16\ns_lshl_b32 s5, s5, 11\ns_add_u32 s3, s3, s5\ns_lshl_b32 s7, s7, 10\ns_add_u32 s3, s3, s7\ns_add_u32 s{sA68}, s3, {OF}')
    S.I(f's_lshl_b32 s3, s{sSBLK}, 3\ns_add_u32 s3, s3, s{sQUAD}\ns_lshl_b32 s3, s3, 7\ns_add_u32 s{sA69}, s3, {FO}')
    poll(S, vFL, vFLa, 'pollU')
    stamp(S, opt, 8)

    DR = 128; ND = 5
    def ureg(p): return DR + 16 * (p % ND) if p < 16 else 32 + 16 * (p - 16)
    def u_ops(p):
        r = ureg(p)
        if p < 14: return dir_blk(f'U{p}', lambda o: v(r+o, 4), sMX, True, sBU, vD0, vD1, RWS)
        return dir_blk(f'U{p}', lambda o: v(r+o, 4), sTO2, False, sBO, vH0, vH1, RWS)
    PD = opt.get('pdC', 3)
    for p in range(PD):
        run(u_ops(p))
        if PL.nt < 3 and push_T(): S.run_bg()
    S.I(f's_lshl_b32 s3, s{sST}, 10\ns_lshl_b32 s7, s{sWAVE}, 8\ns_add_u32 s3, s3, s7\ns_add_u32 s3, s3, {FO}')
    S.I(f'v_and_b32 v6, 1, v1\nv_lshl_add_u32 {v(vFLa)}, v6, 7, s3')
    S.wait(vm='kvf')
    stamp(S, opt, 'kvf')
    for hb in range(2):
        O = 64 + 16*hb
        S.I(f'{MF} {v(O,16)}, {v(32+8*hb,4)}, {v(PHIQ+8*hb,4)}, 0')
        S.I(f'{MF} {v(O,16)}, {v(36+8*hb,4)}, {v(PHIQ+8*hb+4,4)}, {v(O,16)}')
    for hb in range(2):
        O = 64 + 16*hb
        S.I(f'v_add_f32 {v(O+8)}, {f2u(1e-6):#x}, {v(O+8)}\nv_rcp_f32 {v(O+8)}, {v(O+8)}\nv_mul_f32 {v(O+8)}, {v(GO)}, {v(O+8)}')
        for r in range(0, 8, 2): pk_mul_bc(S, O+r, O+r, O+8)
        cvt8(S, 216+4*hb, O, 4)
        S.I(f'buffer_store_dwordx4 {v(216+4*hb,4)}, v5, s[{RWS}:{RWS+3}], s{sA68} offen offset:{2048*hb} sc1', tag='ost')
    stamp(S, opt, 'ost')
    nW = 0
    WT0 = opt.get('wt0', 18)
    for i in range(28):
        p = i >> 1
        r = ureg(p) + 8 * (i & 1)
        if i == 2 * (14 - PD) - 5:
            S.I(f'buffer_load_dwordx2 {v(vFL,2)}, {v(vFLa)}, s[{RWS}:{RWS+3}], 0 offen sc1', tag='pollO2')
        S.flush_tag(f'TT{p}')
        assert PL.nt > p
        S.wait(vm=f'U{p}', lg=f'T{p}')
        if i & 1 == 0:
            if p + PD == 14:
                poll(S, vFL, vFLa, 'pollO2')
            if PL.nd < len(order): push_D()
            if p + PD < 14: S.push(u_ops(p + PD))
            push_T()
        q = i - 2 * (14 - PD)
        if 0 <= q < 4:
            assert q >= 2 or (14 + q) - ND < p
            S.push(u_ops(14 + q))
        R = []
        if i >= WT0 and nW < 8:
            assert ('W', nW >> 1) in PL.slot
            S.wait(vm=f'W{nW>>1}')
            R = tr_list(lambda o: a_(8*nW+o, 2), vTa, dslot(PL.slot[('W', nW >> 1)]) + 2048 * (nW & 1), 1024)
            nW += 1
        tot = len(S.bg) if (i & 1 or q >= 0) else (len(S.bg) + 1) // 2
        for n, t in enumerate(LAST if i == 27 else range(4)):
            i1, i0 = t >> 1, t & 1
            c = v(ACC+16*t, 16)
            S.I(f'{MF} {c}, {v(r+4*i1,4)}, {a_(8*i+4*i0,4)}, {c if i else 0}')
            if R: S.I(R[n], tag='RW')
            k_ = (tot * (n + 1) + 3) // 4 - (tot * n + 3) // 4
            if k_: S.run_bg(k_)
        stamp(S, opt, f'C{i}')
        if i == opt.get('oflag', 3):
            S.wait(vm='ost')
            S.I('s_barrier')
            set_flag_w0(S, sA69)
        if i == 26:
            assert PL.nt == 14 and not any(o[0].startswith('TT') for o in S.bg)
            S.I('s_barrier')
        if i == 16:
            S.I(f'v_sub_f32 v14, 1.0, {v(GC)}\nv_sub_f32 v15, 1.0, {v(GC+1)}\nv_lshlrev_b32 v16, 16, {v(B2R)}\nv_mul_f32 v16, v14, v16')
            S.I(f's_lshl_b32 s3, s{sST}, 16\ns_and_b32 s7, s{sWAVE}, 1\ns_lshl_b32 s7, s7, 15\ns_add_u32 s3, s3, s7\ns_lshl_b32 s7, s{sDT}, 7\ns_add_u32 s3, s3, s7\ns_lshr_b32 s7, s{sWAVE}, 1\ns_lshl_b32 s7, s7, 6\ns_add_u32 s{sA68}, s3, s7')
            S.I('v_and_b32 v6, 31, v1\nv_lshlrev_b32 v6, 10, v6\nv_lshl_add_u32 v17, v9, 4, v6')
    assert nW == 8 and not S.bg
    def scale(t):
        if t == 0: return [f'v_fma_f32 {v(ACC+rr)}, {v(ACC+rr)}, v14, v16' for rr in range(16)]
        return [f'v_mul_f32 {v(ACC+16*t+rr)}, {v(14+(t&1))}, {v(ACC+16*t+rr)}' for rr in range(16)]
    for x in scale(LAST[0]): S.I(x)
    S.wait(lg='RW')
    W = []
    for n, t in enumerate(LAST):
        V = scale(LAST[n+1]) if n < 3 else []
        for j in range(8):
            if n == 0: S.wait(vm=f'U{14 + (j >> 1)}')
            r = ureg(14 + (j >> 1)) + 8 * (j & 1)
            c = v(ACC+16*t, 16)
            S.I(f'{MF} {c}, {a_(8*j+4*(t>>1),4)}, {v(r+4*(t&1),4)}, {c}')
            if j < 4:
                for x in V[4*j:4*j+4]: S.I(x)
            if W and (j >= 4 or (n == 3 and j >= 1)): S.I(W.pop(0), tag='xw')
        if t: W += [xw(ACC, t, q) for q in range(4)]
    stamp(S, opt, 9)
    exchange_rd(S, ACC)
    exchange_sum(S, ACC)
    cvt8(S, 32, ACC)
    osc = {0: '', 1: ' sc1', 2: ' nt'}[opt.get('outpol', 0)]
    for qp in range(2):
        b = 32 + 4*qp
        S.I(f'v_permlane32_swap_b32 {v(b)}, {v(b+2)}')
        S.I(f'v_permlane32_swap_b32 {v(b+1)}, {v(b+3)}')
        S.I(f'buffer_store_dwordx4 {v(b,4)}, v17, s[{ROUT}:{ROUT+3}], s{sA68} offen offset:{32*qp}{osc}', tag='out')
    stamp_out(S, opt)
    if opt.get('dbgt'):
        S.I('s_waitcnt vmcnt(0)\ns_memrealtime s[94:95]\ns_waitcnt lgkmcnt(0)')
        S.I(f's_lshl_b32 s3, s{sIDX}, 2\ns_add_u32 s3, s3, s{sWAVE}\ns_cmp_lg_u32 s3, 0\ns_cbranch_scc1 L_end')
        S.I(f'v_mov_b32 v2, s96\nv_mov_b32 v3, s94\ns_lshl_b32 s3, s{sXCD}, 2\nv_mov_b32 v4, s3\ns_mov_b64 exec, 1')
        S.I('global_store_dword v4, v2, s[98:99]\nglobal_store_dword v4, v3, s[98:99] offset:32')
    S.label('L_end')
    S.I('s_endpgm')

def build(opt):
    hdr = open(f'cdna_kernels/{NAME}.s.ref').read().split('\n')
    top = [l for l in hdr if l.startswith(';') and '@launch' not in l and 'Override launch' not in l and 'grid=ceil' not in l]
    out = '\n'.join(top) + '\n'
    out += f'; @launch grid=(256,1,1) block=(256,1,1) lds={LDS_TOTAL}\n'
    out += '.amdgcn_target "amdgcn-amd-amdhsa--gfx950"\n.text\n'
    name = NAME + '_kernel'
    S = Stream()
    gen(S, opt)
    out += f'.globl {name}\n.p2align 8\n.type {name},@function\n{name}:\n' + S.text()
    print('lines', len(S.out), 'nops', S.nnop, file=sys.stderr)
    out += '.p2align 8\nL_table:\n'
    T = tables(opt)
    for i in range(0, len(T), 8): out += '.long ' + ', '.join(f'{x:#x}' for x in T[i:i+8]) + '\n'
    out += '.fill 1024, 4, 0xbf800000\n'
    out += f'''.section .rodata,"a"
.p2align 6
.amdhsa_kernel {name}
  .amdhsa_next_free_vgpr 512
  .amdhsa_next_free_sgpr 102
  .amdhsa_accum_offset 256
  .amdhsa_group_segment_fixed_size 0
  .amdhsa_kernarg_size 104
  .amdhsa_user_sgpr_count 2
  .amdhsa_user_sgpr_kernarg_segment_ptr 1
  .amdhsa_system_sgpr_workgroup_id_x 1
.end_amdhsa_kernel
'''
    return out

if __name__ == '__main__':
    opt = {}
    for a in sys.argv[2:]:
        k, x = a.split('=')
        opt[k] = int(x)
    open(sys.argv[1], 'w').write(build(opt))
```
